```python
import torch

def _softmax(x, axis=-1):
    return torch.softmax(x, dim=axis)
def _gelu(x):
    return torch.nn.functional.gelu(x, approximate="tanh")
def _silu(x):
    return torch.nn.functional.silu(x)
def _sigmoid(x):
    return torch.sigmoid(x)
def _layernorm(x, axis=-1, eps=1e-5):
    m = x.mean(dim=axis, keepdim=True)
    v = x.var(dim=axis, keepdim=True, unbiased=False)
    return (x - m) / torch.sqrt(v + eps)
def _scatter_add(tgt, idx, src, axis=0):
    return tgt.clone().index_add_(axis, idx, src)
def _segment_sum(src, seg, n):
    out = torch.zeros((n,) + src.shape[1:], dtype=src.dtype)
    return out.index_add_(0, seg, src)
def _pad(x, pw):
    flat = tuple(v for pair in reversed(pw) for v in pair)
    return torch.nn.functional.pad(x, flat)

kernel_name = 'standalone__cheap_equivariant_egnn__graph'

def setup_inputs():

    _w = (lambda a: (lambda t: t.to(torch.bfloat16) if t.is_floating_point() else t)(torch.as_tensor(a)))
    N, deg, D, De = 12500, 32, 128, max(0, 1)
    E = N * deg
    return {
        "h": _w((lambda *s: torch.randn(*s, dtype=torch.bfloat16) * 0.1)(N, D)),
        "pos": _w((lambda *s: torch.randn(*s, dtype=torch.bfloat16) * 0.8)(N, 3)),
        "e_attr": _w((lambda *s: torch.randn(*s, dtype=torch.bfloat16) * 0.8)(E, De)),
        "src": _w((lambda lo, hi, *s: torch.randint(lo, hi, s))(0, N, E).to(torch.int64)),
        "dst": _w((lambda lo, hi, *s: torch.randint(lo, hi, s))(0, N, E).to(torch.int64)),
        "w_e": _w(0.1 * (lambda *s: torch.randn(*s, dtype=torch.bfloat16) * 0.8)(2 * D + 1 + De, D)),
        "w_x": _w(0.1 * (lambda *s: torch.randn(*s, dtype=torch.bfloat16) * 0.1)(D, 1)),
        "w_h": _w(0.1 * (lambda *s: torch.randn(*s, dtype=torch.bfloat16) * 0.1)(2 * D, D)),
    }

def reference(h, pos, e_attr, src, dst, w_e, w_x, w_h):
    N, D = h.shape[0], h.shape[1]
    diff = pos[dst] - pos[src]
    dist2 = torch.sum(diff * diff, axis=-1, keepdims=True)
    e_in = torch.concatenate([h[dst], h[src], dist2, e_attr], axis=-1)
    m_ij = _silu(e_in @ w_e)
    coord_scale = m_ij @ w_x
    pos_new = pos + _segment_sum(diff * coord_scale, dst, N)
    m_i = _segment_sum(m_ij, dst, N)
    h_new = h + _silu(torch.concatenate([h, m_i], axis=-1) @ w_h)
    return h_new, pos_new
```

```python
import re

TRANS = ("v_exp_f32", "v_log_f32", "v_rcp_f32", "v_rsq_f32", "v_sqrt_f32", "v_sin_f32", "v_cos_f32")


def regs_of(tok):
    tok = tok.strip()
    tok = tok.lstrip("-").strip("|")
    if tok.startswith("abs("):
        tok = tok[4:-1]
    m = re.fullmatch(r"([vs])(\d+)", tok)
    if m:
        return {(m.group(1), int(m.group(2)))}
    m = re.fullmatch(r"([vs])\[(\d+):(\d+)\]", tok)
    if m:
        return {(m.group(1), i) for i in range(int(m.group(2)), int(m.group(3)) + 1)}
    if tok in ("vcc", "vcc_lo", "vcc_hi"):
        return {("x", "vcc")}
    if tok in ("exec", "exec_lo", "exec_hi"):
        return {("x", "exec")}
    if tok == "m0":
        return {("x", "m0")}
    return set()


class Ins:
    def __init__(self, text):
        self.text = text
        t = text.split(";")[0].strip()
        self.label = None
        self.directive = False
        self.mn = ""
        self.defs, self.uses = set(), set()
        self.kind = "none"
        if t.endswith(":"):
            self.label = t[:-1]
            return
        if t.startswith(".") or not t:
            self.directive = True
            return
        parts = t.split(None, 1)
        mn = parts[0]
        rest = parts[1] if len(parts) > 1 else ""
        ops = []
        depth = 0
        cur = ""
        for ch in rest:
            if ch == "[":
                depth += 1
            if ch == "]":
                depth -= 1
            if ch == "," and depth == 0:
                ops.append(cur.strip())
                cur = ""
            else:
                cur += ch
        if cur.strip():
            ops.append(cur.strip())
        mods = ""
        if ops:
            last = ops[-1].split(None, 1)
            ops[-1] = last[0]
            mods = last[1] if len(last) > 1 else ""
        self.ops, self.mods = ops, mods
        base = re.sub(r"_(e32|e64|dpp|sdwa)$", "", mn)
        self.mn = base
        self.dpp = mn.endswith("_dpp") or "row_" in mods or "wave_" in mods or "quad_perm" in mods
        R = [regs_of(o) for o in ops]
        U = lambda lst: set().union(*lst) if lst else set()
        self.srcc = set()
        self.srcab = set()
        self.passes = 0
        self.wide_store = set()
        self.lanesel = set()
        if base.startswith("v_mfma") or base.startswith("v_smfmac"):
            self.kind = "mfma"
            self.passes = 8 if "32x32" in base else 4
            self.defs = R[0]
            if base.startswith("v_smfmac"):
                self.srcc = R[0]
                self.srcab = U(R[1:4])
            else:
                self.srcc = R[3]
                self.srcab = U(R[1:3])
            self.uses = self.srcc | self.srcab
        elif base.startswith("v_"):
            self.kind = "valu"
            if base.startswith("v_cmpx"):
                self.defs = R[0] | {("x", "exec")}
                self.uses = U(R[1:])
            elif base.startswith("v_permlane"):
                self.defs = U(R[:2])
                self.uses = U(R[:2])
            elif base in ("v_add_co_u32", "v_sub_co_u32", "v_addc_co_u32"):
                self.defs = U(R[:2])
                self.uses = U(R[2:])
            elif base == "v_nop":
                pass
            else:
                self.defs = R[0]
                self.uses = U(R[1:])
                if base in ("v_fmac_f32", "v_writelane_b32") or self.dpp:
                    self.uses |= R[0]
                if base in ("v_readlane_b32", "v_writelane_b32"):
                    self.lanesel = R[2]
        elif base.startswith("ds_"):
            self.kind = "ds"
            if base.startswith("ds_read") or "_rtn" in base or "permute" in base or "swizzle" in base:
                self.defs = R[0]
                self.uses = U(R[1:])
            else:
                self.uses = U(R)
            if "addtid" in base:
                self.uses |= {("x", "m0")}
        elif base.startswith("buffer_") or base.startswith("global_"):
            self.kind = "vmem"
            lds = re.search(r"\blds\b", mods) is not None
            if "load" in base and not lds:
                self.defs = R[0]
                self.uses = U(R[1:])
            else:
                self.uses = U(R)
                if lds:
                    self.uses |= {("x", "m0")}
                if "store" in base and ("x3" in base or "x4" in base):
                    self.wide_store = R[0] if base.startswith("buffer_") else R[1]
        elif base.startswith("s_"):
            self.kind = "salu"
            if base in ("s_waitcnt", "s_barrier", "s_nop", "s_endpgm", "s_setprio", "s_branch", "s_sleep") or base.startswith("s_cbranch"):
                pass
            elif base.startswith("s_cmp") or base.startswith("s_bitcmp"):
                self.uses = U(R)
            else:
                self.defs = R[0] if R else set()
                self.uses = U(R[1:])
                if "saveexec" in base:
                    self.defs |= {("x", "exec")}
        else:
            raise ValueError("unknown instruction: " + text)

    def states(self):
        if self.label is not None or self.directive:
            return 0
        if self.mn == "s_nop":
            return int(self.ops[0]) + 1
        return 1


def required(p, c):
    n = 0
    vdefs = {r for r in p.defs if r[0] == "v"}
    sdefs = {r for r in p.defs if r[0] != "v"}
    if p.kind == "valu":
        if c.kind == "valu":
            if c.dpp and vdefs & c.uses:
                n = max(n, 2)
            if c.dpp and ("x", "exec") in p.defs:
                n = max(n, 5)
            if c.mn in ("v_readlane_b32", "v_readfirstlane_b32") and vdefs & c.uses:
                n = max(n, 1)
            if c.mn in ("v_readlane_b32", "v_readfirstlane_b32", "v_writelane_b32") and ("x", "exec") in p.defs:
                n = max(n, 4)
            if c.mn.startswith("v_permlane"):
                if vdefs & c.uses:
                    n = max(n, 2)
                if ("x", "exec") in p.defs:
                    n = max(n, 4)
            if sdefs & c.uses:
                n = max(n, 2)
            if sdefs & c.lanesel:
                n = max(n, 4)
            if p.mn in TRANS and c.mn not in TRANS and vdefs & c.uses:
                n = max(n, 1)
        if c.kind == "vmem" and sdefs & c.uses:
            n = max(n, 5)
        if c.kind == "mfma":
            if vdefs & c.uses:
                n = max(n, 2)
            if ("x", "exec") in p.defs:
                n = max(n, 4)
    if p.kind == "salu" and ("x", "m0") in p.defs and ("x", "m0") in c.uses and c.kind in ("ds", "vmem"):
        n = max(n, 1)
    if p.kind == "vmem" and p.wide_store & c.defs:
        n = max(n, 2)
    if p.kind == "mfma":
        big = p.passes == 8
        if c.kind == "mfma":
            if p.defs & c.srcab:
                n = max(n, 12 if big else 8)
            if p.defs & c.srcc and not (p.defs == c.srcc and p.passes == c.passes):
                n = max(n, 10 if big else 6)
        elif c.kind in ("valu", "ds", "vmem"):
            if p.defs & (c.uses | c.defs):
                n = max(n, 12 if big else 8)
            if c.kind == "valu" and p.srcc & c.defs:
                n = max(n, 7 if big else 3)
    return n


class Asm:
    def __init__(self):
        self.lines = []

    def __call__(self, text):
        for ln in text.split("\n"):
            ln = ln.strip()
            if ln:
                self.lines.append(ln)

    def fix_hazards(self, verbose=False):
        ins = [Ins(l) for l in self.lines]
        changed = True
        total = 0
        while changed:
            changed = False
            labels = {x.label: i for i, x in enumerate(ins) if x.label}
            jumps = {}
            for i, x in enumerate(ins):
                if x.mn == "s_branch" or x.mn.startswith("s_cbranch"):
                    jumps.setdefault(labels[x.ops[0]], []).append(i)
            for i, c in enumerate(ins):
                if c.kind in ("none", "salu"):
                    continue
                need = 0
                why = None
                stack = [(i, 0)]
                seen = {}
                while stack:
                    j, dist = stack.pop()
                    preds = []
                    if j > 0 and ins[j - 1].mn not in ("s_branch", "s_endpgm"):
                        preds.append(j - 1)
                    if ins[j].label:
                        preds += jumps.get(j, [])
                    for q in preds:
                        p = ins[q]
                        r = required(p, c) if p.kind != "none" else 0
                        if r - dist > need:
                            need = r - dist
                            why = p.text
                        nd = dist + p.states()
                        if nd < 12 and seen.get(q, 99) > nd:
                            seen[q] = nd
                            stack.append((q, nd))
                if need > 0:
                    if verbose:
                        print(f"hazard: +{need} before [{c.text}] after [{why}]")
                    ins.insert(i, Ins(f"s_nop {need - 1}"))
                    total += 1
                    changed = True
                    break
        self.lines = [x.text for x in ins]
        return total

    def text(self):
        out = []
        for l in self.lines:
            if l.endswith(":") or l.startswith(".") or l.startswith(";"):
                out.append(l)
            else:
                out.append("    " + l)
        return "\n".join(out) + "\n"


def vr(a, n=1):
    return f"v{a}" if n == 1 else f"v[{a}:{a + n - 1}]"


def sr(a, n=1):
    return f"s{a}" if n == 1 else f"s[{a}:{a + n - 1}]"
```

```python
import sys, struct, math
sys.path.insert(0, "work")
from asmlib import Asm, vr, sr

NAME = "standalone__cheap_equivariant_egnn__graph"
N, E = 12500, 400000
NB, BN = 256, 49
CH, NCH = 1600, 250
WF_OFF = 3200000
CON_OFF = WF_OFF + 98304
TAB_OFF = CON_OFF + 2048
WS1_SIZE = TAB_OFF + NCH * 1024
BP_OFF = 4 << 20
DBG_OFF = 16 << 20
FMT = 0x00020000


def f32(x):
    return struct.unpack("<I", struct.pack("<f", x))[0]


LOG2E = 1.4426950408889634
LN2 = 0.6931471805599453
KAPPA = 2.0 ** -31
DELTA = 2.0 ** -8 * 0.70
K1_LDS = 49152

RB = 288
SLOT = 0
HST = 80640
YTAB = HST + 14336
ROWA = YTAB + 14336
ROWB = ROWA + 1024
CNT = ROWB + 128
FLAG = CNT + 256
ACC = FLAG + 128
AST = 912
K2_LDS = ACC + BN * AST


def scan_add(a, v, n64=True, op="v_add_u32"):
    for sh in (1, 2, 4, 8):
        for r in v:
            a(f"{op}_dpp v{r}, v{r}, v{r} row_shr:{sh} row_mask:0xf bank_mask:0xf bound_ctrl:1")
    for r in v:
        a(f"{op}_dpp v{r}, v{r}, v{r} row_bcast:15 row_mask:0xa bank_mask:0xf")
    if n64:
        for r in v:
            a(f"{op}_dpp v{r}, v{r}, v{r} row_bcast:31 row_mask:0xc bank_mask:0xf")


def gen_k1(a, opt):
    a(f""".globl k1_kernel
.p2align 8
.type k1_kernel,@function
k1_kernel:
s_load_dwordx2 s[4:5], s[0:1], 32
s_load_dwordx2 s[8:9], s[0:1], 24
s_load_dwordx2 s[12:13], s[0:1], 16
s_load_dwordx2 s[16:17], s[0:1], 80
s_load_dwordx2 s[20:21], s[0:1], 0
s_load_dwordx2 s[24:25], s[0:1], 40
s_load_dwordx2 s[28:29], s[0:1], 56
s_cmp_ge_u32 s2, {NB + NCH}
s_cbranch_scc1 K1_EXIT
v_lshrrev_b32 v1, 6, v0
v_and_b32 v2, 63, v0
s_mov_b32 s18, {WS1_SIZE}
s_mov_b32 s19, {FMT}
v_readfirstlane_b32 s3, v1
s_cmp_lt_u32 s2, {NB}
s_cbranch_scc1 K1_GEMM
""")
    DST, SRC, EA, AD, RK, HI, T0 = 4, 8, 12, 16, 20, 24, 28
    a(f"""; sort role: one chunk of {CH} edges is grouped by destination bin
s_sub_u32 s40, s2, {NB}
s_mov_b32 s6, {E * 4}
s_mov_b32 s7, {FMT}
s_mov_b32 s10, {E * 4}
s_mov_b32 s11, {FMT}
s_mov_b32 s14, {E * 2}
s_mov_b32 s15, {FMT}
s_mul_i32 s41, s40, {CH * 4}
s_mul_i32 s42, s40, {CH * 2}
v_lshlrev_b32 v3, 4, v0
v_lshlrev_b32 v14, 3, v0
v_lshlrev_b32 v15, 2, v0
v_mov_b32 v40, 0
v_cmp_gt_u32 vcc, {CH // 4}, v0
ds_write_b32 v15, v40
s_mov_b64 s[44:45], vcc
s_waitcnt lgkmcnt(0)
s_mov_b64 exec, s[44:45]
buffer_load_dwordx4 {vr(DST, 4)}, v3, s[4:7], s41 offen
buffer_load_dwordx2 {vr(EA, 2)}, v14, s[12:15], s42 offen
buffer_load_dwordx4 {vr(SRC, 4)}, v3, s[8:11], s41 offen
s_mov_b32 s46, -49
s_mov_b32 s47, -24576
s_mov_b32 s48, {f32(-LOG2E)}
s_mov_b32 s49, {f32(-LOG2E)}
s_mov_b32 s50, 0xffff0000
s_mul_i32 s51, s40, {CH * 8}
s_lshl_b32 s52, s40, 10
s_add_u32 s52, s52, {TAB_OFF}
s_add_u32 s53, s51, 8192
v_mov_b32 v41, 1
s_barrier
s_waitcnt vmcnt(2)
""")
    for i in range(4):
        a(f"v_mul_u32_u24 v{T0 + i}, 21400, v{DST + i}")
    for i in range(4):
        a(f"v_lshrrev_b32 v{T0 + i}, 20, v{T0 + i}")
    for i in range(4):
        a(f"v_lshlrev_b32 v{AD + i}, 2, v{T0 + i}")
    for i in range(4):
        a(f"ds_add_rtn_u32 v{RK + i}, v{AD + i}, v41")
    for i in range(4):
        a(f"v_mad_i32_i24 v{DST + i}, v{T0 + i}, s46, v{DST + i}")
    for i in range(4):
        a(f"v_mul_u32_u24 v{T0 + i}, 43, v{DST + i}")
    for i in range(4):
        a(f"v_lshrrev_b32 v{T0 + i}, 8, v{T0 + i}")
    for i in range(4):
        a(f"v_mul_u32_u24 v{DST + i}, 4100, v{DST + i}")
    for i in range(4):
        a(f"v_mad_i32_i24 v{HI + i}, v{T0 + i}, s47, v{DST + i}")
    a("s_waitcnt vmcnt(1)")
    for j in range(2):
        a(f"v_lshlrev_b32 v{T0 + 2 * j}, 16, v{EA + j}")
        a(f"v_and_b32 v{T0 + 2 * j + 1}, s50, v{EA + j}")
    for j in range(2):
        a(f"v_pk_mul_f32 {vr(T0 + 2 * j, 2)}, {vr(T0 + 2 * j, 2)}, s[48:49]")
    for j in range(2):
        a(f"v_cvt_pk_bf16_f32 v{EA + j}, v{T0 + 2 * j}, v{T0 + 2 * j + 1}")
    for j in range(2):
        a(f"v_lshl_or_b32 v{HI + 2 * j}, v{EA + j}, 16, v{HI + 2 * j}")
        a(f"v_and_or_b32 v{HI + 2 * j + 1}, v{EA + j}, s50, v{HI + 2 * j + 1}")
    C0, O0 = 32, 36
    a(f"""s_mov_b64 exec, -1
v_lshlrev_b32 v42, 4, v2
s_waitcnt lgkmcnt(0)
s_barrier
ds_read_b128 {vr(C0, 4)}, v42
s_waitcnt lgkmcnt(0)
v_add_u32 v43, v{C0}, v{C0 + 1}
v_add3_u32 v43, v43, v{C0 + 2}, v{C0 + 3}
v_mov_b32 v44, v43
""")
    scan_add(a, [44])
    a(f"""v_sub_u32 v{O0}, v44, v43
v_add_u32 v{O0 + 1}, v{O0}, v{C0}
v_add_u32 v{O0 + 2}, v{O0 + 1}, v{C0 + 1}
v_add_u32 v{O0 + 3}, v{O0 + 2}, v{C0 + 2}
ds_write_b128 v42, {vr(O0, 4)} offset:1024
s_cmp_lg_u32 s3, 7
s_cbranch_scc1 K1_NOTAB
""")
    for i in range(4):
        a(f"v_lshl_or_b32 v{C0 + i}, v{C0 + i}, 16, v{O0 + i}")
    a(f"""buffer_store_dwordx4 {vr(C0, 4)}, v42, s[16:19], s52 offen
s_branch K1_SCAT_DONE
K1_NOTAB:
s_mov_b64 exec, s[44:45]
""")
    for i in range(4):
        a(f"ds_read_b32 v{AD + i}, v{AD + i} offset:1024")
    a("s_waitcnt vmcnt(0)")
    for i in range(4):
        a(f"s_waitcnt lgkmcnt({3 - i})")
        a(f"v_add_lshl_u32 v{AD + i}, v{AD + i}, v{RK + i}, 3")
    for i in range(4):
        a(f"v_add_u32 v{AD + i}, 2048, v{AD + i}")
        a(f"ds_write2_b32 v{AD + i}, v{SRC + i}, v{HI + i} offset0:0 offset1:1")
    a(f"""s_mov_b64 exec, -1
K1_SCAT_DONE:
v_cmp_gt_u32 vcc, {(CH * 8 - 8192) // 16}, v0
s_waitcnt lgkmcnt(0)
s_barrier
ds_read_b128 v[4:7], v3 offset:2048
ds_read_b128 v[8:11], v3 offset:{2048 + 8192}
s_waitcnt lgkmcnt(1)
buffer_store_dwordx4 v[4:7], v3, s[16:19], s51 offen
s_mov_b64 exec, vcc
s_waitcnt lgkmcnt(0)
buffer_store_dwordx4 v[8:11], v3, s[16:19], s53 offen
K1_EXIT:
s_endpgm
""")
    a(f"""K1_GEMM:
s_mul_i32 s40, s2, {BN * 256}
s_sub_u32 s22, {N * 256}, s40
s_min_u32 s22, s22, {BN * 256}
s_mov_b32 s23, {FMT}
s_mov_b32 s26, {258 * 256}
s_mov_b32 s27, {FMT}
v_lshrrev_b32 v3, 4, v2
v_and_b32 v4, 15, v2
v_lshlrev_b32 v5, 1, v3
v_xor_b32 v5, v5, v4
v_lshlrev_b32 v5, 4, v5
v_lshl_or_b32 v5, v3, 8, v5
v_xor_b32 v6, 128, v5
s_and_b32 s41, s3, 3
s_lshl_b32 s41, s41, 2
v_or_b32 v7, s41, v3
v_xor_b32 v7, v7, v4
v_lshlrev_b32 v7, 4, v7
v_lshl_or_b32 v7, v3, 8, v7
s_lshl_b32 s42, s3, 12
s_add_u32 s43, s42, 32768
s_lshl_b32 s44, s3, 10
s_add_u32 s45, s44, 8192
s_mov_b32 m0, s42
s_waitcnt lgkmcnt(0)
s_add_u32 s20, s20, s40
s_addc_u32 s21, s21, 0
buffer_load_dwordx4 v5, s[24:27], s43 offen lds
buffer_load_dwordx4 v5, s[24:27], s43 offen offset:1024 lds
buffer_load_dwordx4 v6, s[24:27], s43 offen offset:2048 lds
buffer_load_dwordx4 v6, s[24:27], s43 offen offset:3072 lds
s_add_u32 m0, s44, 32768
buffer_load_dwordx4 v7, s[20:23], s44 offen lds
s_add_u32 m0, s45, 32768
buffer_load_dwordx4 v7, s[20:23], s45 offen lds
s_cmp_ge_u32 s3, 4
s_cbranch_scc1 K1_REPACK
""")
    TA, HA, AF, BF, AC = 8, 16, 20, 36, 68
    a(f"""v_bfe_u32 v5, v2, 2, 2
v_and_b32 v6, 1, v3
v_lshl_or_b32 v6, v6, 2, v5
v_lshl_or_b32 v5, v3, 3, v5
v_lshlrev_b32 v5, 8, v5
v_lshl_or_b32 v5, v6, 5, v5
v_and_b32 v6, 3, v2
v_lshl_or_b32 v{TA}, v6, 3, v5
""")
    for t in range(1, 8):
        a(f"v_xor_b32 v{TA + t}, {t << 5}, v{TA}")
    a(f"""v_xor_b32 v5, v3, v4
v_lshlrev_b32 v5, 4, v5
v_lshl_or_b32 v5, v4, 8, v5
v_add_u32 v{HA}, s42, v5
""")
    for ks in range(1, 4):
        a(f"v_xor_b32 v{HA + ks}, {ks << 6}, v{HA}")
    a(f"""s_add_u32 s36, s16, {BP_OFF}
s_addc_u32 s37, s17, 0
s_add_u32 s36, s36, s40
s_addc_u32 s37, s37, 0
s_mov_b32 s38, {BN * 256}
s_mov_b32 s39, {FMT}
s_mov_b32 s48, {f32(-LOG2E)}
s_mov_b32 s49, {f32(-LOG2E)}
v_lshlrev_b32 v5, 10, v3
v_lshl_or_b32 v5, v4, 4, v5
s_waitcnt vmcnt(0)
s_barrier
""")
    for ks in range(4):
        a(f"ds_read_b128 {vr(AF + 4 * ks, 4)}, v{HA + ks} offset:32768")
    DEPTH = 4
    jobs = [(ks, t) for ks in range(4) for t in range(8)]

    def rd(j):
        ks, t = jobs[j]
        d = BF + 4 * (j % 8)
        a(f"ds_read_b64_tr_b16 {vr(d, 2)}, v{TA + t} offset:{ks * 8192}")
        a(f"ds_read_b64_tr_b16 {vr(d + 2, 2)}, v{TA + t} offset:{ks * 8192 + 1024}")
    for j in range(DEPTH):
        rd(j)
    for j, (ks, t) in enumerate(jobs):
        if j + DEPTH < 32:
            rd(j + DEPTH)
        left = min(DEPTH, 31 - j)
        a(f"s_waitcnt lgkmcnt({2 * left})")
        c = "0" if ks == 0 else vr(AC + 4 * t, 4)
        a(f"v_mfma_f32_16x16x32_bf16 {vr(AC + 4 * t, 4)}, {vr(AF + 4 * ks, 4)}, {vr(BF + 4 * (j % 8), 4)}, {c}")
    for t in range(8):
        for hh in range(2):
            a(f"v_pk_mul_f32 {vr(AC + 4 * t + 2 * hh, 2)}, {vr(AC + 4 * t + 2 * hh, 2)}, s[48:49]")
    for r in range(4):
        for u in range(4):
            a(f"v_cvt_pk_bf16_f32 v{BF + 4 * r + u}, v{AC + 8 * u + r}, v{AC + 8 * u + 4 + r}")
        a(f"buffer_store_dwordx4 {vr(BF + 4 * r, 4)}, v5, s[36:39], s42 offen offset:{256 * r}")
    a("s_endpgm")
    a(f"""K1_REPACK:
s_mov_b32 s30, 65536
s_mov_b32 s31, {FMT}
s_cmp_eq_u32 s3, 7
s_cbranch_scc1 K1_CONST
s_mul_i32 s46, s2, 3
s_add_u32 s46, s46, s3
s_sub_u32 s46, s46, 4
s_bfe_u32 s47, s46, 0x20006
s_bfe_u32 s48, s46, 0x30003
s_bfe_u32 s49, s46, 0x10002
s_bfe_u32 s50, s46, 0x10001
s_and_b32 s51, s46, 1
v_and_b32 v3, 7, v2
v_lshrrev_b32 v4, 3, v2
s_lshl_b32 s52, s48, 1
s_add_u32 s52, s52, s49
s_lshl_b32 s52, s52, 10
s_lshl_b32 s55, s46, 7
s_add_u32 s55, s55, {WF_OFF}
v_lshlrev_b32 v7, 1, v2
s_cmp_ge_u32 s46, 256
s_cbranch_scc1 K1_RP_H
s_lshr_b32 s53, s47, 1
s_lshl_b32 s53, s53, 3
s_and_b32 s54, s47, 1
s_add_u32 s53, s53, s54
s_lshl_b32 s54, s50, 2
s_add_u32 s53, s53, s54
s_lshl_b32 s54, s51, 1
s_add_u32 s53, s53, s54
s_add_u32 s52, s52, s53
s_lshl_b32 s52, s52, 1
v_lshlrev_b32 v5, 8, v3
v_lshl_or_b32 v5, v4, 5, v5
buffer_load_ushort v6, v5, s[24:27], s52 offen
s_branch K1_RP_ST
K1_RP_H:
s_lshl_b32 s53, s47, 5
s_lshl_b32 s54, s51, 4
s_add_u32 s53, s53, s54
s_add_u32 s53, s53, s50
v_lshlrev_b32 v5, 8, v3
s_cmp_ge_u32 s46, 512
s_cbranch_scc0 K1_RP_H1
s_lshr_b32 s52, s48, 2
s_lshl_b32 s52, s52, 3
s_and_b32 s54, s48, 1
s_lshl_b32 s54, s54, 2
s_add_u32 s52, s52, s54
s_lshl_b32 s54, s49, 1
s_add_u32 s52, s52, s54
s_bfe_u32 s54, s48, 0x10001
s_add_u32 s52, s52, s54
s_add_u32 s52, s52, 128
s_lshl_b32 s52, s52, 7
v_lshlrev_b32 v5, 12, v3
K1_RP_H1:
s_add_u32 s52, s52, s53
s_lshl_b32 s52, s52, 1
v_lshl_or_b32 v5, v4, 2, v5
buffer_load_ushort v6, v5, s[28:31], s52 offen
K1_RP_ST:
s_waitcnt vmcnt(0)
s_barrier
buffer_store_short v6, v7, s[16:19], s55 offen
s_endpgm
K1_CONST:
s_load_dwordx2 s[32:33], s[0:1], 48
s_waitcnt vmcnt(0) lgkmcnt(0)
s_barrier
s_cmp_lg_u32 s2, 0
s_cbranch_scc1 K1_EXIT2
s_mov_b32 s34, 256
s_mov_b32 s35, {FMT}
s_mov_b32 s46, 65536
s_mov_b32 s47, {CON_OFF}
v_and_b32 v3, 7, v2
v_lshlrev_b32 v3, 5, v3
v_bfe_u32 v4, v2, 4, 1
v_lshl_or_b32 v3, v4, 3, v3
v_bfe_u32 v4, v2, 3, 1
v_lshl_or_b32 v3, v4, 2, v3
v_lshrrev_b32 v4, 5, v2
v_lshl_or_b32 v4, v4, 1, v3
buffer_load_ushort v8, v4, s[24:27], s46 offen
buffer_load_ushort v9, v4, s[24:27], s46 offen offset:16
buffer_load_ushort v10, v4, s[24:27], s46 offen offset:256
buffer_load_ushort v11, v4, s[24:27], s46 offen offset:272
buffer_load_ushort v12, v3, s[32:35], 0 offen
buffer_load_ushort v13, v3, s[32:35], 0 offen offset:2
buffer_load_ushort v14, v3, s[32:35], 0 offen offset:16
buffer_load_ushort v15, v3, s[32:35], 0 offen offset:18
v_lshlrev_b32 v5, 3, v2
v_lshlrev_b32 v6, 4, v2
s_waitcnt vmcnt(0)
v_lshl_or_b32 v8, v10, 16, v8
v_lshl_or_b32 v9, v11, 16, v9
""")
    for i in range(4):
        a(f"v_lshlrev_b32 v{12 + i}, 16, v{12 + i}")
        a(f"v_mul_f32 v{12 + i}, {f32(-LN2 * KAPPA)}, v{12 + i}")
    a(f"""buffer_store_dwordx2 v[8:9], v5, s[16:19], s47 offen
buffer_store_dwordx4 v[12:15], v6, s[16:19], s47 offen offset:512
K1_EXIT2:
s_endpgm
""")


vACC, vC, vD, vG, vE, vM = 192, 160, 128, 96, 80, 64
vP, vX, vY, vI, vSEL, vWX = 56, 48, 40, 32, 28, 24
vQ = 20
vT, vSRC = 18, 16
vAX, vAS, vAT, vNSC, vOFF, vL4, vIDX, vCP, vCD = 15, 14, 13, 12, 11, 10, 9, 8, 7
vL = 6


def gen_k2(a, opt):
    sW, sB = 3, 2
    sH, sPOS, sWS, sBP, sOUT = 4, 8, 12, 16, 20
    sKP = 24
    sEX = 26
    sTOT, sBASE, sLIM, sRO = 36, 37, 38, 39
    sCUR, sEND, sEVT, sSW, sFL, sP0, sPOLD, sNB = 40, 41, 42, 43, 44, 45, 46, 47
    sT = 48
    sC = 64
    a(f""".globl {NAME}_kernel
.p2align 8
.type {NAME}_kernel,@function
{NAME}_kernel:
s_load_dwordx2 s[12:13], s[0:1], 80
s_load_dwordx2 s[4:5], s[0:1], 0
s_load_dwordx2 s[8:9], s[0:1], 8
s_load_dwordx2 s[20:21], s[0:1], 64
s_cmp_ge_u32 s2, {NB}
s_cbranch_scc1 K2_EXIT
v_lshrrev_b32 v1, 6, v0
v_and_b32 v{vL}, 63, v0
s_mov_b32 s14, {WS1_SIZE}
s_mov_b32 s15, {FMT}
v_readfirstlane_b32 s{sW}, v1
v_and_b32 v1, 32, v0
v_lshlrev_b32 v1, 20, v1
v_lshl_or_b32 v1, v{vL}, 10, v1
s_lshl_b32 s{sT}, s{sW}, 15
s_lshl_b32 s{sT + 1}, s2, 2
s_add_u32 s{sT}, s{sT}, s{sT + 1}
s_add_u32 s{sT}, s{sT}, {TAB_OFF}
s_mul_i32 s{sT + 2}, s2, {BN * 256}
s_sub_u32 s6, {N * 256}, s{sT + 2}
s_min_u32 s6, s6, {BN * 256}
s_mov_b32 s7, {FMT}
v_lshrrev_b32 v3, 4, v{vL}
v_and_b32 v4, 15, v{vL}
s_and_b32 s{sT + 3}, s{sW}, 3
s_lshl_b32 s{sT + 3}, s{sT + 3}, 2
v_or_b32 v5, s{sT + 3}, v3
v_xor_b32 v5, v5, v4
v_lshlrev_b32 v5, 4, v5
v_lshl_or_b32 v5, v3, 8, v5
s_lshl_b32 s{sT + 4}, s{sW}, 10
s_cmp_lt_u32 s{sW}, 6
s_cselect_b32 s{sT + 5}, 8192, 0
s_add_u32 s{sT + 5}, s{sT + 5}, s{sT + 4}
s_lshl_b32 s{sT + 6}, s{sW}, 13
s_add_u32 s{sT + 6}, s{sT + 6}, {WF_OFF}
s_add_u32 s{sT + 7}, s{sT + 6}, 4096
s_mov_b32 s{sT + 8}, {CON_OFF}
v_lshlrev_b32 v2, 4, v{vL}
v_lshlrev_b32 v3, 3, v{vL}
s_add_u32 m0, s{sT + 4}, {HST}
s_waitcnt lgkmcnt(0)
buffer_load_dword v{vCP}, v1, s[12:15], s{sT} offen
s_add_u32 s4, s4, s{sT + 2}
s_addc_u32 s5, s5, 0
buffer_load_dwordx4 v5, s[4:7], s{sT + 4} offen lds
s_add_u32 m0, s{sT + 5}, {HST}
s_add_u32 s16, s12, {BP_OFF}
buffer_load_dwordx4 v5, s[4:7], s{sT + 5} offen lds
""")
    for ks in range(8):
        a(f"buffer_load_dwordx4 {vr(vG + 4 * ks, 4)}, v2, s[12:15], s{sT + 6 + ks // 4} offen offset:{1024 * (ks % 4)}")
    a(f"""buffer_load_dwordx2 {vr(vQ, 2)}, v3, s[12:15], s{sT + 8} offen
buffer_load_dwordx4 {vr(vWX, 4)}, v2, s[12:15], s{sT + 8} offen offset:512
s_addc_u32 s17, s13, 0
s_or_b32 s17, s17, {256 << 16}
s_mov_b32 s18, {N}
s_mov_b32 s19, {FMT}
s_or_b32 s9, s9, {6 << 16}
s_mov_b32 s10, {N}
s_mov_b32 s11, {FMT}
s_mov_b32 s{sKP}, {f32(KAPPA / (1 + DELTA))}
s_mov_b32 s{sKP + 1}, {f32(KAPPA / (1 + DELTA))}
s_mov_b32 s{sBASE}, 0
s_mul_i32 s{sRO}, s{sW}, {32 * CH * 8}
""")
    for i in range(4):
        a(f"v_mov_b32 v{vSEL + i}, 0")
    a(f"""v_lshlrev_b32 v1, 4, v0
v_add_u32 v1, {CNT}, v1
s_mul_i32 s{sT}, s{sW}, 1280
v_add_u32 v2, s{sT}, v2
v_lshlrev_b32 v{vL4}, 2, v{vL}
v_add_u32 v3, s{sT}, v{vL4}
ds_write_b128 v2, {vr(vSEL, 4)}
ds_write_b32 v3, v{vSEL} offset:1024
""")
    for i in range(6):
        a(f"ds_write_b128 v1, {vr(vSEL, 4)} offset:{8192 * i}")
    a(f"""v_lshrrev_b32 v1, 5, v{vL}
v_bfe_u32 v2, v{vL}, 1, 1
v_lshlrev_b32 v{vSRC + 1}, 5, v1
v_lshl_or_b32 v{vSRC + 1}, v2, 4, v{vSRC + 1}
v_bfe_u32 v3, v{vL}, 2, 3
v_and_b32 v4, 1, v{vL}
v_lshl_or_b32 v3, v3, 1, v4
v_lshlrev_b32 v{vAS}, 5, v3
v_xor_b32 v2, v2, v1
v_lshl_or_b32 v{vAX}, v2, 24, v{vAS}
v_bfe_u32 v2, v{vL}, 3, 1
v_bfe_u32 v3, v{vL}, 2, 1
v_lshl_or_b32 v3, v2, 2, v3
v_lshl_or_b32 v3, v1, 3, v3
v_lshlrev_b32 v{vAT}, 5, v3
v_bfe_u32 v2, v{vL}, 4, 1
v_and_b32 v3, 3, v{vL}
v_lshl_or_b32 v3, v2, 2, v3
v_add_u32 v3, 1, v3
v_lshlrev_b32 v{vNSC}, 18, v3
v_mov_b32 v{vIDX}, 0xdddddddd
v_and_b32 v2, 31, v{vL}
v_lshlrev_b32 v3, 3, v1
v_sub_u32 v2, v2, v3
v_lshlrev_b32 v4, 4, v2
v_mov_b32 v5, 0x3f80
v_lshlrev_b32 v4, v4, v5
v_ashrrev_i32 v2, 1, v2
""")
    for u in range(2):
        for q in range(4):
            a(f"v_cmp_eq_u32 s[{sT + 2 * q}:{sT + 2 * q + 1}], {8 * u + q}, v2")
        for q in range(4):
            a(f"v_cndmask_b32 v{vI + 4 * u + q}, 0, v4, s[{sT + 2 * q}:{sT + 2 * q + 1}]")
    a(f"""s_cmp_lg_u32 s{sW}, 0
s_cbranch_scc1 K2_NOROWB
v_lshlrev_b32 v1, 4, v{vL}
v_lshlrev_b32 v4, v1, v5
v_lshrrev_b32 v2, 1, v{vL}
v_add_u32 v{vE}, 1, v{vL}
v_lshlrev_b32 v{vE}, 18, v{vE}
v_add_u32 v{vE}, 24, v{vE}
v_add_u32 v1, {ROWB}, v1
""")
    for q in range(3):
        a(f"v_cmp_eq_u32 s[{sT + 2 * q}:{sT + 2 * q + 1}], {q}, v2")
    for q in range(3):
        a(f"v_cndmask_b32 v{vE + 1 + q}, 0, v4, s[{sT + 2 * q}:{sT + 2 * q + 1}]")
    a(f"""s_mov_b64 exec, 63
ds_write_b128 v1, {vr(vE, 4)}
s_mov_b64 exec, -1
K2_NOROWB:
s_waitcnt lgkmcnt(0)
s_barrier
s_waitcnt vmcnt(12)
v_lshrrev_b32 v1, 16, v{vCP}
v_and_b32 v{vCD}, 0xffff, v{vCP}
v_mov_b32 v2, v1
s_mov_b32 s{sT}, {CH}
v_mad_u32_u24 v{vCD}, v{vL}, s{sT}, v{vCD}
""")
    scan_add(a, [2], n64=False)
    a(f"""v_sub_u32 v{vCP}, v2, v1
v_readlane_b32 s{sTOT}, v2, 31
v_sub_u32 v{vCD}, v{vCD}, v{vCP}
v_mov_b32 v1, {FLAG}
v_mov_b32 v2, s{sTOT}
s_mov_b64 exec, 1
ds_max_u32 v1, v2
K2_BATCH:
s_mov_b32 exec_lo, -1
s_mov_b32 exec_hi, 0
s_mul_i32 s{sT}, s{sW}, 1280
v_subrev_u32 v1, s{sBASE}, v{vCP}
v_max_i32 v1, 0, v1
v_cmpx_gt_u32 vcc, {RB}, v1
v_lshl_add_u32 v1, v1, 2, s{sT}
ds_max_u32 v1, v{vCD}
s_mov_b64 exec, -1
v_add_u32 v1, s{sT}, v{vL4}
s_sub_i32 s{sLIM}, s{sTOT}, s{sBASE}
s_min_i32 s{sLIM}, s{sLIM}, {RB}
""")
    MK = vE
    RQ = vACC
    RK = vACC + 20
    AD = vACC + 25
    for k in range(5):
        a(f"ds_read_b32 v{MK + k}, v1 offset:{256 * k}")
    for k in range(5):
        a(f"s_sub_i32 s{sT + 1}, s{sLIM}, {64 * k}")
        a(f"v_cmp_gt_i32 s[{sEX + 2 * k}:{sEX + 2 * k + 1}], s{sT + 1}, v{vL}")
    a(f"""s_lshl_b32 s{sT + 2}, s{sBASE}, 3
s_add_u32 s{sT + 2}, s{sT + 2}, s{sRO}
s_waitcnt lgkmcnt(0)
""")
    scan_add(a, [MK + k for k in range(5)], op="v_max_u32")
    for k in range(4):
        a(f"v_readlane_b32 s{sT + 4 + k}, v{MK + k}, 63")
    a(f"v_add_lshl_u32 v{MK}, v{MK}, v{vL}, 3")
    for k in range(1, 4):
        a(f"s_max_u32 s{sT + 4 + k}, s{sT + 4 + k}, s{sT + 3 + k}")
    for k in range(1, 5):
        a(f"v_max_u32 v{MK + k}, s{sT + 3 + k}, v{MK + k}")
    for k in range(1, 5):
        a(f"v_add_lshl_u32 v{MK + k}, v{MK + k}, v{vL}, 3")
    for k in range(5):
        a(f"s_mov_b64 exec, s[{sEX + 2 * k}:{sEX + 2 * k + 1}]")
        a(f"buffer_load_dwordx2 {vr(RQ + 4 * k, 2)}, v{MK + k}, s[12:15], s{sT + 2} offen offset:{512 * k}")
    a(f"""s_mov_b64 exec, -1
s_cmp_lg_u32 s{sW}, 7
s_cbranch_scc1 K2_NOPD
s_mul_i32 s{sT}, s2, {BN}
v_add_u32 v1, s{sT}, v{vL}
buffer_load_dwordx2 v[2:3], v1, s[8:11], 0 idxen
v_lshlrev_b32 v1, 4, v{vL}
v_add_u32 v1, {ROWA}, v1
s_waitcnt vmcnt(0)
v_lshlrev_b32 v4, 16, v3
v_and_b32 v3, 0xffff0000, v2
v_lshlrev_b32 v2, 16, v2
ds_write_b96 v1, v[2:4]
K2_NOPD:
v_mov_b32 v5, 1
s_mov_b32 s{sT}, {CNT}
""")
    a("s_waitcnt vmcnt(0)")
    for k in (4, 3, 2, 1, 0):
        a(f"s_mov_b64 exec, s[{sEX + 2 * k}:{sEX + 2 * k + 1}]")
        a(f"buffer_load_dwordx2 {vr(RQ + 4 * k + 2, 2)}, v{RQ + 4 * k}, s[8:11], 0 idxen")
        a(f"v_and_b32 v{AD + k}, 0xff, v{RQ + 4 * k + 1}")
        a(f"v_add_u32 v1, s{sT}, v{AD + k}")
        a(f"ds_add_rtn_u32 v{RK + k}, v1, v5")
    a("s_mov_b64 exec, -1")
    a(f"""v_add_u32 v1, {CNT}, v{vL4}
v_mov_b32 v2, {FLAG}
s_waitcnt lgkmcnt(0)
s_barrier
ds_read_b32 v3, v1
ds_read_b32 v2, v2
v_cmp_gt_u32 vcc, {BN}, v{vL}
s_waitcnt lgkmcnt(0)
v_max_u32 v4, 4, v3
v_cndmask_b32 v4, 0, v4, vcc
v_readfirstlane_b32 s{sNB}, v2
v_mov_b32 v5, v4
""")
    scan_add(a, [5])
    a(f"""v_sub_u32 v4, v5, v4
v_readlane_b32 s{sT}, v5, 63
v_bfrev_b32 v1, -2
v_cndmask_b32 v{vOFF}, v1, v4, vcc
v_lshlrev_b32 v4, 5, v4
v_lshlrev_b32 v1, 4, v{vL}
v_add_u32 v1, {ROWA}, v1
ds_write_b32 v1, v4 offset:12
""")
    a(f"""v_mov_b32 v{vE}, 0
v_mov_b32 v{vE + 1}, 0
v_mov_b32 v{vE + 2}, 0
v_mov_b32 v{vE + 3}, 0
v_bfrev_b32 v{vE + 4}, -2
v_mov_b32 v{vE + 5}, 0
v_mov_b32 v{vE + 6}, 0
v_mov_b32 v{vE + 7}, 0
s_cmp_gt_u32 s{sW}, 4
s_cbranch_scc1 K2_NOPAD
s_cmp_eq_u32 s{sW}, 4
s_cbranch_scc1 K2_TAILPAD
s_lshl_b32 s{sT + 1}, s{sW}, 5
v_add_u32 v4, s{sT + 1}, v4
s_mov_b64 exec, vcc
v_cmpx_ge_u32 vcc, s{sW}, v3
s_branch K2_DOPAD
K2_TAILPAD:
v_add_lshl_u32 v4, s{sT}, v{vL}, 5
s_mov_b64 exec, 0xffff
K2_DOPAD:
ds_write_b128 v4, {vr(vE, 4)}
ds_write_b128 v4, {vr(vE + 4, 4)} offset:16
s_mov_b64 exec, -1
K2_NOPAD:
s_add_u32 s{sT}, s{sT}, 15
s_lshr_b32 s{sT}, s{sT}, 4
s_lshr_b32 s{sT + 1}, s{sT}, 3
s_and_b32 s{sT + 2}, s{sT}, 7
s_mul_i32 s{sCUR}, s{sW}, s{sT + 1}
s_min_u32 s{sT + 3}, s{sW}, s{sT + 2}
s_add_u32 s{sCUR}, s{sCUR}, s{sT + 3}
s_add_u32 s{sEND}, s{sCUR}, s{sT + 1}
s_cmp_lt_u32 s{sW}, s{sT + 2}
s_addc_u32 s{sEND}, s{sEND}, 0
s_cmp_lg_u32 s{sBASE}, 0
s_cbranch_scc1 K2_NOGEMM
""")
    a(f"""v_and_b32 v1, 31, v{vL}
v_lshrrev_b32 v2, 5, v{vL}
v_and_b32 v3, 15, v{vL}
v_xor_b32 v2, v2, v3
v_lshlrev_b32 v2, 4, v2
v_lshl_or_b32 v2, v1, 8, v2
v_add_u32 v{vP}, {HST}, v2
""")
    for ks in range(1, 8):
        a(f"v_xor_b32 v{vP + ks}, {ks << 5}, v{vP}")
    jobs = [(ks, rho) for ks in range(8) for rho in range(2)]
    DEP = 7

    def rdh(j):
        ks, rho = jobs[j]
        a(f"ds_read_b128 {vr(vD + 4 * (j % 8), 4)}, v{vP + ks} offset:{8192 * rho}")
    for j in range(DEP):
        rdh(j)
    a(f"""v_mov_b32 v{vY}, v{vQ}
v_mov_b32 v{vY + 4}, v{vQ + 1}
s_mov_b32 s{sT}, {f32(-LOG2E)}
s_mov_b32 s{sT + 1}, {f32(-LOG2E)}
""")
    for j, (ks, rho) in enumerate(jobs):
        if j + DEP < 16:
            rdh(j + DEP)
        a(f"s_waitcnt lgkmcnt({min(DEP, 15 - j)})")
        c = "0" if ks == 0 else vr(vC + 16 * rho, 16)
        a(f"v_mfma_f32_32x32x16_bf16 {vr(vC + 16 * rho, 16)}, {vr(vD + 4 * (j % 8), 4)}, {vr(vG + 4 * ks, 4)}, {c}")
    a(f"""v_lshrrev_b32 v1, 5, v{vL}
v_and_b32 v2, 31, v{vL}
v_lshlrev_b32 v2, 2, v2
v_lshl_or_b32 v2, v1, 10, v2
s_lshl_b32 s{sT + 2}, s{sW}, 7
s_add_u32 s{sT + 2}, s{sT + 2}, {YTAB}
v_add_u32 v2, s{sT + 2}, v2
""")
    for i in range(0, 28, 2):
        a(f"v_pk_mul_f32 {vr(vC + i, 2)}, {vr(vC + i, 2)}, s[{sT}:{sT + 1}]")
    a(f"""s_cmp_ge_u32 s{sW}, 4
s_cbranch_scc1 K2_NOGEMM
""")
    for i in range(0, 28, 2):
        rho, r = i // 16, i % 16
        pair = 16 * rho + 4 * (r >> 2) + ((r & 3) >> 1)
        a(f"v_cvt_pk_bf16_f32 v{vD + i // 2}, v{vC + i}, v{vC + i + 1}")
        a(f"ds_write_b32 v2, v{vD + i // 2} offset:{512 * pair}")
    a("K2_NOGEMM:")
    RA, XB = vD, vG
    a(f"""s_mov_b32 s{sT}, {ROWA}
s_mov_b32 s{sT + 1}, {ROWB}
s_mov_b32 s{sT + 2}, {f32(KAPPA)}
s_mov_b32 s{sT + 3}, 0xffff0000
""")
    for k in range(5):
        a(f"s_mov_b64 exec, s[{sEX + 2 * k}:{sEX + 2 * k + 1}]")
        a(f"v_lshl_add_u32 v1, v{AD + k}, 2, s{sT}")
        a(f"v_bfe_u32 v2, v{RQ + 4 * k + 1}, 8, 8")
        a(f"v_add_u32 v2, s{sT + 1}, v2")
        a(f"ds_read_b128 {vr(RA + 4 * k, 4)}, v1")
        a(f"ds_read_b128 {vr(XB + 4 * k, 4)}, v2")
    a("s_waitcnt lgkmcnt(0)")
    for k in (4, 3, 2, 1, 0):
        q, ra, xb = RQ + 4 * k, RA + 4 * k, XB + 4 * k
        a(f"""s_mov_b64 exec, s[{sEX + 2 * k}:{sEX + 2 * k + 1}]
s_cbranch_execz K2_SKIP{k}
s_waitcnt vmcnt({k})
v_lshlrev_b32 v1, 16, v{q + 2}
v_and_b32 v2, s{sT + 3}, v{q + 2}
v_lshlrev_b32 v3, 16, v{q + 3}
v_sub_f32 v1, v{ra}, v1
v_sub_f32 v2, v{ra + 1}, v2
v_sub_f32 v3, v{ra + 2}, v3
v_lshl_add_u32 v5, v{RK + k}, 5, v{ra + 3}
v_mul_f32 v4, v1, v1
v_cvt_pk_bf16_f32 v{q + 2}, s{sT + 2}, v1
v_fmac_f32 v4, v2, v2
v_cvt_pk_bf16_f32 v{q + 3}, v2, v3
v_fmac_f32 v4, v3, v3
v_add_u32 v1, v{xb}, v5
v_mul_f32 v4, {f32(-LOG2E)}, v4
v_cvt_pk_bf16_f32 v{xb}, v4, v{q + 1}
v_mov_b32 v{q + 1}, v1
ds_write_b128 v5, {vr(xb, 4)}
ds_write_b128 v5, {vr(q, 4)} offset:16
K2_SKIP{k}:
""")
    a("s_mov_b64 exec, -1")

    def window(first_step_sgpr):
        a(f"""s_lshl_b32 s{sT}, s{first_step_sgpr}, 4
v_cmp_ge_u32 vcc, s{sT}, v{vOFF}
s_bcnt1_i32_b64 s{sT}, vcc
s_sub_u32 s{sT}, s{sT}, 1
s_lshr_b32 s{sP0}, s{sT}, 1
s_lshl_b32 s{sT}, s{sP0}, 1
s_add_u32 s{sT}, s{sT}, 6
v_readlane_b32 s{sSW}, v{vOFF}, s{sT}
s_lshr_b32 s{sSW}, s{sSW}, 4
""")

    def pairs_of(p0):
        a(f"""s_mul_i32 s{sT}, s{p0}, 43
s_lshr_b32 s{sT}, s{sT}, 7
s_mul_i32 s{sT}, s{sT}, 3
""")
        for i in range(3):
            a(f"""s_add_u32 s{sT + 4 + i}, s{sT}, {i}
s_cmp_lt_u32 s{sT + 4 + i}, s{p0}
s_cselect_b32 s{sT + 1}, 3, 0
s_add_u32 s{sT + 4 + i}, s{sT + 4 + i}, s{sT + 1}
""")

    def load_y():
        pairs_of(sP0)
        for i in range(3):
            a(f"""s_lshl_b32 s{sT + 4 + i}, s{sT + 4 + i}, 9
s_add_u32 s{sT + 4 + i}, s{sT + 4 + i}, {YTAB}
v_add_u32 v{1 + i}, s{sT + 4 + i}, v{vL4}
ds_read_b32 v{vY + 1 + i}, v{1 + i}
ds_read_b32 v{vY + 5 + i}, v{1 + i} offset:256
""")

    def flush(p0, zero):
        pairs_of(p0)
        a(f"""v_lshrrev_b32 v4, 5, v{vL}
v_mul_u32_u24 v4, {AST - 128}, v4
v_add_u32 v4, v4, v{vL4}
""")
        for i in range(3):
            a(f"""s_mul_i32 s{sT + 4 + i}, s{sT + 4 + i}, {2 * AST}
s_add_u32 s{sT + 4 + i}, s{sT + 4 + i}, {ACC}
v_add_u32 v{1 + i}, s{sT + 4 + i}, v4
""")
        for i in range(3):
            for cb in range(4):
                a(f"ds_add_f32 v{1 + i}, v{vACC + 16 * cb + 4 * i} offset:{128 * cb}")
            for c in range(1, 4):
                a(f"v_mul_f32 v{vACC + 4 * i + c}, v{vWX}, v{vACC + 4 * i + c}")
            for cb in range(1, 4):
                for c in range(1, 4):
                    a(f"v_fmac_f32 v{vACC + 4 * i + c}, v{vWX + cb}, v{vACC + 16 * cb + 4 * i + c}")
            for c in range(1, 4):
                a(f"ds_add_f32 v{1 + i}, v{vACC + 4 * i + c} offset:{512 + 128 * (c - 1)}")
        if zero:
            zero_acc()

    def zero_acc():
        for i in range(4):
            a(f"v_mov_b32 v{vQ + i}, 0")
        for cb in range(4):
            a(f"v_mfma_f32_32x32x16_bf16 {vr(vACC + 16 * cb, 16)}, {vr(vQ, 4)}, {vr(vQ, 4)}, 0")

    window(sCUR)
    a(f"""s_lshl_b32 s{sT + 8}, s{sCUR}, 9
v_add_u32 v{vAX}, s{sT + 8}, v{vAX}
v_add_u32 v{vAS}, s{sT + 8}, v{vAS}
s_add_u32 s{sT + 9}, s{sT + 8}, 20
v_add_u32 v{vAT}, s{sT + 9}, v{vAT}
s_mov_b32 s{sFL}, -1
s_sub_u32 s{sEVT}, s{sSW}, 1
s_waitcnt vmcnt(0) lgkmcnt(0)
s_barrier
ds_read_b32 v{vSRC}, v{vAS} offset:16
ds_read_b32 v4, v{vAS} offset:{512 + 16}
v_mov_b32 v5, v{vSRC + 1}
""")
    zero_acc()
    for i in range(4):
        a(f"v_mov_b32 v{vSEL + i}, 0")
    for i in range(0, 16, 2):
        a(f"v_mov_b64 {vr(vM + i, 2)}, 0")
    a("s_waitcnt lgkmcnt(1)")
    for u in range(4):
        a(f"buffer_load_dwordx4 {vr(vG + 4 * u, 4)}, {vr(vSRC, 2)}, s[16:19], 0 idxen offen offset:{64 * u}")
    a("s_waitcnt lgkmcnt(0)")
    for u in range(4):
        a(f"buffer_load_dwordx4 {vr(vG + 16 + 4 * u, 4)}, v[4:5], s[16:19], 0 idxen offen offset:{64 * u}")
    a(f"""ds_read_b128 {vr(vX, 4)}, v{vAX}
ds_read_b128 {vr(vX + 4, 4)}, v{vAX} offset:512
ds_read2_b32 {vr(vT, 2)}, v{vAT} offset0:0 offset1:16
ds_read_b32 v{vSRC}, v{vAS} offset:{1024 + 16}
""")
    load_y()
    a(f"""v_add_u32 v{vAT}, 512, v{vAT}
s_waitcnt vmcnt(4) lgkmcnt(0)
""")

    def pre(d, g, x, tau):
        return [
            f"v_mfma_f32_32x32x16_bf16 {vr(d, 16)}, {vr(g + 8 * tau, 4)}, {vr(vI, 4)}, 0",
            f"v_mfma_f32_32x32x16_bf16 {vr(d, 16)}, {vr(g + 8 * tau + 4, 4)}, {vr(vI + 4, 4)}, {vr(d, 16)}",
            f"v_mfma_f32_32x32x16_bf16 {vr(d, 16)}, {vr(x, 4)}, {vr(vY + 4 * tau, 4)}, {vr(d, 16)}",
        ]

    def seg(tau):
        return [f"v_smfmac_f32_32x32x32_bf16 {vr(vACC + 16 * (2 * tau + s), 16)}, {vr(vSEL, 4)}, {vr(vM + 8 * s, 8)}, v{vIDX}"
                for s in range(2)]

    for m in pre(vD, vG, vX, 0):
        a(m)

    def tile(d, mp, ms, wait_before_seg, extra):
        for r in range(16):
            if r in (0, 3, 6):
                a(mp[r // 3])
            if r == 9:
                if wait_before_seg:
                    a("s_waitcnt lgkmcnt(0)")
                a(ms[0])
            wide = "_e64" if (r in (2, 5) or (r == 8 and not wait_before_seg) or r == 15) else ""
            a(f"v_exp_f32{wide} v{vE + r}, v{d + r}")
        for g in range(0, 16, 2):
            a(f"v_pk_fma_f32 {vr(vE + g, 2)}, {vr(vE + g, 2)}, s[{sKP}:{sKP + 1}], s[{sKP}:{sKP + 1}] clamp")
        for g in range(4):
            a(f"v_pk_mul_f32 {vr(vP + 2 * g, 2)}, {vr(vE + 4 * g, 2)}, {vr(vE + 4 * g + 2, 2)}")
        for g in range(2):
            a(f"v_pk_mul_f32 {vr(vQ + 2 * g, 2)}, {vr(vP + 4 * g, 2)}, {vr(vP + 4 * g + 2, 2)}")
        for g in range(4):
            a(f"v_pk_mul_f32 {vr(vE + 4 * g + 2, 2)}, {vr(d + 4 * g, 2)}, {vr(vE + 4 * g + 2, 2)}")
            a(f"v_pk_mul_f32 {vr(vE + 4 * g, 2)}, {vr(vE + 4 * g, 2)}, {vr(d + 4 * g + 2, 2)}")
        a(ms[1])
        for r in range(4):
            a(f"v_rcp_f32 v{vQ + r}, v{vQ + r}")
        for x in extra:
            a(x)
        for g in range(4):
            a(f"v_pk_mul_f32 {vr(vP + 2 * g, 2)}, {vr(vP + 2 * g, 2)}, {vr(vQ + 2 * (g // 2), 2)}")
        for g in range(4):
            o = vP + 2 * (g ^ 1)
            a(f"v_pk_mul_f32 {vr(vM + 2 * g, 2)}, {vr(vE + 4 * g + 2, 2)}, {vr(o, 2)}")
            a(f"v_pk_mul_f32 {vr(vM + 8 + 2 * g, 2)}, {vr(vE + 4 * g, 2)}, {vr(o, 2)}")

    def step(par):
        g, x = vG + 16 * par, vX + 4 * par
        gn, xn = vG + 16 * (1 - par), vX + 4 * (1 - par)
        ex = [f"v_sub_u32 v{vT}, v{vT}, v{vNSC}", f"v_sub_u32 v{vT + 1}, v{vT + 1}, v{vNSC}"]
        tile(vD, pre(vD + 16, g, x, 1), seg(1), False, ex)
        for u in range(4):
            a(f"buffer_load_dwordx4 {vr(g + 4 * u, 4)}, {vr(vSRC, 2)}, s[16:19], 0 idxen offen offset:{64 * u}")
        a(f"""ds_read_b64_tr_b16 {vr(vSEL, 2)}, v{vT}
ds_read_b64_tr_b16 {vr(vSEL + 2, 2)}, v{vT + 1}
ds_read_b128 {vr(x, 4)}, v{vAX} offset:{1024 + 512 * par}
ds_read2_b32 {vr(vT, 2)}, v{vAT} offset0:{128 * par} offset1:{128 * par + 16}
ds_read_b32 v{vSRC}, v{vAS} offset:{1536 + 16 + 512 * par}
s_cmp_eq_u32 s{sCUR}, s{sEVT}
s_cbranch_scc1 K2_EVT{par}
K2_RET{par}:
s_add_u32 s{sCUR}, s{sCUR}, 1
s_waitcnt vmcnt(4)
""")
        ex = []
        if par == 1:
            ex = [f"v_add_u32 v{vAX}, s{sC}, v{vAX}", f"v_add_u32 v{vAS}, s{sC}, v{vAS}", f"v_add_u32_e64 v{vAT}, s{sC}, v{vAT}"]
        tile(vD + 16, pre(vD, gn, xn, 0), seg(0), True, ex)
        a(f"s_cmp_lt_u32 s{sCUR}, s{sEND}")
        a("s_cbranch_scc0 K2_DONE" if par == 0 else "s_cbranch_scc1 K2_LOOP")

    a(f"""s_mov_b32 s{sC}, 1024
s_nop 11
.p2align 3
K2_LOOP:
""")
    step(0)
    step(1)
    a("K2_DONE:")
    for m in seg(1):
        a(m)
    a(f"""s_lshl_b32 s{sT + 8}, s{sW}, 13
s_add_u32 s{sT + 8}, s{sT + 8}, {WF_OFF + 32768}
s_add_u32 s{sT + 9}, s{sT + 8}, 4096
v_lshlrev_b32 v5, 4, v{vL}
s_add_u32 s{sBASE}, s{sBASE}, {RB}
s_cmp_lt_u32 s{sW}, 4
s_cbranch_scc1 K2_NOWH2
""")
    for ks in range(8):
        a(f"buffer_load_dwordx4 {vr(vG + 4 * ks, 4)}, v5, s[12:15], s{sT + 8 + ks // 4} offen offset:{1024 * (ks % 4)}")
    a("K2_NOWH2:")
    a(f"""s_cmp_eq_u32 s{sFL}, s{sCUR}
s_cselect_b32 s{sPOLD}, s{sPOLD}, s{sP0}
""")
    flush(sPOLD, False)
    a(f"""s_waitcnt lgkmcnt(0)
s_barrier
s_cmp_lt_u32 s{sBASE}, s{sNB}
s_cbranch_scc1 K2_MORE
s_cmp_lt_u32 s{sW}, 4
s_cbranch_scc1 K2_POS
""")
    a(f"""v_and_b32 v1, 31, v{vL}
v_lshrrev_b32 v2, 5, v{vL}
v_mul_u32_u24 v1, {AST}, v1
v_lshl_add_u32 v1, v2, 5, v1
v_add_u32 v1, {ACC}, v1
""")
    jobs = [(rho, ks) for rho in range(2) for ks in range(8)]
    DEP = 6
    MB = vACC

    def rdm(j):
        rho, ks = jobs[j]
        d = MB + 8 * (j % 8)
        o = rho * 32 * AST + ks * 64
        a(f"ds_read_b128 {vr(d, 4)}, v1 offset:{o}")
        a(f"ds_read_b128 {vr(d + 4, 4)}, v1 offset:{o + 16}")
    for j in range(DEP):
        rdm(j)
    a(f"""s_mul_i32 s{sT}, s2, {BN * 256}
s_add_u32 s20, s20, s{sT}
s_addc_u32 s21, s21, 0
s_mov_b32 s22, s6
s_mov_b32 s23, {FMT}
s_sub_u32 s{sT + 1}, s{sW}, 4
s_lshl_b32 s{sT + 2}, s{sT + 1}, 6
s_lshl_b32 s{sT + 3}, s{sT + 1}, 2
v_bfe_u32 v3, v{vL}, 4, 1
v_lshl_or_b32 v3, v2, 2, v3
v_and_b32 v4, 15, v{vL}
v_lshlrev_b32 v5, 8, v3
v_lshl_or_b32 v{vAS}, v4, 2, v5
v_add_u32 v{vAS}, s{sT + 2}, v{vAS}
v_lshrrev_b32 v4, 2, v4
v_or_b32 v4, s{sT + 3}, v4
v_xor_b32 v4, v4, v3
v_lshl_or_b32 v5, v4, 4, v5
v_and_b32 v4, 3, v{vL}
v_lshl_or_b32 v5, v4, 2, v5
v_add_u32 v{vAX}, {HST}, v5
v_xor_b32 v{vAT}, 32, v{vAX}
v_xor_b32 v{vNSC}, 128, v{vAX}
v_xor_b32 v{vOFF}, 160, v{vAX}
s_waitcnt vmcnt(0)
""")
    for j, (rho, ks) in enumerate(jobs):
        if j + DEP < 16:
            rdm(j + DEP)
        d = MB + 8 * (j % 8)
        o = vE + 4 * (j % 4)
        a(f"s_waitcnt lgkmcnt({2 * min(DEP, 15 - j)})")
        for i in range(4):
            a(f"v_cvt_pk_bf16_f32 v{o + i}, v{d + 2 * i}, v{d + 2 * i + 1}")
        a(f"v_mfma_f32_32x32x16_bf16 {vr(vC + 16 * rho, 16)}, {vr(o, 4)}, {vr(vG + 4 * ks, 4)}, {vr(vC + 16 * rho, 16)}")
    NP = 13
    hx = {0: vAX, 2: vAT, 8: vNSC, 10: vOFF}
    rows = []
    for p in range(NP):
        rho, r = (2 * p) // 16, (2 * p) % 16
        rows.append(32 * rho + 8 * (r >> 2) + (r & 3))
    for p in range(NP):
        a(f"ds_read_b32 v{vX + p}, v{hx[rows[p] & 15]} offset:{rows[p] * 256}")
    a(f"""s_mov_b32 s{sT}, {f32(-LN2)}
s_mov_b32 s{sT + 1}, {f32(-LN2)}
s_mov_b32 s{sT + 2}, 0xffff0000
s_mov_b32 s{sT + 4}, 0
s_mov_b32 s{sT + 5}, 4096
s_mov_b32 s{sT + 6}, 8192
s_mov_b32 s{sT + 7}, 12288
""")
    for p0 in range(0, NP, 4):
        ps = list(range(p0, min(p0 + 4, NP)))
        for p in ps:
            a(f"v_permlane16_swap_b32 v{vC + 2 * p}, v{vC + 2 * p + 1}")
        for p in ps:
            for i in range(2):
                a(f"v_exp_f32 v{vD + 2 * p + i}, v{vC + 2 * p + i}")
        if p0 == 0:
            a("s_waitcnt lgkmcnt(0)")
        for p in ps:
            a(f"v_pk_add_f32 {vr(vD + 2 * p, 2)}, {vr(vD + 2 * p, 2)}, 1.0 op_sel_hi:[1,0]")
        for p in ps:
            for i in range(2):
                a(f"v_rcp_f32 v{vD + 2 * p + i}, v{vD + 2 * p + i}")
        for p in ps:
            a(f"v_lshlrev_b32 v{vACC + 2 * p}, 16, v{vX + p}")
            a(f"v_and_b32 v{vACC + 2 * p + 1}, s{sT + 2}, v{vX + p}")
        for p in ps:
            a(f"v_pk_mul_f32 {vr(vD + 2 * p, 2)}, {vr(vD + 2 * p, 2)}, {vr(vC + 2 * p, 2)}")
        for p in ps:
            a(f"v_pk_fma_f32 {vr(vD + 2 * p, 2)}, {vr(vD + 2 * p, 2)}, s[{sT}:{sT + 1}], {vr(vACC + 2 * p, 2)}")
        for p in ps:
            a(f"v_cvt_pk_bf16_f32 v{vX + p}, v{vD + 2 * p}, v{vD + 2 * p + 1}")
        for p in ps:
            o = rows[p] * 256
            a(f"buffer_store_dword v{vX + p}, v{vAS}, s[20:23], s{sT + 4 + o // 4096} offen offset:{o % 4096}")
    a("""K2_EXIT:
s_endpgm
""")
    a(f"""K2_POS:
s_cmp_eq_u32 s{sW}, 3
s_cbranch_scc1 K2_EXIT2
v_mul_u32_u24 v1, 171, v0
v_lshrrev_b32 v1, 9, v1
v_mul_u32_u24 v2, 3, v1
v_sub_u32 v2, v0, v2
v_mul_u32_u24 v3, {AST}, v1
v_lshl_add_u32 v3, v2, 7, v3
v_add_u32 v3, {ACC + 512}, v3
v_lshlrev_b32 v4, 4, v1
v_lshl_add_u32 v4, v2, 2, v4
v_add_u32 v4, {ROWA}, v4
""")
    for i in range(8):
        a(f"ds_read_b128 {vr(vD + 4 * i, 4)}, v3 offset:{16 * i}")
    a(f"""ds_read_b32 v4, v4
s_mul_i32 s{sT}, s2, {BN * 6}
s_sub_u32 s22, {N * 6}, s{sT}
s_min_u32 s22, s22, {BN * 6}
s_add_u32 s{sT}, s{sT}, {N * 256}
s_add_u32 s20, s20, s{sT}
s_addc_u32 s21, s21, 0
s_mov_b32 s23, {FMT}
v_lshlrev_b32 v5, 1, v0
v_cmp_gt_u32 vcc, s22, v5
s_add_u32 s22, s22, 2
s_waitcnt lgkmcnt(0)
""")
    w = 16
    while w >= 2:
        for i in range(0, w, 2):
            a(f"v_pk_add_f32 {vr(vD + i, 2)}, {vr(vD + i, 2)}, {vr(vD + w + i, 2)}")
        w //= 2
    a(f"""v_add_f32 v{vD}, v{vD}, v{vD + 1}
v_add_f32 v4, v4, v{vD}
v_cvt_pk_bf16_f32 v4, v4, v4
s_mov_b64 exec, vcc
buffer_store_short v4, v5, s[20:23], 0 offen
K2_EXIT2:
s_endpgm
""")
    a(f"""K2_MORE:
v_and_b32 v{vAS}, 0x1ff, v{vAS}
v_and_b32 v{vAX}, 0x010001ff, v{vAX}
v_and_b32 v{vAT}, 0x1e0, v{vAT}
v_mov_b32 v{vSEL}, 0
v_mov_b32 v{vSEL + 1}, 0
v_mov_b32 v{vSEL + 2}, 0
v_mov_b32 v{vSEL + 3}, 0
s_mul_i32 s{sT}, s{sW}, 1280
v_lshlrev_b32 v2, 4, v{vL}
v_add_u32 v2, s{sT}, v2
v_add_u32 v3, s{sT}, v{vL4}
v_add_u32 v1, {CNT}, v{vL4}
ds_write_b128 v2, {vr(vSEL, 4)}
ds_write_b32 v3, v{vSEL} offset:1024
ds_write_b32 v1, v{vSEL}
s_waitcnt vmcnt(0) lgkmcnt(0)
s_barrier
s_branch K2_BATCH
""")
    for par in range(2):
        a(f"""K2_EVT{par}:
s_cmp_lg_u32 s{sFL}, s{sCUR}
s_cbranch_scc1 K2_EVA{par}
""")
        flush(sPOLD, True)
        a(f"""s_mov_b32 s{sFL}, -1
K2_EVA{par}:
s_sub_u32 s{sEVT}, s{sSW}, 1
s_cmp_lg_u32 s{sEVT}, s{sCUR}
s_cbranch_scc1 K2_RET{par}
s_mov_b32 s{sPOLD}, s{sP0}
s_mov_b32 s{sFL}, s{sSW}
s_mov_b32 s{sEVT}, s{sSW}
""")
        window(sFL)
        load_y()
        a(f"""s_waitcnt lgkmcnt(0)
s_branch K2_RET{par}
""")


def kd(name, vgpr, sgpr=96):
    return f""".amdhsa_kernel {name}
  .amdhsa_next_free_vgpr {vgpr}
  .amdhsa_next_free_sgpr {sgpr}
  .amdhsa_accum_offset {(vgpr + 3) // 4 * 4}
  .amdhsa_group_segment_fixed_size 0
  .amdhsa_kernarg_size 88
  .amdhsa_user_sgpr_count 2
  .amdhsa_user_sgpr_kernarg_segment_ptr 1
  .amdhsa_system_sgpr_workgroup_id_x 1
.end_amdhsa_kernel
"""


def build(opt=None, verbose=False):
    opt = opt or {}
    ref = open(f"cdna_kernels/{NAME}.s.ref").read().split("\n")
    head = [l for l in ref if l.startswith(";") and "@launch" not in l and "Override" not in l and "grid=ceil" not in l]
    e = ref.index('.amdgcn_target "amdgcn-amd-amdhsa--gfx950"')
    head = [l for l in ref[:e] if "@launch" not in l and "Override" not in l and "grid=ceil" not in l]
    head.append(f"; @launch kernel=k1_kernel grid=({NB + NCH},1,1) block=(512,1,1) lds={K1_LDS}")
    head.append(f"; @launch kernel={NAME}_kernel grid=({NB},1,1) block=(512,1,1) lds={K2_LDS}")
    a1, a2 = Asm(), Asm()
    gen_k1(a1, opt)
    gen_k2(a2, opt)
    n1 = a1.fix_hazards(verbose)
    n2 = a2.fix_hazards(verbose)
    s = "\n".join(head) + '\n.amdgcn_target "amdgcn-amd-amdhsa--gfx950"\n.text\n'
    s += a1.text() + a2.text()
    s += '.section .rodata,"a"\n.p2align 6\n' + kd("k1_kernel", 104) + ".p2align 6\n" + kd(NAME + "_kernel", 256)
    return s


if __name__ == "__main__":
    out = sys.argv[1] if len(sys.argv) > 1 else f"cdna_kernels/{NAME}.s"
    open(out, "w").write(build(verbose=True))
    print("written", out)
```

```python
import sys, struct, math
sys.path.insert(0, "work")
from asmlib import Asm, vr, sr

NAME = "standalone__cheap_equivariant_egnn__graph"
N, E = 12500, 400000
NB, BN = 256, 49
CH, NCH, CS = 1564, 256, 1568
WF_OFF = NCH * CS * 8
CON_OFF = WF_OFF + 98304
TAB_OFF = CON_OFF + 1024
WS1_SIZE = TAB_OFF + NCH * 1024
BP_OFF = 4 << 20
DBG_OFF = 16 << 20
FMT = 0x00020000


def f32(x):
    return struct.unpack("<I", struct.pack("<f", x))[0]


LOG2E = 1.4426950408889634
LN2 = 0.6931471805599453
KAPPA = 2.0 ** -31
DELTA = 2.0 ** -8 * 0.70
K1_LDS = 49152

RB = 256
ROWB = 0
CNT = 256
HEAD = 512
ROWA = 1024
SEL2 = 2048
PS = 3072
CONL = 4096
CREC = 5120
TARR = CREC + 18432
HST = TARR + 18432
YTAB = HST + 14336
POS = YTAB + 14336
ROWS = POS
RST = 784
K2_LDS = POS + 74 * 1024


def scan_add(a, v, n64=True, op="v_add_u32"):
    for sh in (1, 2, 4, 8):
        for r in v:
            a(f"{op}_dpp v{r}, v{r}, v{r} row_shr:{sh} row_mask:0xf bank_mask:0xf bound_ctrl:1")
    for r in v:
        a(f"{op}_dpp v{r}, v{r}, v{r} row_bcast:15 row_mask:0xa bank_mask:0xf")
    if n64:
        for r in v:
            a(f"{op}_dpp v{r}, v{r}, v{r} row_bcast:31 row_mask:0xc bank_mask:0xf")


def gen_k1(a, opt):
    a(f""".globl k1_kernel
.p2align 8
.type k1_kernel,@function
k1_kernel:
s_load_dwordx2 s[4:5], s[0:1], 32
s_load_dwordx2 s[8:9], s[0:1], 24
s_load_dwordx2 s[12:13], s[0:1], 16
s_load_dwordx2 s[16:17], s[0:1], 80
s_load_dwordx2 s[20:21], s[0:1], 0
s_load_dwordx2 s[24:25], s[0:1], 40
s_load_dwordx2 s[28:29], s[0:1], 56
s_cmp_ge_u32 s2, {NB + NCH}
s_cbranch_scc1 K1_EXIT
v_lshrrev_b32 v1, 6, v0
v_and_b32 v2, 63, v0
s_mov_b32 s18, {WS1_SIZE}
s_mov_b32 s19, {FMT}
v_readfirstlane_b32 s3, v1
s_cmp_lt_u32 s2, {NB}
s_cbranch_scc1 K1_GEMM
""")
    DST, SRC, EA, AD, RK, HI, T0 = 4, 8, 12, 16, 20, 24, 28
    a(f"""; sort role: one chunk of {CH} edges is grouped by destination bin
s_sub_u32 s40, s2, {NB}
s_mov_b32 s6, {E * 4}
s_mov_b32 s7, {FMT}
s_mov_b32 s10, {E * 4}
s_mov_b32 s11, {FMT}
s_mov_b32 s14, {E * 2}
s_mov_b32 s15, {FMT}
s_mul_i32 s41, s40, {CH * 4}
s_mul_i32 s42, s40, {CH * 2}
v_lshlrev_b32 v3, 4, v0
v_lshlrev_b32 v14, 3, v0
v_lshlrev_b32 v15, 2, v0
v_mov_b32 v40, 0
s_mov_b32 s43, {CH // 4}
s_cmp_eq_u32 s40, {NCH - 1}
s_cselect_b32 s43, {(E - (NCH - 1) * CH) // 4}, s43
v_cmp_gt_u32 vcc, s43, v0
ds_write_b32 v15, v40
s_mov_b64 s[44:45], vcc
s_waitcnt lgkmcnt(0)
s_mov_b64 exec, s[44:45]
buffer_load_dwordx4 {vr(DST, 4)}, v3, s[4:7], s41 offen
buffer_load_dwordx2 {vr(EA, 2)}, v14, s[12:15], s42 offen
buffer_load_dwordx4 {vr(SRC, 4)}, v3, s[8:11], s41 offen
s_mov_b32 s46, -49
s_mov_b32 s47, 0xff100000
s_mov_b32 s54, 0x01000000
s_mov_b32 s48, {f32(-LOG2E)}
s_mov_b32 s49, {f32(-LOG2E)}
s_mov_b32 s50, 0xffff0000
s_mul_i32 s51, s40, {CS * 8}
s_lshl_b32 s52, s40, 10
s_add_u32 s52, s52, {TAB_OFF}
s_add_u32 s53, s51, 8192
v_mov_b32 v41, 1
s_barrier
s_waitcnt vmcnt(2)
""")
    for i in range(4):
        a(f"v_mul_u32_u24 v{T0 + i}, 21400, v{DST + i}")
    for i in range(4):
        a(f"v_lshrrev_b32 v{T0 + i}, 20, v{T0 + i}")
    for i in range(4):
        a(f"v_lshlrev_b32 v{AD + i}, 2, v{T0 + i}")
    for i in range(4):
        a(f"ds_add_rtn_u32 v{RK + i}, v{AD + i}, v41")
    for i in range(4):
        a(f"v_mad_i32_i24 v{DST + i}, v{T0 + i}, s46, v{DST + i}")
    for i in range(4):
        a(f"v_mul_u32_u24 v{T0 + i}, 43, v{DST + i}")
    for i in range(4):
        a(f"v_lshrrev_b32 v{T0 + i}, 8, v{T0 + i}")
    for i in range(4):
        a(f"v_lshlrev_b32 v{HI + i}, 2, v{DST + i}")
    for i in range(4):
        a(f"v_mad_i32_i24 v{DST + i}, v{T0 + i}, -6, v{DST + i}")
    a("s_waitcnt vmcnt(1)")
    for j in range(2):
        a(f"v_lshlrev_b32 v{T0 + 2 * j}, 16, v{EA + j}")
        a(f"v_and_b32 v{T0 + 2 * j + 1}, s50, v{EA + j}")
    for j in range(2):
        a(f"v_pk_mul_f32 {vr(T0 + 2 * j, 2)}, {vr(T0 + 2 * j, 2)}, s[48:49]")
    for j in range(2):
        a(f"v_cvt_pk_bf16_f32 v{EA + j}, v{T0 + 2 * j}, v{T0 + 2 * j + 1}")
    for j in range(2):
        a(f"v_lshl_or_b32 v{HI + 2 * j}, v{EA + j}, 16, v{HI + 2 * j}")
        a(f"v_and_or_b32 v{HI + 2 * j + 1}, v{EA + j}, s50, v{HI + 2 * j + 1}")
    for i in range(4):
        a(f"v_lshlrev_b32 v{T0 + i}, v{DST + i}, s54")
    a("s_waitcnt vmcnt(0)")
    for i in range(4):
        a(f"v_lshl_add_u32 v{SRC + i}, v{DST + i}, 20, v{SRC + i}")
    for i in range(4):
        a(f"v_xad_u32 v{SRC + i}, v{T0 + i}, s47, v{SRC + i}")
    C0, O0 = 32, 36
    a(f"""s_mov_b64 exec, -1
v_lshlrev_b32 v42, 4, v2
s_waitcnt lgkmcnt(0)
s_barrier
ds_read_b128 {vr(C0, 4)}, v42
s_waitcnt lgkmcnt(0)
v_add_u32 v43, v{C0}, v{C0 + 1}
v_add3_u32 v43, v43, v{C0 + 2}, v{C0 + 3}
v_mov_b32 v44, v43
""")
    scan_add(a, [44])
    a(f"""v_sub_u32 v{O0}, v44, v43
v_add_u32 v{O0 + 1}, v{O0}, v{C0}
v_add_u32 v{O0 + 2}, v{O0 + 1}, v{C0 + 1}
v_add_u32 v{O0 + 3}, v{O0 + 2}, v{C0 + 2}
ds_write_b128 v42, {vr(O0, 4)} offset:1024
s_cmp_lg_u32 s3, 7
s_cbranch_scc1 K1_NOTAB
""")
    for i in range(4):
        a(f"v_lshl_or_b32 v{C0 + i}, v{C0 + i}, 16, v{O0 + i}")
    a(f"""buffer_store_dwordx4 {vr(C0, 4)}, v42, s[16:19], s52 offen
s_branch K1_SCAT_DONE
K1_NOTAB:
s_mov_b64 exec, s[44:45]
""")
    for i in range(4):
        a(f"ds_read_b32 v{AD + i}, v{AD + i} offset:1024")
    for i in range(4):
        a(f"s_waitcnt lgkmcnt({3 - i})")
        a(f"v_add_lshl_u32 v{AD + i}, v{AD + i}, v{RK + i}, 3")
    for i in range(4):
        a(f"v_add_u32 v{AD + i}, 2048, v{AD + i}")
        a(f"ds_write2_b32 v{AD + i}, v{SRC + i}, v{HI + i} offset0:0 offset1:1")
    a(f"""s_mov_b64 exec, -1
K1_SCAT_DONE:
v_cmp_gt_u32 vcc, {(CH * 8 - 8192) // 16}, v0
s_waitcnt lgkmcnt(0)
s_barrier
ds_read_b128 v[4:7], v3 offset:2048
ds_read_b128 v[8:11], v3 offset:{2048 + 8192}
s_waitcnt lgkmcnt(1)
buffer_store_dwordx4 v[4:7], v3, s[16:19], s51 offen
s_mov_b64 exec, vcc
s_waitcnt lgkmcnt(0)
buffer_store_dwordx4 v[8:11], v3, s[16:19], s53 offen
K1_EXIT:
s_endpgm
""")
    a(f"""K1_GEMM:
s_mul_i32 s40, s2, {BN * 256}
s_sub_u32 s22, {N * 256}, s40
s_min_u32 s22, s22, {BN * 256}
s_mov_b32 s23, {FMT}
s_mov_b32 s26, {258 * 256}
s_mov_b32 s27, {FMT}
v_lshrrev_b32 v3, 4, v2
v_and_b32 v4, 15, v2
v_lshlrev_b32 v5, 1, v3
v_xor_b32 v5, v5, v4
v_lshlrev_b32 v5, 4, v5
v_lshl_or_b32 v5, v3, 8, v5
v_xor_b32 v6, 128, v5
s_and_b32 s41, s3, 3
s_lshl_b32 s41, s41, 2
v_or_b32 v7, s41, v3
v_xor_b32 v7, v7, v4
v_lshlrev_b32 v7, 4, v7
v_lshl_or_b32 v7, v3, 8, v7
s_lshl_b32 s42, s3, 12
s_add_u32 s43, s42, 32768
s_lshl_b32 s44, s3, 10
s_add_u32 s45, s44, 8192
s_mov_b32 m0, s42
s_waitcnt lgkmcnt(0)
s_add_u32 s20, s20, s40
s_addc_u32 s21, s21, 0
buffer_load_dwordx4 v5, s[24:27], s43 offen lds
buffer_load_dwordx4 v5, s[24:27], s43 offen offset:1024 lds
buffer_load_dwordx4 v6, s[24:27], s43 offen offset:2048 lds
buffer_load_dwordx4 v6, s[24:27], s43 offen offset:3072 lds
s_add_u32 m0, s44, 32768
buffer_load_dwordx4 v7, s[20:23], s44 offen lds
s_add_u32 m0, s45, 32768
buffer_load_dwordx4 v7, s[20:23], s45 offen lds
s_cmp_ge_u32 s3, 4
s_cbranch_scc1 K1_REPACK
""")
    TA, HA, AF, BF, AC = 8, 16, 20, 36, 68
    a(f"""v_bfe_u32 v5, v2, 2, 2
v_and_b32 v6, 1, v3
v_lshl_or_b32 v6, v6, 2, v5
v_lshl_or_b32 v5, v3, 3, v5
v_lshlrev_b32 v5, 8, v5
v_lshl_or_b32 v5, v6, 5, v5
v_and_b32 v6, 3, v2
v_lshl_or_b32 v{TA}, v6, 3, v5
""")
    for t in range(1, 8):
        a(f"v_xor_b32 v{TA + t}, {t << 5}, v{TA}")
    a(f"""v_xor_b32 v5, v3, v4
v_lshlrev_b32 v5, 4, v5
v_lshl_or_b32 v5, v4, 8, v5
v_add_u32 v{HA}, s42, v5
""")
    for ks in range(1, 4):
        a(f"v_xor_b32 v{HA + ks}, {ks << 6}, v{HA}")
    a(f"""s_add_u32 s36, s16, {BP_OFF}
s_addc_u32 s37, s17, 0
s_add_u32 s36, s36, s40
s_addc_u32 s37, s37, 0
s_mov_b32 s38, {BN * 256}
s_mov_b32 s39, {FMT}
s_mov_b32 s48, {f32(-LOG2E)}
s_mov_b32 s49, {f32(-LOG2E)}
v_lshlrev_b32 v5, 10, v3
v_lshl_or_b32 v5, v4, 4, v5
s_waitcnt vmcnt(0)
s_barrier
""")
    for ks in range(4):
        a(f"ds_read_b128 {vr(AF + 4 * ks, 4)}, v{HA + ks} offset:32768")
    DEPTH = 4
    jobs = [(ks, t) for ks in range(4) for t in range(8)]

    def rd(j):
        ks, t = jobs[j]
        d = BF + 4 * (j % 8)
        a(f"ds_read_b64_tr_b16 {vr(d, 2)}, v{TA + t} offset:{ks * 8192}")
        a(f"ds_read_b64_tr_b16 {vr(d + 2, 2)}, v{TA + t} offset:{ks * 8192 + 1024}")
    for j in range(DEPTH):
        rd(j)
    for j, (ks, t) in enumerate(jobs):
        if j + DEPTH < 32:
            rd(j + DEPTH)
        left = min(DEPTH, 31 - j)
        a(f"s_waitcnt lgkmcnt({2 * left})")
        c = "0" if ks == 0 else vr(AC + 4 * t, 4)
        a(f"v_mfma_f32_16x16x32_bf16 {vr(AC + 4 * t, 4)}, {vr(AF + 4 * ks, 4)}, {vr(BF + 4 * (j % 8), 4)}, {c}")
    for t in range(8):
        for hh in range(2):
            a(f"v_pk_mul_f32 {vr(AC + 4 * t + 2 * hh, 2)}, {vr(AC + 4 * t + 2 * hh, 2)}, s[48:49]")
    for r in range(4):
        for u in range(4):
            a(f"v_cvt_pk_bf16_f32 v{BF + 4 * r + u}, v{AC + 8 * u + r}, v{AC + 8 * u + 4 + r}")
        a(f"buffer_store_dwordx4 {vr(BF + 4 * r, 4)}, v5, s[36:39], s42 offen offset:{256 * r}")
    a("s_endpgm")
    a(f"""K1_REPACK:
s_mov_b32 s30, 65536
s_mov_b32 s31, {FMT}
s_cmp_eq_u32 s3, 7
s_cbranch_scc1 K1_CONST
s_mul_i32 s46, s2, 3
s_add_u32 s46, s46, s3
s_sub_u32 s46, s46, 4
s_bfe_u32 s47, s46, 0x20006
s_bfe_u32 s48, s46, 0x30003
s_bfe_u32 s49, s46, 0x10002
s_bfe_u32 s50, s46, 0x10001
s_and_b32 s51, s46, 1
v_and_b32 v3, 7, v2
v_lshrrev_b32 v4, 3, v2
s_lshl_b32 s52, s48, 1
s_add_u32 s52, s52, s49
s_lshl_b32 s52, s52, 10
s_lshl_b32 s55, s46, 7
s_add_u32 s55, s55, {WF_OFF}
v_lshlrev_b32 v7, 1, v2
s_cmp_ge_u32 s46, 256
s_cbranch_scc1 K1_RP_H
s_lshr_b32 s53, s47, 1
s_lshl_b32 s53, s53, 3
s_and_b32 s54, s47, 1
s_add_u32 s53, s53, s54
s_lshl_b32 s54, s50, 2
s_add_u32 s53, s53, s54
s_lshl_b32 s54, s51, 1
s_add_u32 s53, s53, s54
s_add_u32 s52, s52, s53
s_lshl_b32 s52, s52, 1
v_lshlrev_b32 v5, 8, v3
v_lshl_or_b32 v5, v4, 5, v5
buffer_load_ushort v6, v5, s[24:27], s52 offen
s_branch K1_RP_ST
K1_RP_H:
s_lshl_b32 s53, s47, 5
s_lshl_b32 s54, s51, 4
s_add_u32 s53, s53, s54
s_add_u32 s53, s53, s50
v_lshlrev_b32 v5, 8, v3
s_cmp_ge_u32 s46, 512
s_cbranch_scc0 K1_RP_H1
s_lshr_b32 s52, s48, 2
s_lshl_b32 s52, s52, 2
s_and_b32 s54, s48, 1
s_lshl_b32 s54, s54, 6
s_add_u32 s52, s52, s54
s_lshl_b32 s54, s49, 5
s_add_u32 s52, s52, s54
s_and_b32 s54, s48, 2
s_add_u32 s52, s52, s54
s_add_u32 s52, s52, 128
s_lshl_b32 s52, s52, 7
v_lshrrev_b32 v5, 1, v3
v_lshlrev_b32 v5, 11, v5
v_and_b32 v6, 1, v3
v_lshl_or_b32 v5, v6, 8, v5
K1_RP_H1:
s_add_u32 s52, s52, s53
s_lshl_b32 s52, s52, 1
v_lshl_or_b32 v5, v4, 2, v5
buffer_load_ushort v6, v5, s[28:31], s52 offen
K1_RP_ST:
s_waitcnt vmcnt(0)
s_barrier
buffer_store_short v6, v7, s[16:19], s55 offen
s_endpgm
K1_CONST:
s_load_dwordx2 s[32:33], s[0:1], 48
s_waitcnt vmcnt(0) lgkmcnt(0)
s_barrier
s_cmp_lg_u32 s2, 0
s_cbranch_scc1 K1_EXIT2
s_mov_b32 s34, 256
s_mov_b32 s35, {FMT}
s_mov_b32 s46, 65536
s_mov_b32 s47, {CON_OFF}
v_and_b32 v3, 7, v2
v_lshlrev_b32 v3, 5, v3
v_bfe_u32 v4, v2, 4, 1
v_lshl_or_b32 v3, v4, 3, v3
v_bfe_u32 v4, v2, 3, 1
v_lshl_or_b32 v3, v4, 2, v3
v_lshrrev_b32 v4, 5, v2
v_lshl_or_b32 v4, v4, 1, v3
buffer_load_ushort v8, v4, s[24:27], s46 offen
buffer_load_ushort v9, v4, s[24:27], s46 offen offset:16
buffer_load_ushort v10, v4, s[24:27], s46 offen offset:256
buffer_load_ushort v11, v4, s[24:27], s46 offen offset:272
buffer_load_ushort v12, v3, s[32:35], 0 offen
buffer_load_ushort v13, v3, s[32:35], 0 offen offset:2
buffer_load_ushort v14, v3, s[32:35], 0 offen offset:16
buffer_load_ushort v15, v3, s[32:35], 0 offen offset:18
v_lshlrev_b32 v5, 3, v2
v_and_b32 v6, 31, v2
v_lshlrev_b32 v6, 4, v6
s_waitcnt vmcnt(0)
v_lshl_or_b32 v8, v10, 16, v8
v_lshl_or_b32 v9, v11, 16, v9
""")
    for i in range(4):
        a(f"v_lshlrev_b32 v{12 + i}, 16, v{12 + i}")
        a(f"v_mul_f32 v{12 + i}, {f32(-LN2 * KAPPA)}, v{12 + i}")
    a(f"""buffer_store_dwordx2 v[8:9], v5, s[16:19], s47 offen
buffer_store_dwordx4 v[12:15], v6, s[16:19], s47 offen offset:512
K1_EXIT2:
s_endpgm
""")


vACC, vC, vD, vG, vE, vM = 192, 160, 128, 96, 80, 64
vP, vX, vY, vI, vSEL, vWX = 56, 48, 40, 32, 28, 24
vQ = 20
vT, vSRC = 18, 16
vAX, vAS, vAT, vK, vOFF, vL4, vIDX, vLR, vFA = 15, 14, 13, 12, 11, 10, 9, 8, 7
vL = 6


def gen_k2(a, opt):
    sW = 3
    sKP = 24
    sEX = 26
    sMORE, sMODE, sTOT, sBASE, sPR, sRO = 34, 35, 36, 37, 38, 39
    sCUR, sEND, sEVT, sSW, sFL, sP0, sPF, sRES = 40, 41, 42, 43, 44, 45, 46, 47
    sT = 48
    sLF, sC, sNL = 63, 64, 65
    diag = opt.get("diag")
    vCP, vCD = vT, vT + 1
    vPD = vQ

    def stamp(i):
        if diag:
            a(f"""s_memtime s[66:67]
s_waitcnt lgkmcnt(0)
s_mov_b32 s{70 + i}, s66
""")

    def dump():
        if not diag:
            return
        stamp(15)
        a(f"""s_memrealtime s[66:67]
s_waitcnt lgkmcnt(0)
s_mov_b32 s87, s66
s_mov_b64 exec, -1
s_add_u32 s88, s12, {DBG_OFF}
s_addc_u32 s89, s13, 0
s_mov_b32 s90, {1 << 20}
s_mov_b32 s91, {FMT}
s_lshl_b32 s66, s2, 3
s_add_u32 s66, s66, s{sW}
s_lshl_b32 s66, s66, 7
v_mov_b32 v1, 0
""")
        for i in range(18):
            a(f"v_writelane_b32 v1, s{70 + i}, {i}")
        a(f"""v_lshlrev_b32 v2, 2, v{vL}
s_mov_b64 exec, 0x3ffff
buffer_store_dword v1, v2, s[88:91], s66 offen
""")

    def hop1_addr():
        a(f"""v_lshlrev_b32 v1, 10, v{vL}
s_lshl_b32 s{sT}, s{sW}, 15
s_lshl_b32 s{sT + 1}, s2, 2
s_add_u32 s{sT}, s{sT}, s{sT + 1}
s_add_u32 s{sT}, s{sT}, {TAB_OFF}
""")

    def hop1():
        a(f"""s_mov_b32 exec_hi, 0
buffer_load_dword v{vCP}, v1, s[12:15], s{sT} offen
s_mov_b32 exec_hi, -1
""")

    def zero_acc(z):
        for cb in range(4):
            a(f"v_mfma_f32_32x32x16_bf16 {vr(vACC + 16 * cb, 16)}, {vr(z, 4)}, {vr(z, 4)}, 0")

    def pos_dma(j):
        out = []
        if j % 4 == 0:
            out.append(f"s_add_u32 s{sT + 13}, s{sT + 12}, {1024 * j}")
            out.append(f"s_add_u32 m0, s{sT + 13}, {POS}")
        out.append(f"buffer_load_dwordx4 v5, s[8:11], s{sT + 13} offen offset:{1024 * (j % 4)} lds")
        return "\n".join(out)

    def pos_extra(tag):
        a(f"""s_cmp_ge_u32 s{sW}, 2
s_cbranch_scc1 K2_NOEXTRA{tag}
s_lshl_b32 s{sT + 13}, s{sW}, 10
s_add_u32 s{sT + 13}, s{sT + 13}, {72 * 1024}
s_add_u32 m0, s{sT + 13}, {POS}
buffer_load_dwordx4 v5, s[8:11], s{sT + 13} offen lds
K2_NOEXTRA{tag}:
""")

    a(f""".globl {NAME}_kernel
.p2align 8
.type {NAME}_kernel,@function
{NAME}_kernel:
{"s_memrealtime s[86:87]" if diag else ""}
{"s_memtime s[70:71]" if diag else ""}
s_load_dwordx2 s[12:13], s[0:1], 80
s_load_dwordx2 s[4:5], s[0:1], 0
s_load_dwordx2 s[8:9], s[0:1], 8
s_load_dwordx2 s[20:21], s[0:1], 64
s_setprio 3
s_cmp_ge_u32 s2, {NB}
s_cbranch_scc1 K2_EXIT
v_lshrrev_b32 v1, 6, v0
v_and_b32 v{vL}, 63, v0
s_mov_b32 s14, {WS1_SIZE}
s_mov_b32 s15, {FMT}
v_readfirstlane_b32 s{sW}, v1
""")
    hop1_addr()
    a(f"""s_mul_i32 s{sT + 2}, s2, {BN * 256}
s_sub_u32 s6, {N * 256}, s{sT + 2}
s_min_u32 s6, s6, {BN * 256}
s_mov_b32 s7, {FMT}
v_lshrrev_b32 v3, 4, v{vL}
v_and_b32 v4, 15, v{vL}
s_and_b32 s{sT + 3}, s{sW}, 3
s_lshl_b32 s{sT + 3}, s{sT + 3}, 2
v_or_b32 v2, s{sT + 3}, v3
v_xor_b32 v2, v2, v4
v_lshlrev_b32 v2, 4, v2
v_lshl_or_b32 v2, v3, 8, v2
s_lshl_b32 s{sT + 4}, s{sW}, 10
s_add_u32 s{sT + 5}, s{sT + 4}, 8192
s_lshl_b32 s{sT + 6}, s{sW}, 13
s_add_u32 s{sT + 6}, s{sT + 6}, {WF_OFF}
s_add_u32 s{sT + 7}, s{sT + 6}, 4096
v_lshlrev_b32 v5, 4, v{vL}
s_mov_b32 s10, {N * 6 + 8}
s_mov_b32 s11, {FMT}
s_add_u32 m0, s{sT + 4}, {HST}
s_waitcnt lgkmcnt(0)
""")
    hop1()
    a(f"""s_setprio 0
s_add_u32 s4, s4, s{sT + 2}
s_addc_u32 s5, s5, 0
buffer_load_dwordx4 v2, s[4:7], s{sT + 4} offen lds
s_cmp_ge_u32 s{sW}, 6
s_cbranch_scc1 K2_JOB67
s_add_u32 m0, s{sT + 5}, {HST}
buffer_load_dwordx4 v2, s[4:7], s{sT + 5} offen lds
K2_JOBRET:
""")
    for ks in range(8):
        a(f"buffer_load_dwordx4 {vr(vG + 4 * ks, 4)}, v5, s[12:15], s{sT + 6 + ks // 4} offen offset:{1024 * (ks % 4)}")
    a(f"""s_add_u32 s16, s12, {BP_OFF}
s_addc_u32 s17, s13, 0
s_or_b32 s17, s17, {256 << 16}
s_mov_b32 s18, {N}
s_mov_b32 s19, {FMT}
s_mov_b32 s{sKP}, {f32(KAPPA / (1 + DELTA))}
s_mov_b32 s{sKP + 1}, {f32(KAPPA / (1 + DELTA))}
s_mov_b32 s{sBASE}, 0
s_mul_i32 s{sRO}, s{sW}, {32 * CS * 8}
s_mov_b32 s{sC}, 256
v_mov_b64 {vr(vSEL, 2)}, 0
v_mov_b64 {vr(vSEL + 2, 2)}, 0
v_add_u32 v1, s{sT + 4}, v5
v_lshlrev_b32 v{vL4}, 2, v{vL}
ds_write_b128 v1, {vr(vSEL, 4)} offset:{TARR}
""")
    zero_acc(vSEL)
    a(f"""v_lshrrev_b32 v1, 5, v{vL}
v_bfe_u32 v2, v{vL}, 1, 1
v_lshlrev_b32 v{vSRC + 1}, 5, v1
v_lshl_or_b32 v{vSRC + 1}, v2, 4, v{vSRC + 1}
v_bfe_u32 v3, v{vL}, 2, 3
v_and_b32 v4, 1, v{vL}
v_lshl_or_b32 v3, v3, 1, v4
v_lshlrev_b32 v{vAS}, 3, v3
v_xor_b32 v2, v2, v1
v_lshl_or_b32 v{vAX}, v2, 24, v{vAS}
v_bfe_u32 v2, v{vL}, 3, 1
v_bfe_u32 v3, v{vL}, 2, 1
v_lshl_or_b32 v3, v2, 2, v3
v_lshl_or_b32 v3, v1, 3, v3
v_lshlrev_b32 v{vAT}, 3, v3
v_bfe_u32 v2, v{vL}, 4, 1
v_and_b32 v3, 3, v{vL}
v_lshl_or_b32 v3, v2, 2, v3
v_add_u32 v3, 24, v3
v_lshlrev_b32 v{vK}, v3, 1
v_mov_b32 v{vIDX}, 0xdddddddd
v_and_b32 v2, 31, v{vL}
v_mul_u32_u24 v3, {RST}, v1
v_lshl_add_u32 v3, v2, 3, v3
v_add_u32 v{vLR}, {ROWS}, v3
v_lshlrev_b32 v3, 3, v1
v_sub_u32 v2, v2, v3
v_lshlrev_b32 v4, 4, v2
v_mov_b32 v0, 0x3f80
v_lshlrev_b32 v4, v4, v0
v_ashrrev_i32 v2, 1, v2
""")
    for u in range(2):
        for q in range(4):
            a(f"v_cmp_eq_u32 s[{sT + 2 * q}:{sT + 2 * q + 1}], {8 * u + q}, v2")
        for q in range(4):
            a(f"v_cndmask_b32 v{vI + 4 * u + q}, 0, v4, s[{sT + 2 * q}:{sT + 2 * q + 1}]")
    for i in range(0, 16, 2):
        a(f"v_mov_b64 {vr(vM + i, 2)}, 0")
    a(f"""v_and_b32 v3, 31, v{vL}
v_and_b32 v4, 15, v{vL}
v_xor_b32 v2, v1, v4
v_lshlrev_b32 v2, 4, v2
v_lshl_or_b32 v{vP}, v3, 8, v2
""")
    for ks in range(1, 8):
        a(f"v_xor_b32 v{vP + ks}, {ks << 5}, v{vP}")
    a(f"""s_cmp_eq_u32 s{sW}, 1
s_cbranch_scc0 K2_NOSEL2
ds_write_b128 v5, {vr(vSEL, 4)} offset:{SEL2}
K2_NOSEL2:
s_cmp_eq_u32 s{sW}, 0
s_cbranch_scc0 K2_NOROWB
v_add_u32 v1, -1, v{vL}
v_lshlrev_b32 v4, 4, v1
v_lshlrev_b32 v4, v4, v0
v_ashrrev_i32 v2, 1, v1
v_mov_b32 v{vE}, 0
""")
    for q in range(3):
        a(f"v_cmp_eq_u32 s[{sT + 2 * q}:{sT + 2 * q + 1}], {q}, v2")
    for q in range(3):
        a(f"v_cndmask_b32 v{vE + 1 + q}, 0, v4, s[{sT + 2 * q}:{sT + 2 * q + 1}]")
    a(f"""ds_write_b128 v5, {vr(vE, 4)} offset:{ROWB}
K2_NOROWB:
""")
    stamp(1)
    a("s_waitcnt vmcnt(10)")
    stamp(2)
    MK = vX
    RQ = vE
    RK = vE + 8
    AD = vE + 12
    a(f"""K2_BATCH:
s_mov_b32 exec_hi, 0
v_lshrrev_b32 v1, 16, v{vCP}
v_and_b32 v{vCD}, 0xffff, v{vCP}
v_mov_b32 v2, v1
s_mov_b32 s{sT}, {CS}
v_mad_u32_u24 v{vCD}, v{vL}, s{sT}, v{vCD}
s_lshl_b32 s{sT}, s{sW}, 10
s_mul_i32 s{sT + 12}, s{sW}, {9 * 1024}
""")
    scan_add(a, [2], n64=False)
    a(f"""v_sub_u32 v1, v2, v1
v_readlane_b32 s{sTOT}, v2, 31
v_sub_u32 v{vCD}, v{vCD}, v1
v_sub_u32_e64 v1, v1, s{sBASE} clamp
v_cmpx_gt_u32 vcc, {RB}, v1
v_lshl_add_u32 v1, v1, 2, s{sT}
ds_max_u32 v1, v{vCD} offset:{TARR}
s_mov_b64 exec, -1
v_add_u32 v1, s{sT}, v{vL4}
""")
    for k in range(4):
        a(f"ds_read_b32 v{MK + k}, v1 offset:{TARR + 256 * k}")
    a(f"s_sub_i32 s{sT + 1}, s{sTOT}, s{sBASE}")
    for k in range(4):
        a(f"v_cmp_gt_i32 s[{sEX + 2 * k}:{sEX + 2 * k + 1}], s{sT + 1}, v{vL}")
        if k < 3:
            a(f"s_sub_i32 s{sT + 1}, s{sT + 1}, 64")
    a(f"""s_lshl_b32 s{sT + 2}, s{sBASE}, 3
s_add_u32 s{sT + 2}, s{sT + 2}, s{sRO}
s_waitcnt lgkmcnt(0)
""")
    scan_add(a, [MK + k for k in range(4)], op="v_max_u32")
    for k in range(3):
        a(f"v_readlane_b32 s{sT + 4 + k}, v{MK + k}, 63")
    a(f"v_add_lshl_u32 v{MK}, v{MK}, v{vL}, 3")
    a(f"buffer_load_dwordx2 {vr(RQ, 2)}, v{MK}, s[12:15], s{sT + 2} offen")
    for k in range(1, 3):
        a(f"s_max_u32 s{sT + 4 + k}, s{sT + 4 + k}, s{sT + 3 + k}")
    for k in range(1, 4):
        a(f"v_max_u32 v{MK + k}, s{sT + 3 + k}, v{MK + k}")
        a(f"v_add_lshl_u32 v{MK + k}, v{MK + k}, v{vL}, 3")
        a(f"buffer_load_dwordx2 {vr(RQ + 2 * k, 2)}, v{MK + k}, s[12:15], s{sT + 2} offen offset:{512 * k}")
    stamp(3)
    a(f"""s_cmp_lg_u32 s{sBASE}, 0
s_cbranch_scc1 K2_SKIPGEMM
""")
    for j in range(3):
        a(pos_dma(j))
    a(f"""s_waitcnt vmcnt(15) lgkmcnt(0)
s_barrier
""")
    stamp(4)
    jobs = [(ks, rho) for ks in range(8) for rho in range(2)]
    DEP = 7

    def rdh(j):
        ks, rho = jobs[j]
        a(f"ds_read_b128 {vr(vD + 4 * (j % 8), 4)}, v{vP + ks} offset:{HST + 8192 * rho}")
    a(f"""v_lshlrev_b32 v1, 1, v{vL4}
v_and_b32 v2, 496, v5
ds_read_b32 v{vY}, v1 offset:{CONL}
ds_read_b32 v{vY + 4}, v1 offset:{CONL + 4}
ds_read_b128 {vr(vWX, 4)}, v2 offset:{CONL + 512}
""")
    for j in range(DEP):
        rdh(j)
    a("s_waitcnt vmcnt(7)")
    for j, (ks, rho) in enumerate(jobs):
        if j + DEP < 16:
            rdh(j + DEP)
        a(f"s_waitcnt lgkmcnt({min(DEP, 15 - j)})")
        c = "0" if ks == 0 else vr(vC + 16 * rho, 16)
        a(f"v_mfma_f32_32x32x16_bf16 {vr(vC + 16 * rho, 16)}, {vr(vD + 4 * (j % 8), 4)}, {vr(vG + 4 * ks, 4)}, {c}")
        if j % 2 == 1 and 3 + j // 2 < 9:
            a(pos_dma(3 + j // 2))
    stamp(5)
    a(f"""s_waitcnt vmcnt(9)
K2_RANK:
v_mov_b32 v0, 1
""")
    for k in range(4):
        a(f"v_and_b32 v{AD + k}, 0xff, v{RQ + 2 * k + 1}")
    for k in range(4):
        a(f"s_mov_b64 exec, s[{sEX + 2 * k}:{sEX + 2 * k + 1}]")
        a(f"ds_add_rtn_u32 v{RK + k}, v{AD + k}, v0 offset:{CNT}")
    a(f"""s_mov_b64 exec, -1
s_lshl_b32 s{sT}, s{sW}, 2
v_mov_b32 v1, s{sT}
v_mov_b32 v2, s{sTOT}
ds_write_b32 v1, v2 offset:{CNT + 224}
s_cmp_lg_u32 s{sBASE}, 0
s_cbranch_scc1 K2_NOY
""")
    pos_extra("A")
    a(f"""s_mov_b32 s{sT}, {f32(-LOG2E)}
s_mov_b32 s{sT + 1}, {f32(-LOG2E)}
""")
    for i in range(0, 28, 2):
        a(f"v_pk_mul_f32 {vr(vC + i, 2)}, {vr(vC + i, 2)}, s[{sT}:{sT + 1}]")
    a(f"""v_mov_b64 {vr(vC + 28, 2)}, 0
v_mov_b64 {vr(vC + 30, 2)}, 0
s_cmp_ge_u32 s{sW}, 4
s_cbranch_scc1 K2_HIY
v_lshrrev_b32 v1, 5, v{vL}
v_and_b32 v2, 124, v{vL4}
v_lshl_or_b32 v2, v1, 10, v2
s_lshl_b32 s{sT + 2}, s{sW}, 7
s_add_u32 s{sT + 2}, s{sT + 2}, {YTAB}
v_add_u32 v2, s{sT + 2}, v2
""")
    for i in range(0, 28, 2):
        rho, r = i // 16, i % 16
        pair = 16 * rho + 4 * (r >> 2) + ((r & 3) >> 1)
        a(f"v_cvt_pk_bf16_f32 v{vD + i // 2}, v{vC + i}, v{vC + i + 1}")
        a(f"ds_write_b32 v2, v{vD + i // 2} offset:{512 * pair}")
    a(f"""K2_NOY:
s_waitcnt lgkmcnt(0)
""")
    stamp(6)
    a(f"""s_barrier
ds_read_b32 v3, v{vL4} offset:{CNT}
v_cmp_gt_u32 vcc, {BN}, v{vL}
s_add_u32 s{sT + 8}, s{sBASE}, {RB}
v_bfrev_b32 v1, -2
s_waitcnt lgkmcnt(0)
v_max_u32 v4, 4, v3
v_cndmask_b32 v4, 0, v4, vcc
v_cmp_lt_u32 s[{sT + 6}:{sT + 7}], s{sT + 8}, v3
v_mov_b32 v2, v4
""")
    scan_add(a, [2])
    a(f"""v_sub_u32 v4, v2, v4
v_readlane_b32 s{sT}, v2, 63
""")
    for k in range(4):
        a(f"ds_bpermute_b32 v{MK + k}, v{AD + k}, v4")
    a(f"""v_cndmask_b32 v{vOFF}, v1, v4, vcc
s_lshr_b32 s{sMORE}, s{sT + 7}, 24
v_mov_b32 v0, 0xff00ffff
v_mov_b32 v1, 252
s_cmp_gt_u32 s{sW}, 4
s_cbranch_scc1 K2_NOPAD
s_cmp_eq_u32 s{sW}, 4
s_cbranch_scc1 K2_TAILPAD
v_add_lshl_u32 v4, v4, s{sW}, 3
s_mov_b64 exec, vcc
v_cmpx_ge_u32 vcc, s{sW}, v3
s_branch K2_DOPAD
K2_TAILPAD:
v_add_lshl_u32 v4, s{sT}, v{vL}, 3
K2_DOPAD:
ds_write_b64 v4, v[0:1] offset:{CREC}
s_mov_b64 exec, -1
K2_NOPAD:
s_add_u32 s{sT}, s{sT}, 15
s_lshr_b32 s{sT}, s{sT}, 4
s_lshr_b32 s{sT + 1}, s{sT}, 3
s_and_b32 s{sT + 2}, s{sT}, 7
s_mul_i32 s{sCUR}, s{sW}, s{sT + 1}
s_min_u32 s{sT + 3}, s{sW}, s{sT + 2}
s_add_u32 s{sCUR}, s{sCUR}, s{sT + 3}
s_add_u32 s{sEND}, s{sCUR}, s{sT + 1}
s_cmp_lt_u32 s{sW}, s{sT + 2}
s_addc_u32 s{sEND}, s{sEND}, 0
s_waitcnt lgkmcnt(0)
""")
    for k in range(4):
        a(f"v_add_lshl_u32 v{MK + k}, v{MK + k}, v{RK + k}, 3")
    for k in range(4):
        a(f"s_mov_b64 exec, s[{sEX + 2 * k}:{sEX + 2 * k + 1}]")
        a(f"ds_write_b64 v{MK + k}, {vr(RQ + 2 * k, 2)} offset:{CREC}")
    a("s_mov_b64 exec, -1")

    def window(first_step_sgpr):
        a(f"""s_lshl_b32 s{sT + 10}, s{first_step_sgpr}, 4
v_cmp_ge_u32 vcc, s{sT + 10}, v{vOFF}
s_bcnt1_i32_b64 s{sT + 9}, vcc
s_sub_u32 s{sT + 9}, s{sT + 9}, 1
s_lshr_b32 s{sP0}, s{sT + 9}, 1
s_lshl_b32 s{sT}, s{sP0}, 1
s_add_u32 s{sT}, s{sT}, 6
v_readlane_b32 s{sSW}, v{vOFF}, s{sT}
s_mul_i32 s{sT}, s{sP0}, 43
s_lshr_b32 s{sT}, s{sT}, 7
s_mul_i32 s{sT}, s{sT}, 3
s_lshr_b32 s{sSW}, s{sSW}, 4
""")

    def load_y():
        for i in range(3):
            a(f"""s_add_u32 s{sT + 4}, s{sT}, {i}
s_cmp_lt_u32 s{sT + 4}, s{sP0}
s_cselect_b32 s{sT + 1}, 3, 0
s_add_u32 s{sT + 4}, s{sT + 4}, s{sT + 1}
s_lshl_b32 s{sT + 4}, s{sT + 4}, 9
v_add_u32 v{1 + i}, s{sT + 4}, v{vL4}
ds_read_b32 v{vY + 1 + i}, v{1 + i} offset:{YTAB}
ds_read_b32 v{vY + 5 + i}, v{1 + i} offset:{YTAB + 256}
""")

    window(sCUR)
    a(f"""s_mov_b32 s{sPF}, s{sP0}
s_sub_u32 s{sRES}, s{sP0}, s{sT}
""")
    load_y()
    a(f"""v_readlane_b32 s{sT + 2}, v{vOFF}, s{sT + 9}
s_lshl_b32 s{sT + 11}, s{sEND}, 4
v_cmp_gt_u32 vcc, s{sT + 11}, v{vOFF}
s_bcnt1_i32_b64 s{sNL}, vcc
s_sub_u32 s{sNL}, s{sNL}, 1
s_mul_i32 s{sT + 3}, s{sP0}, {2 * RST}
s_and_b32 s{sT + 4}, s{sT + 9}, 1
s_add_u32 s{sT + 5}, s{sW}, 56
s_sub_u32 s{sT + 5}, s{sT + 5}, s{sT + 4}
s_mul_i32 s{sT + 5}, s{sT + 5}, {RST}
s_cmp_lt_u32 s{sT + 2}, s{sT + 10}
s_cselect_b32 s{sT + 5}, s{sT + 5}, s{sT + 3}
s_cmp_eq_u32 s{sT + 4}, 0
s_cselect_b32 s{sT + 6}, s{sT + 3}, s{sT + 5}
s_cselect_b32 s{sT + 5}, s{sT + 5}, 0x1000000
v_add_u32 v{vFA}, s{sT + 6}, v{vLR}
s_mov_b32 exec_hi, 0
v_add_u32 v{vFA}, s{sT + 5}, v{vLR}
s_mov_b32 exec_hi, -1
s_lshl_b32 s{sT + 2}, s{sT + 9}, 3
s_add_u32 s{sT + 3}, s{sT + 2}, s{sW}
s_lshl_b32 s{sT + 3}, s{sT + 3}, 1
s_lshl_b32 s{sT + 4}, s{sW}, 2
v_mov_b32 v0, s{sT + 3}
v_mov_b32 v4, 0x3f80
ds_write_b16 v0, v4 offset:{SEL2}
v_mov_b32 v0, s{sT + 4}
v_mov_b32 v4, s{sT + 2}
ds_write_b32 v0, v4 offset:{HEAD}
s_lshl_b32 s{sT + 8}, s{sCUR}, 7
v_lshl_add_u32 v0, v{vL}, 3, s{sT + 8}
s_add_u32 s{sT + 8}, s{sT + 8}, {CREC}
v_add_u32 v{vAX}, s{sT + 8}, v{vAX}
v_add_u32 v{vAS}, s{sT + 8}, v{vAS}
v_add_u32 v{vAT}, s{sT + 8}, v{vAT}
s_mov_b32 s{sFL}, -1
s_sub_u32 s{sEVT}, s{sSW}, 1
s_sub_i32 s{sPR}, s{sEND}, 2
s_max_i32 s{sPR}, s{sPR}, s{sCUR}
s_cmp_lt_u32 s{sW}, 4
s_cselect_b32 s{sPR}, s{sPR}, -1
s_min_u32 s{sEVT}, s{sEVT}, s{sPR}
s_sub_u32 s{sT + 11}, s{sT + 11}, s{sT + 10}
s_mov_b32 s{sT + 2}, {f32(KAPPA)}
s_mov_b32 s{sT + 3}, 0xffff0000
s_mov_b32 s{sT + 4}, {POS}
""")
    stamp(7)
    a(f"""s_waitcnt vmcnt(0) lgkmcnt(0)
s_barrier
""")
    stamp(8)
    R2, PP, RA, PA = vD, vD + 8, vD + 16, vE
    a(f"""ds_read_u16 v{vSRC}, v{vAS}
ds_read_u8 v{vX}, v{vAX} offset:2
ds_read_u8 v{vX + 4}, v{vAX} offset:{128 + 2}
ds_read2_b32 {vr(vT, 2)}, v{vAT} offset0:0 offset1:4
s_waitcnt lgkmcnt(3)
""")
    for u in range(4):
        a(f"buffer_load_dwordx4 {vr(vG + 4 * u, 4)}, {vr(vSRC, 2)}, s[16:19], 0 idxen offen offset:{64 * u}")
    a(f"""ds_read_u16 v{vSRC}, v{vAS} offset:128
K2_ST2:
""")
    for k in range(4):
        a(f"ds_read_b64 {vr(R2 + 2 * k, 2)}, v0 offset:{CREC + 512 * k}")
    for k in range(4):
        a(f"v_cmp_gt_i32 s[{sEX + 2 * k}:{sEX + 2 * k + 1}], s{sT + 11}, v{vL}")
        a(f"s_sub_i32 s{sT + 11}, s{sT + 11}, 64")
    a("s_waitcnt lgkmcnt(0)")
    for k in (3, 2, 1, 0):
        a(f"""s_mov_b64 exec, s[{sEX + 2 * k}:{sEX + 2 * k + 1}]
v_mad_u32_u16 v{PA + k}, v{R2 + 2 * k}, 6, s{sT + 4}
v_lshlrev_b32_sdwa v2, 2, v{R2 + 2 * k + 1} dst_sel:DWORD dst_unused:UNUSED_PAD src0_sel:DWORD src1_sel:BYTE_0
v_and_b32 v1, -4, v{PA + k}
ds_read_b128 {vr(RA + 4 * k, 4)}, v2 offset:{ROWA}
ds_read2_b32 {vr(PP + 2 * k, 2)}, v1 offset0:0 offset1:1
""")
    for k in (3, 2, 1, 0):
        p, ra, q = PP + 2 * k, RA + 4 * k, R2 + 2 * k
        a(f"s_mov_b64 exec, s[{sEX + 2 * k}:{sEX + 2 * k + 1}]")
        if k:
            a(f"s_cbranch_execz K2_SKIP{k}")
        a(f"""s_waitcnt lgkmcnt({2 * k})
v_alignbyte_b32 v2, v{p + 1}, v{p}, v{PA + k}
v_alignbyte_b32 v3, v{p + 1}, v{p + 1}, v{PA + k}
v_lshlrev_b32 v1, 16, v2
v_and_b32 v2, s{sT + 3}, v2
v_lshlrev_b32 v3, 16, v3
v_sub_f32 v1, v{ra}, v1
v_sub_f32 v2, v{ra + 1}, v2
v_sub_f32 v3, v{ra + 2}, v3
v_mul_f32 v4, v1, v1
v_cvt_pk_bf16_f32 v{p}, s{sT + 2}, v1
v_fmac_f32 v4, v2, v2
v_cvt_pk_bf16_f32 v{p + 1}, v2, v3
v_fmac_f32 v4, v3, v3
v_mul_f32 v4, {f32(-LOG2E)}, v4
v_cvt_pk_bf16_f32 v{q + 1}, v4, v{q + 1}
ds_write_b64 v0, {vr(p, 2)} offset:{TARR + 512 * k}
ds_write_b32 v0, v{q + 1} offset:{CREC + 512 * k + 4}
""")
        if k:
            a(f"K2_SKIP{k}:")
    a(f"""s_mov_b64 exec, -1
v_add_u32 v0, 2048, v0
s_cmp_gt_i32 s{sT + 11}, 0
s_cbranch_scc1 K2_ST2
""")
    for u in range(4):
        a(f"buffer_load_dwordx4 {vr(vG + 16 + 4 * u, 4)}, {vr(vSRC, 2)}, s[16:19], 0 idxen offen offset:{64 * u}")
    a(f"""ds_read_b128 {vr(vX, 4)}, v{vX} offset:{ROWB}
ds_read_b32 v{vX}, v{vAX} offset:4
ds_read_b128 {vr(vX + 4, 4)}, v{vX + 4} offset:{ROWB}
ds_read_b32 v{vX + 4}, v{vAX} offset:{128 + 4}
ds_read_u16 v{vSRC}, v{vAS} offset:256
s_mul_i32 s{sT}, s{sW}, {RST}
s_add_u32 s{sT}, s{sT}, {ROWS + 56 * RST}
v_lshl_add_u32 v1, v{vL}, 4, s{sT}
""")
    stamp(9)
    a(f"""s_barrier
s_mov_b32 exec_hi, 0xffff
ds_write_b128 v1, {vr(vSEL, 4)}
s_mov_b32 exec_hi, -1
s_setprio 1
s_cmp_lt_u32 s{sW}, 4
s_cbranch_scc0 K2_PRIO
s_setprio 2
K2_PRIO:
s_waitcnt vmcnt(4) lgkmcnt(0)
""")

    def pre(d, g, x, tau):
        return [
            f"v_mfma_f32_32x32x16_bf16 {vr(d, 16)}, {vr(g + 8 * tau, 4)}, {vr(vI, 4)}, 0",
            f"v_mfma_f32_32x32x16_bf16 {vr(d, 16)}, {vr(g + 8 * tau + 4, 4)}, {vr(vI + 4, 4)}, {vr(d, 16)}",
            f"v_mfma_f32_32x32x16_bf16 {vr(d, 16)}, {vr(x, 4)}, {vr(vY + 4 * tau, 4)}, {vr(d, 16)}",
        ]

    def seg(tau):
        return [f"v_smfmac_f32_32x32x32_bf16 {vr(vACC + 16 * (2 * tau + s), 16)}, {vr(vSEL, 4)}, {vr(vM + 8 * s, 8)}, v{vIDX}"
                for s in range(2)]

    for m in pre(vD, vG, vX, 0):
        a(m)

    def tile(d, mp, ms, mid, extra):
        for r in range(16):
            if r in (0, 3, 6):
                a(mp[r // 3])
            if r == 9:
                if mid:
                    a("s_waitcnt lgkmcnt(0)")
                a(ms[0])
                for x in mid:
                    a(x)
            wide = "_e64" if (r in (2, 5) or (r == 8 and not mid) or r == 15) else ""
            a(f"v_exp_f32{wide} v{vE + r}, v{d + r}")
        for g in range(0, 16, 2):
            a(f"v_pk_fma_f32 {vr(vE + g, 2)}, {vr(vE + g, 2)}, s[{sKP}:{sKP + 1}], s[{sKP}:{sKP + 1}] clamp")
        for g in range(4):
            a(f"v_pk_mul_f32 {vr(vP + 2 * g, 2)}, {vr(vE + 4 * g, 2)}, {vr(vE + 4 * g + 2, 2)}")
        for g in range(2):
            a(f"v_pk_mul_f32 {vr(vQ + 2 * g, 2)}, {vr(vP + 4 * g, 2)}, {vr(vP + 4 * g + 2, 2)}")
        for g in range(4):
            a(f"v_pk_mul_f32 {vr(vE + 4 * g + 2, 2)}, {vr(d + 4 * g, 2)}, {vr(vE + 4 * g + 2, 2)}")
            a(f"v_pk_mul_f32 {vr(vE + 4 * g, 2)}, {vr(vE + 4 * g, 2)}, {vr(d + 4 * g + 2, 2)}")
        a(ms[1])
        for r in range(4):
            a(f"v_rcp_f32 v{vQ + r}, v{vQ + r}")
        for x in extra:
            a(x)
        for g in range(4):
            a(f"v_pk_mul_f32 {vr(vP + 2 * g, 2)}, {vr(vP + 2 * g, 2)}, {vr(vQ + 2 * (g // 2), 2)}")
        for g in range(4):
            o = vP + 2 * (g ^ 1)
            a(f"v_pk_mul_f32 {vr(vM + 2 * g, 2)}, {vr(vE + 4 * g + 2, 2)}, {vr(o, 2)}")
            a(f"v_pk_mul_f32 {vr(vM + 8 + 2 * g, 2)}, {vr(vE + 4 * g, 2)}, {vr(o, 2)}")

    TOFF = TARR - CREC

    def step(par):
        g, x = vG + 16 * par, vX + 4 * par
        gn, xn = vG + 16 * (1 - par), vX + 4 * (1 - par)
        ex = [f"v_and_or_b32 v{vT + i}, v{vT + i}, v{vK}, v{vAT}" for i in range(2)]
        tile(vD, pre(vD + 16, g, x, 1), seg(1), [], ex)
        for u in range(4):
            a(f"buffer_load_dwordx4 {vr(g + 4 * u, 4)}, {vr(vSRC, 2)}, s[16:19], 0 idxen offen offset:{64 * u}")
        a(f"""ds_read_b64_tr_b16 {vr(vSEL, 2)}, v{vT} offset:{TOFF + 128 * par}
ds_read_b64_tr_b16 {vr(vSEL + 2, 2)}, v{vT + 1} offset:{TOFF + 128 * par + 16}
ds_read_u8 v{x}, v{vAX} offset:{256 + 128 * par + 2}
ds_read2_b32 {vr(vT, 2)}, v{vAT} offset0:{32 * par + 32} offset1:{32 * par + 36}
ds_read_u16 v{vSRC}, v{vAS} offset:{384 + 128 * par}
s_cmp_eq_u32 s{sCUR}, s{sEVT}
s_cbranch_scc1 K2_EVT{par}
K2_RET{par}:
s_add_u32 s{sCUR}, s{sCUR}, 1
s_waitcnt vmcnt(4) lgkmcnt(5)
""")
        mid = [f"ds_read_b128 {vr(x, 4)}, v{x} offset:{ROWB}", f"ds_read_b32 v{x}, v{vAX} offset:{256 + 128 * par + 4}"]
        ex = []
        if par == 1:
            ex = [f"v_add_u32 v{vAX}, s{sC}, v{vAX}", f"v_add_u32 v{vAS}, s{sC}, v{vAS}", f"v_add_u32_e64 v{vAT}, s{sC}, v{vAT}"]
        tile(vD + 16, pre(vD, gn, xn, 0), seg(0), mid, ex)
        a(f"s_cmp_lt_u32 s{sCUR}, s{sEND}")
        a("s_cbranch_scc0 K2_DONE" if par == 0 else "s_cbranch_scc1 K2_LOOP")

    stamp(10)
    a(f"""s_nop 11
.p2align 3
K2_LOOP:
""")
    step(0)
    step(1)
    a("K2_DONE:")
    stamp(11)
    for m in seg(1):
        a(m)
    a(f"""s_lshl_b32 s{sT + 8}, s{sW}, 13
s_add_u32 s{sT + 8}, s{sT + 8}, {WF_OFF + 32768}
s_add_u32 s{sT + 9}, s{sT + 8}, 4096
v_lshlrev_b32 v5, 4, v{vL}
s_mov_b32 s{sMODE}, 2
s_lshr_b32 s{sLF}, s{sNL}, 1
s_cmp_lt_u32 s{sW}, 4
s_cbranch_scc1 K2_FLUSH
""")
    for ks in range(8):
        a(f"buffer_load_dwordx4 {vr(vG + 4 * ks, 4)}, v5, s[12:15], s{sT + 8 + ks // 4} offen offset:{1024 * (ks % 4)}")
    a(f"""K2_FLUSH:
s_cmp_eq_u32 s{sRES}, 1
s_cbranch_scc1 K2_FL1
s_cmp_eq_u32 s{sRES}, 2
s_cbranch_scc1 K2_FL2
""")
    for i in range(3):
        r = lambda cb, c=0: vACC + 16 * cb + 4 * i + c
        a(f"""K2_FL{i}:
s_lshl_b32 s{sT}, s{sPF}, 1
s_cmp_eq_u32 s{sT}, s{sNL}
s_cselect_b32 exec_hi, 0, -1
s_add_u32 s{sPF}, s{sPF}, 1
s_mul_i32 s{sT}, s{sPF}, {2 * RST}
s_mov_b32 s{sRES}, {(i + 1) % 3}
v_pk_mul_f32 v[2:3], {vr(r(0), 2)}, {vr(vWX, 2)} op_sel:[0,0] op_sel_hi:[1,0]
v_pk_mul_f32 v[4:5], {vr(r(0, 2), 2)}, {vr(vWX, 2)} op_sel:[0,0] op_sel_hi:[1,0]
v_cvt_pk_bf16_f32 v0, v{r(0)}, v{r(1)}
""")
        for cb in range(1, 4):
            o = cb & 1
            for h in range(2):
                a(f"v_pk_fma_f32 v[{2 + 2 * h}:{3 + 2 * h}], {vr(r(cb, 2 * h), 2)}, {vr(vWX + (cb & 2), 2)}, v[{2 + 2 * h}:{3 + 2 * h}] "
                  f"op_sel:[0,{o},0] op_sel_hi:[1,{o},1]")
        a(f"""v_cvt_pk_bf16_f32 v1, v{r(2)}, v{r(3)}
ds_write2_b64 v{vFA}, v[2:3], v[4:5] offset0:32 offset1:64
ds_write_b64 v{vFA}, v[0:1]
v_add_u32 v{vFA}, s{sT}, v{vLR}
s_cmp_eq_u32 s{sMODE}, 2
s_cbranch_scc1 K2_FLZ{i}
""")
        for cb in range(4):
            for h in range(2):
                a(f"v_mov_b64 {vr(r(cb, 2 * h), 2)}, 0")
        a(f"""K2_FLZ{i}:
s_cmp_le_i32 s{sPF}, s{sLF}
""")
        a("s_cbranch_scc0 K2_FLEND" if i < 2 else "s_cbranch_scc1 K2_FL0")
    a(f"""K2_FLEND:
s_cmp_lg_u32 s{sMODE}, 2
s_cbranch_scc1 K2_EVA
s_mov_b32 exec_hi, -1
s_cmp_lt_u32 s{sW}, 4
s_cbranch_scc1 K2_POS
""")
    S2, TB = vE, vE + 8
    NP = 13
    hx = {0: vAX, 2: vAT, 8: vK, 10: vOFF}
    rows = []
    for p in range(NP):
        rho, r = (2 * p) // 16, (2 * p) % 16
        rows.append(32 * rho + 8 * (r >> 2) + (r & 3))
    a(f"""v_and_b32 v1, 31, v{vL}
v_lshrrev_b32 v2, 5, v{vL}
v_lshlrev_b32 v3, 4, v1
v_lshl_or_b32 v3, v2, 3, v3
ds_read_b64 {vr(S2, 2)}, v3 offset:{SEL2}
ds_read_b64 {vr(S2 + 4, 2)}, v3 offset:{SEL2 + 512}
v_mul_u32_u24 v1, {RST}, v1
v_lshl_add_u32 v1, v2, 4, v1
v_add_u32 v1, {ROWS}, v1
v_mov_b64 {vr(S2 + 2, 2)}, 0
v_mov_b64 {vr(S2 + 6, 2)}, 0
v_mov_b64 {vr(TB + 2, 2)}, 0
""")
    stamp(12)
    a(f"""s_waitcnt lgkmcnt(0)
s_barrier
""")
    stamp(13)
    jobs = [(rho, ks) for rho in (1, 0) for ks in range(8)]
    for j, (rho, ks) in enumerate(jobs[:15]):
        a(f"ds_read_b128 {vr(vACC + 4 * j, 4)}, v1 offset:{rho * 32 * RST + ks * 32}")
    a("s_waitcnt vmcnt(0)")

    def mm(j):
        rho, ks = jobs[j]
        if j == 0:
            a("s_waitcnt lgkmcnt(14)")
            a(f"ds_read_b128 {vr(vACC + 60, 4)}, v1 offset:{7 * 32}")
        else:
            a(f"s_waitcnt lgkmcnt({15 - j})")
        a(f"v_mfma_f32_32x32x16_bf16 {vr(vC + 16 * rho, 16)}, {vr(vACC + 4 * j, 4)}, {vr(vG + 4 * ks, 4)}, {vr(vC + 16 * rho, 16)}")
    for j in range(10):
        mm(j)
    a(f"""v_cvt_pk_bf16_f32 v{TB}, v{vC + 28}, v{vC + 29}
v_cvt_pk_bf16_f32 v{TB + 1}, v{vC + 30}, v{vC + 31}
""")
    mm(10)
    a(f"v_mfma_f32_32x32x16_bf16 {vr(vC + 16, 16)}, {vr(S2 + 4, 4)}, {vr(TB, 4)}, {vr(vC + 16, 16)}")
    for j in range(11, 16):
        mm(j)
    a(f"v_mfma_f32_32x32x16_bf16 {vr(vC, 16)}, {vr(S2, 4)}, {vr(TB, 4)}, {vr(vC, 16)}")
    a(f"""s_cmp_lg_u32 s{sMORE}, 0
s_cbranch_scc1 K2_MORE
s_mul_i32 s{sT}, s2, {BN * 256}
s_add_u32 s20, s20, s{sT}
s_addc_u32 s21, s21, 0
s_mov_b32 s22, s6
s_mov_b32 s23, {FMT}
s_sub_u32 s{sT + 1}, s{sW}, 4
s_lshl_b32 s{sT + 2}, s{sT + 1}, 6
s_lshl_b32 s{sT + 3}, s{sT + 1}, 2
v_bfe_u32 v3, v{vL}, 4, 1
v_lshl_or_b32 v3, v2, 2, v3
v_and_b32 v4, 15, v{vL}
v_lshlrev_b32 v5, 8, v3
v_lshl_or_b32 v{vAS}, v4, 2, v5
v_add_u32 v{vAS}, s{sT + 2}, v{vAS}
v_lshrrev_b32 v4, 2, v4
v_or_b32 v4, s{sT + 3}, v4
v_xor_b32 v4, v4, v3
v_lshl_or_b32 v5, v4, 4, v5
v_and_b32 v4, 3, v{vL}
v_lshl_or_b32 v{vAX}, v4, 2, v5
v_xor_b32 v{vAT}, 32, v{vAX}
v_xor_b32 v{vK}, 128, v{vAX}
v_xor_b32 v{vOFF}, 160, v{vAX}
""")
    stamp(14)
    for p in range(NP):
        a(f"ds_read_b32 v{vX + p}, v{hx[rows[p] & 15]} offset:{HST + rows[p] * 256}")
    a(f"""s_mov_b32 s{sT}, {f32(-LN2)}
s_mov_b32 s{sT + 1}, {f32(-LN2)}
s_mov_b32 s{sT + 2}, 0xffff0000
s_mov_b32 s{sT + 4}, 0
s_mov_b32 s{sT + 5}, 4096
s_mov_b32 s{sT + 6}, 8192
s_mov_b32 s{sT + 7}, 12288
""")
    first = True
    for ps in ([8, 9, 10, 11, 12], [0, 1, 2, 3], [4, 5, 6, 7]):
        for p in ps:
            a(f"v_permlane16_swap_b32 v{vC + 2 * p}, v{vC + 2 * p + 1}")
        for p in ps:
            for i in range(2):
                a(f"v_exp_f32 v{vD + 2 * p + i}, v{vC + 2 * p + i}")
        if first:
            a("s_waitcnt lgkmcnt(0)")
            first = False
        for p in ps:
            a(f"v_pk_add_f32 {vr(vD + 2 * p, 2)}, {vr(vD + 2 * p, 2)}, 1.0 op_sel_hi:[1,0]")
        for p in ps:
            for i in range(2):
                a(f"v_rcp_f32 v{vD + 2 * p + i}, v{vD + 2 * p + i}")
        for p in ps:
            a(f"v_lshlrev_b32 v{vG + 2 * p}, 16, v{vX + p}")
            a(f"v_and_b32 v{vG + 2 * p + 1}, s{sT + 2}, v{vX + p}")
        for p in ps:
            a(f"v_pk_mul_f32 {vr(vD + 2 * p, 2)}, {vr(vD + 2 * p, 2)}, {vr(vC + 2 * p, 2)}")
        for p in ps:
            a(f"v_pk_fma_f32 {vr(vD + 2 * p, 2)}, {vr(vD + 2 * p, 2)}, s[{sT}:{sT + 1}], {vr(vG + 2 * p, 2)}")
        for p in ps:
            a(f"v_cvt_pk_bf16_f32 v{vX + p}, v{vD + 2 * p}, v{vD + 2 * p + 1}")
        for p in ps:
            o = rows[p] * 256
            a(f"buffer_store_dword v{vX + p}, v{vAS}, s[20:23], s{sT + 4 + o // 4096} offen offset:{o % 4096}")
    dump()
    a("""K2_EXIT:
s_endpgm
""")
    a(f"""K2_POS:
s_lshl_b32 s{sT}, s{sW}, 8
s_add_u32 s{sT}, s{sT}, {ROWS + 256}
v_mul_u32_u24 v1, {RST}, v{vL}
v_add_u32 v1, s{sT}, v1
s_lshl_b32 s{sT + 1}, s{sW}, 9
v_lshl_add_u32 v2, v{vL}, 3, s{sT + 1}
ds_read_b32 v3, v{vL4} offset:{HEAD - 224}
""")
    stamp(12)
    a(f"""s_waitcnt lgkmcnt(0)
s_barrier
""")
    stamp(13)
    a(f"""s_cmp_ge_u32 s{sW}, 2
s_cbranch_scc1 K2_POSEND
""")
    for i in range(16):
        if i == 15:
            a("s_waitcnt lgkmcnt(14)")
        a(f"ds_read_b128 {vr(vACC + 4 * i, 4)}, v1 offset:{16 * i}")
    a(f"v_add_u32 v3, s{sT + 1}, v3")
    for i in range(8):
        a(f"s_waitcnt lgkmcnt({14 - 2 * i})")
        for h in range(2):
            a(f"v_pk_add_f32 {vr(vACC + 8 * i + 2 * h, 2)}, {vr(vACC + 8 * i + 2 * h, 2)}, {vr(vACC + 8 * i + 4 + 2 * h, 2)}")
    w = 32
    while w >= 8:
        for i in range(0, w, 8):
            for h in range(2):
                a(f"v_pk_add_f32 {vr(vACC + i + 2 * h, 2)}, {vr(vACC + i + 2 * h, 2)}, {vr(vACC + w + i + 2 * h, 2)}")
        w //= 2
    a(f"""v_pk_add_f32 {vr(vACC, 2)}, {vr(vACC, 2)}, {vr(vACC + 2, 2)}
v_pk_add_f32 {vr(vC + 28, 2)}, {vr(vC + 28, 2)}, {vr(vACC, 2)}
ds_write_b64 v2, {vr(vC + 28, 2)} offset:{PS}
s_mov_b32 exec_lo, 0
s_mov_b32 exec_hi, 0xff000000
ds_add_f32 v3, v{vACC} offset:{PS}
ds_add_f32 v3, v{vACC + 1} offset:{PS + 4}
s_mov_b64 exec, -1
ds_read_b64 {vr(vC + 28, 2)}, v2 offset:{PS}
v_lshlrev_b32 v4, 2, v{vL4}
s_lshl_b32 s{sT + 1}, s{sW}, 3
v_add_u32 v4, s{sT + 1}, v4
ds_read_b32 v0, v4 offset:{ROWA - 4}
ds_read_b32 v1, v4 offset:{ROWA}
s_cmp_lg_u32 s{sMORE}, 0
s_cbranch_scc1 K2_MORE
s_mul_i32 s{sT}, s2, {BN * 6}
s_sub_u32 s22, {N * 6}, s{sT}
s_min_u32 s22, s22, {BN * 6}
s_add_u32 s{sT}, s{sT}, {N * 256}
s_add_u32 s20, s20, s{sT}
s_addc_u32 s21, s21, 0
s_mov_b32 s23, {FMT}
v_mul_u32_u24 v5, 6, v{vL}
v_cmp_gt_u32 vcc, s22, v5
s_add_u32 s22, s22, 2
s_lshl_b32 s{sT + 1}, s{sW}, 2
s_waitcnt lgkmcnt(0)
v_pk_add_f32 v[0:1], v[0:1], {vr(vC + 28, 2)}
v_cvt_pk_bf16_f32 v4, v0, v1
s_mov_b64 exec, vcc
buffer_store_short_d16_hi v4, v5, s[20:23], s{sT + 1} offen
s_cmp_eq_u32 s{sW}, 0
s_cbranch_scc1 K2_EXIT2
buffer_store_short v4, v5, s[20:23], 0 offen offset:2
s_branch K2_EXIT2
K2_POSEND:
s_cmp_lg_u32 s{sMORE}, 0
s_cbranch_scc1 K2_MORE
K2_EXIT2:
""")
    dump()
    a("s_endpgm")
    a(f"""K2_JOB67:
s_cmp_eq_u32 s{sW}, 7
s_cbranch_scc1 K2_JOB7
s_mov_b32 m0, {CONL}
s_mov_b32 s{sT + 8}, {CON_OFF}
buffer_load_dwordx4 v5, s[12:15], s{sT + 8} offen lds
s_branch K2_JOBRET
K2_JOB7:
s_mul_i32 s{sT + 8}, s2, {BN * 6}
v_mul_u32_u24 v1, 6, v{vL}
v_mov_b64 {vr(vPD, 2)}, 0
s_mov_b32 exec_hi, {(1 << (BN - 32)) - 1}
buffer_load_dwordx2 {vr(vPD, 2)}, v1, s[8:11], s{sT + 8} offen
s_mov_b32 exec_hi, -1
s_branch K2_JOBRET
K2_HIY:
s_cmp_eq_u32 s{sW}, 7
s_cbranch_scc0 K2_NOY
v_lshlrev_b32 v2, 16, v{vPD}
v_and_b32 v3, 0xffff0000, v{vPD}
v_lshlrev_b32 v4, 16, v{vPD + 1}
ds_write_b96 v5, v[2:4] offset:{ROWA}
s_branch K2_NOY
K2_SKIPGEMM:
s_waitcnt vmcnt(0) lgkmcnt(0)
s_barrier
s_branch K2_RANK
""")
    a(f"""K2_MORE:
s_waitcnt vmcnt(0) lgkmcnt(0)
s_barrier
s_setprio 0
s_add_u32 s{sBASE}, s{sBASE}, {RB}
v_and_b32 v{vAS}, 0x7f, v{vAS}
v_and_b32 v{vAX}, 0x0100007f, v{vAX}
v_and_b32 v{vAT}, 0x7f, v{vAT}
v_mov_b64 {vr(vSEL, 2)}, 0
v_mov_b64 {vr(vSEL + 2, 2)}, 0
v_lshlrev_b32 v5, 4, v{vL}
s_cmp_lt_u32 s{sW}, 4
s_cbranch_scc1 K2_KEEP
v_mov_b64 {vr(vC + 28, 2)}, 0
v_mov_b64 {vr(vC + 30, 2)}, 0
K2_KEEP:
""")
    hop1_addr()
    hop1()
    a(f"s_mul_i32 s{sT + 12}, s{sW}, {9 * 1024}")
    for j in range(9):
        a(pos_dma(j))
    pos_extra("B")
    a(f"""s_lshl_b32 s{sT}, s{sW}, 10
v_add_u32 v1, s{sT}, v5
ds_write_b128 v1, {vr(vSEL, 4)} offset:{TARR}
ds_write_b128 v5, {vr(vSEL, 4)} offset:{SEL2}
ds_write_b32 v{vL4}, v{vSEL} offset:{CNT}
""")
    zero_acc(vSEL)
    a(f"""s_waitcnt vmcnt(0)
s_branch K2_BATCH
""")
    a(f"""K2_EVT0:
s_mov_b32 s{sMODE}, 0
s_branch K2_EVT
K2_EVT1:
s_mov_b32 s{sMODE}, 1
K2_EVT:
s_cmp_lg_u32 s{sPR}, s{sCUR}
s_cbranch_scc1 K2_EVP
s_setprio 0
s_mov_b32 s{sPR}, -1
K2_EVP:
s_cmp_lg_u32 s{sFL}, s{sCUR}
s_cbranch_scc1 K2_EVA
s_mov_b32 s{sFL}, -1
s_sub_u32 s{sLF}, s{sP0}, 1
s_branch K2_FLUSH
K2_EVA:
s_sub_u32 s{sEVT}, s{sSW}, 1
s_cmp_lg_u32 s{sEVT}, s{sCUR}
s_cbranch_scc1 K2_EVB
s_mov_b32 s{sFL}, s{sSW}
s_mov_b32 s{sEVT}, s{sSW}
""")
    window(sFL)
    load_y()
    a(f"""s_waitcnt lgkmcnt(0)
K2_EVB:
s_min_u32 s{sEVT}, s{sEVT}, s{sPR}
s_cmp_eq_u32 s{sMODE}, 0
s_cbranch_scc1 K2_RET0
s_branch K2_RET1
""")


def kd(name, vgpr, sgpr=96):
    return f""".amdhsa_kernel {name}
  .amdhsa_next_free_vgpr {vgpr}
  .amdhsa_next_free_sgpr {sgpr}
  .amdhsa_accum_offset {(vgpr + 3) // 4 * 4}
  .amdhsa_group_segment_fixed_size 0
  .amdhsa_kernarg_size 88
  .amdhsa_user_sgpr_count 2
  .amdhsa_user_sgpr_kernarg_segment_ptr 1
  .amdhsa_system_sgpr_workgroup_id_x 1
.end_amdhsa_kernel
"""


def build(opt=None, verbose=False):
    opt = opt or {}
    ref = open(f"cdna_kernels/{NAME}.s.ref").read().split("\n")
    head = [l for l in ref if l.startswith(";") and "@launch" not in l and "Override" not in l and "grid=ceil" not in l]
    e = ref.index('.amdgcn_target "amdgcn-amd-amdhsa--gfx950"')
    head = [l for l in ref[:e] if "@launch" not in l and "Override" not in l and "grid=ceil" not in l]
    head.append(f"; @launch kernel=k1_kernel grid=({NB + NCH},1,1) block=(512,1,1) lds={K1_LDS}")
    head.append(f"; @launch kernel={NAME}_kernel grid=({NB},1,1) block=(512,1,1) lds={K2_LDS}")
    a1, a2 = Asm(), Asm()
    gen_k1(a1, opt)
    gen_k2(a2, opt)
    n1 = a1.fix_hazards(verbose)
    n2 = a2.fix_hazards(verbose)
    s = "\n".join(head) + '\n.amdgcn_target "amdgcn-amd-amdhsa--gfx950"\n.text\n'
    s += a1.text() + a2.text()
    s += '.section .rodata,"a"\n.p2align 6\n' + kd("k1_kernel", 104) + ".p2align 6\n" + kd(NAME + "_kernel", 256)
    return s


if __name__ == "__main__":
    out = sys.argv[1] if len(sys.argv) > 1 else f"cdna_kernels/{NAME}.s"
    opt = dict(kv.split("=") for kv in sys.argv[2:])
    open(out, "w").write(build(opt, verbose="v" in opt))
    print("written", out)
```

```python
import sys, struct, math
sys.path.insert(0, "work")
from asmlib import Asm, vr, sr

NAME = "standalone__cheap_equivariant_egnn__graph"
N, E = 12500, 400000
NB, BN = 256, 49
CH, NCH, CS = 1564, 256, 1568
WF_OFF = NCH * CS * 8
CON_OFF = WF_OFF + 98304
TAB_OFF = CON_OFF + 1024
WS1_SIZE = TAB_OFF + NCH * 1024
BP_OFF = 4 << 20
DBG_OFF = 16 << 20
FMT = 0x00020000


def f32(x):
    return struct.unpack("<I", struct.pack("<f", x))[0]


LOG2E = 1.4426950408889634
LN2 = 0.6931471805599453
KAPPA = 2.0 ** -31
DELTA = 2.0 ** -8 * 0.70
K1_LDS = 49152

RB = 256
ROWB = 0
CNT = 256
HEAD = 512
ROWA = 1024
SEL2 = 2048
PS = 3072
CONL = 4096
CREC = 5120
TARR = CREC + 18432
HST = TARR + 18432
YTAB = HST + 14336
POS = YTAB + 14336
ROWS = POS
RST = 784
K2_LDS = POS + 74 * 1024


def scan_add(a, v, n64=True, op="v_add_u32"):
    for sh in (1, 2, 4, 8):
        for r in v:
            a(f"{op}_dpp v{r}, v{r}, v{r} row_shr:{sh} row_mask:0xf bank_mask:0xf bound_ctrl:1")
    for r in v:
        a(f"{op}_dpp v{r}, v{r}, v{r} row_bcast:15 row_mask:0xa bank_mask:0xf")
    if n64:
        for r in v:
            a(f"{op}_dpp v{r}, v{r}, v{r} row_bcast:31 row_mask:0xc bank_mask:0xf")


def diag_tools(a, opt, ws, lane, off):
    diag = opt.get("diag")
    only = [int(x) for x in opt["st"].split(",")] if "st" in opt else None

    def entry():
        if diag:
            a("s_memrealtime s[86:87]\ns_memtime s[70:71]")

    def stamp(i):
        if diag and (only is None or i in only or i == 15):
            a(f"""s_memtime s[66:67]
s_waitcnt lgkmcnt(0)
s_mov_b32 s{70 + i}, s66
""")

    def dump():
        if not diag:
            return
        stamp(15)
        a(f"""s_memrealtime s[66:67]
s_waitcnt lgkmcnt(0)
s_mov_b32 s87, s66
s_mov_b64 exec, -1
s_add_u32 s88, s{ws}, {off}
s_addc_u32 s89, s{ws + 1}, 0
s_mov_b32 s90, {1 << 20}
s_mov_b32 s91, {FMT}
s_lshl_b32 s66, s2, 3
s_add_u32 s66, s66, s3
s_lshl_b32 s66, s66, 7
v_mov_b32 v1, 0
""")
        for i in range(18):
            a(f"v_writelane_b32 v1, s{70 + i}, {i}")
        a(f"""v_lshlrev_b32 v2, 2, v{lane}
s_mov_b64 exec, 0x3ffff
buffer_store_dword v1, v2, s[88:91], s66 offen
""")
    return entry, stamp, dump


def gen_k1(a, opt):
    entry, stamp, dump = diag_tools(a, {k: v for k, v in opt.items() if k != "st"}, 16, 2, DBG_OFF + (1 << 20))

    SC = " " + opt.get("sc", "").replace("_", " ") if opt.get("sc") else ""

    def fin():
        if opt.get("diag"):
            stamp(5)
            a("s_waitcnt vmcnt(0)")
            dump()
    a(""".globl k1_kernel
.p2align 8
.type k1_kernel,@function
k1_kernel:
""")
    entry()
    a(f"""s_load_dwordx2 s[4:5], s[0:1], 32
s_load_dwordx2 s[8:9], s[0:1], 24
s_load_dwordx2 s[12:13], s[0:1], 16
s_load_dwordx2 s[16:17], s[0:1], 80
s_load_dwordx2 s[20:21], s[0:1], 0
s_load_dwordx2 s[24:25], s[0:1], 40
s_load_dwordx2 s[28:29], s[0:1], 56
s_cmp_ge_u32 s2, {NB + NCH}
s_cbranch_scc1 K1_EXIT
v_lshrrev_b32 v1, 6, v0
v_and_b32 v2, 63, v0
s_mov_b32 s18, {WS1_SIZE}
s_mov_b32 s19, {FMT}
v_readfirstlane_b32 s3, v1
s_cmp_lt_u32 s2, {NB}
s_cbranch_scc1 K1_GEMM
""")
    DST, SRC, EA, AD, RK, HI, T0 = 4, 8, 12, 16, 20, 24, 28
    a(f"""; sort role: one chunk of {CH} edges is grouped by destination bin
s_sub_u32 s40, s2, {NB}
s_mov_b32 s6, {E * 4}
s_mov_b32 s7, {FMT}
s_mov_b32 s10, {E * 4}
s_mov_b32 s11, {FMT}
s_mov_b32 s14, {E * 2}
s_mov_b32 s15, {FMT}
s_mul_i32 s41, s40, {CH * 4}
s_mul_i32 s42, s40, {CH * 2}
v_lshlrev_b32 v3, 4, v0
v_lshlrev_b32 v14, 3, v0
v_lshlrev_b32 v15, 2, v0
v_mov_b32 v40, 0
s_mov_b32 s43, {CH // 4}
s_cmp_eq_u32 s40, {NCH - 1}
s_cselect_b32 s43, {(E - (NCH - 1) * CH) // 4}, s43
v_cmp_gt_u32 vcc, s43, v0
ds_write_b32 v15, v40
s_mov_b64 s[44:45], vcc
s_waitcnt lgkmcnt(0)
s_mov_b64 exec, s[44:45]
buffer_load_dwordx4 {vr(DST, 4)}, v3, s[4:7], s41 offen
buffer_load_dwordx2 {vr(EA, 2)}, v14, s[12:15], s42 offen
buffer_load_dwordx4 {vr(SRC, 4)}, v3, s[8:11], s41 offen
s_mov_b32 s46, -49
s_mov_b32 s47, 0xff100000
s_mov_b32 s54, 0x01000000
s_mov_b32 s48, {f32(-LOG2E)}
s_mov_b32 s49, {f32(-LOG2E)}
s_mov_b32 s50, 0xffff0000
s_mul_i32 s51, s40, {CS * 8}
s_lshl_b32 s52, s40, 10
s_add_u32 s52, s52, {TAB_OFF}
s_add_u32 s53, s51, 8192
v_mov_b32 v41, 1
""")
    stamp(1)
    a("s_barrier\ns_waitcnt vmcnt(2)")
    stamp(2)
    for i in range(4):
        a(f"v_mul_u32_u24 v{T0 + i}, 21400, v{DST + i}")
    for i in range(4):
        a(f"v_lshrrev_b32 v{T0 + i}, 20, v{T0 + i}")
    for i in range(4):
        a(f"v_lshlrev_b32 v{AD + i}, 2, v{T0 + i}")
    for i in range(4):
        a(f"ds_add_rtn_u32 v{RK + i}, v{AD + i}, v41")
    for i in range(4):
        a(f"v_mad_i32_i24 v{DST + i}, v{T0 + i}, s46, v{DST + i}")
    for i in range(4):
        a(f"v_mul_u32_u24 v{T0 + i}, 43, v{DST + i}")
    for i in range(4):
        a(f"v_lshrrev_b32 v{T0 + i}, 8, v{T0 + i}")
    for i in range(4):
        a(f"v_lshlrev_b32 v{HI + i}, 2, v{DST + i}")
    for i in range(4):
        a(f"v_mad_i32_i24 v{DST + i}, v{T0 + i}, -6, v{DST + i}")
    a("s_waitcnt vmcnt(1)")
    for j in range(2):
        a(f"v_lshlrev_b32 v{T0 + 2 * j}, 16, v{EA + j}")
        a(f"v_and_b32 v{T0 + 2 * j + 1}, s50, v{EA + j}")
    for j in range(2):
        a(f"v_pk_mul_f32 {vr(T0 + 2 * j, 2)}, {vr(T0 + 2 * j, 2)}, s[48:49]")
    for j in range(2):
        a(f"v_cvt_pk_bf16_f32 v{EA + j}, v{T0 + 2 * j}, v{T0 + 2 * j + 1}")
    for j in range(2):
        a(f"v_lshl_or_b32 v{HI + 2 * j}, v{EA + j}, 16, v{HI + 2 * j}")
        a(f"v_and_or_b32 v{HI + 2 * j + 1}, v{EA + j}, s50, v{HI + 2 * j + 1}")
    for i in range(4):
        a(f"v_lshlrev_b32 v{T0 + i}, v{DST + i}, s54")
    a("s_waitcnt vmcnt(0)")
    for i in range(4):
        a(f"v_lshl_add_u32 v{SRC + i}, v{DST + i}, 20, v{SRC + i}")
    for i in range(4):
        a(f"v_xad_u32 v{SRC + i}, v{T0 + i}, s47, v{SRC + i}")
    C0, O0 = 32, 36
    a(f"""s_mov_b64 exec, -1
v_lshlrev_b32 v42, 4, v2
s_waitcnt lgkmcnt(0)
s_barrier
""")
    stamp(3)
    a(f"""ds_read_b128 {vr(C0, 4)}, v42
s_waitcnt lgkmcnt(0)
v_add_u32 v43, v{C0}, v{C0 + 1}
v_add3_u32 v43, v43, v{C0 + 2}, v{C0 + 3}
v_mov_b32 v44, v43
""")
    scan_add(a, [44])
    a(f"""v_sub_u32 v{O0}, v44, v43
v_add_u32 v{O0 + 1}, v{O0}, v{C0}
v_add_u32 v{O0 + 2}, v{O0 + 1}, v{C0 + 1}
v_add_u32 v{O0 + 3}, v{O0 + 2}, v{C0 + 2}
ds_write_b128 v42, {vr(O0, 4)} offset:1024
s_cmp_lg_u32 s3, 7
s_cbranch_scc1 K1_NOTAB
""")
    for i in range(4):
        a(f"v_lshl_or_b32 v{C0 + i}, v{C0 + i}, 16, v{O0 + i}")
    a(f"""buffer_store_dwordx4 {vr(C0, 4)}, v42, s[16:19], s52 offen{SC}
s_branch K1_SCAT_DONE
K1_NOTAB:
s_mov_b64 exec, s[44:45]
""")
    for i in range(4):
        a(f"ds_read_b32 v{AD + i}, v{AD + i} offset:1024")
    for i in range(4):
        a(f"s_waitcnt lgkmcnt({3 - i})")
        a(f"v_add_lshl_u32 v{AD + i}, v{AD + i}, v{RK + i}, 3")
    for i in range(4):
        a(f"v_add_u32 v{AD + i}, 2048, v{AD + i}")
        a(f"ds_write2_b32 v{AD + i}, v{SRC + i}, v{HI + i} offset0:0 offset1:1")
    a(f"""s_mov_b64 exec, -1
K1_SCAT_DONE:
v_cmp_gt_u32 vcc, {(CH * 8 - 8192) // 16}, v0
s_waitcnt lgkmcnt(0)
s_barrier
""")
    stamp(4)
    a(f"""ds_read_b128 v[4:7], v3 offset:2048
ds_read_b128 v[8:11], v3 offset:{2048 + 8192}
s_waitcnt lgkmcnt(1)
buffer_store_dwordx4 v[4:7], v3, s[16:19], s51 offen{SC}
s_mov_b64 exec, vcc
s_waitcnt lgkmcnt(0)
buffer_store_dwordx4 v[8:11], v3, s[16:19], s53 offen{SC}
""")
    fin()
    a("K1_EXIT:\ns_endpgm")
    a(f"""K1_GEMM:
; GEMM role: B' rows of one bin, weight fragment repack, small constants
s_mul_i32 s40, s2, {BN * 256}
s_sub_u32 s22, {N * 256}, s40
s_min_u32 s22, s22, {BN * 256}
s_mov_b32 s23, {FMT}
s_mov_b32 s26, {258 * 256}
s_mov_b32 s27, {FMT}
v_lshrrev_b32 v3, 4, v2
v_and_b32 v4, 15, v2
v_lshlrev_b32 v5, 1, v3
v_xor_b32 v5, v5, v4
v_lshlrev_b32 v5, 4, v5
v_lshl_or_b32 v5, v3, 8, v5
v_xor_b32 v6, 128, v5
s_and_b32 s41, s3, 3
s_lshl_b32 s41, s41, 2
v_or_b32 v7, s41, v3
v_xor_b32 v7, v7, v4
v_lshlrev_b32 v7, 4, v7
v_lshl_or_b32 v7, v3, 8, v7
s_lshl_b32 s42, s3, 12
s_add_u32 s43, s42, 32768
s_lshl_b32 s44, s3, 10
s_add_u32 s45, s44, 8192
s_mov_b32 m0, s42
s_waitcnt lgkmcnt(0)
s_add_u32 s20, s20, s40
s_addc_u32 s21, s21, 0
buffer_load_dwordx4 v5, s[24:27], s43 offen lds
buffer_load_dwordx4 v5, s[24:27], s43 offen offset:1024 lds
buffer_load_dwordx4 v6, s[24:27], s43 offen offset:2048 lds
buffer_load_dwordx4 v6, s[24:27], s43 offen offset:3072 lds
s_add_u32 m0, s44, 32768
buffer_load_dwordx4 v7, s[20:23], s44 offen lds
s_add_u32 m0, s45, 32768
buffer_load_dwordx4 v7, s[20:23], s45 offen lds
s_cmp_ge_u32 s3, 4
s_cbranch_scc1 K1_REPACK
""")
    TA, HA, AF, BF, AC = 8, 16, 20, 36, 68
    a(f"""v_bfe_u32 v5, v2, 2, 2
v_and_b32 v6, 1, v3
v_lshl_or_b32 v6, v6, 2, v5
v_lshl_or_b32 v5, v3, 3, v5
v_lshlrev_b32 v5, 8, v5
v_lshl_or_b32 v5, v6, 5, v5
v_and_b32 v6, 3, v2
v_lshl_or_b32 v{TA}, v6, 3, v5
""")
    for t in range(1, 8):
        a(f"v_xor_b32 v{TA + t}, {t << 5}, v{TA}")
    a(f"""v_xor_b32 v5, v3, v4
v_lshlrev_b32 v5, 4, v5
v_lshl_or_b32 v5, v4, 8, v5
v_add_u32 v{HA}, s42, v5
""")
    for ks in range(1, 4):
        a(f"v_xor_b32 v{HA + ks}, {ks << 6}, v{HA}")
    a(f"""s_add_u32 s36, s16, {BP_OFF}
s_addc_u32 s37, s17, 0
s_add_u32 s36, s36, s40
s_addc_u32 s37, s37, 0
s_mov_b32 s38, {BN * 256}
s_mov_b32 s39, {FMT}
s_mov_b32 s48, {f32(-LOG2E)}
s_mov_b32 s49, {f32(-LOG2E)}
v_lshlrev_b32 v5, 10, v3
v_lshl_or_b32 v5, v4, 4, v5
""")
    stamp(1)
    a("s_waitcnt vmcnt(0)\ns_barrier")
    stamp(2)
    for ks in range(4):
        a(f"ds_read_b128 {vr(AF + 4 * ks, 4)}, v{HA + ks} offset:32768")
    DEPTH = 4
    jobs = [(ks, t) for ks in range(4) for t in range(8)]

    def rd(j):
        ks, t = jobs[j]
        d = BF + 4 * (j % 8)
        a(f"ds_read_b64_tr_b16 {vr(d, 2)}, v{TA + t} offset:{ks * 8192}")
        a(f"ds_read_b64_tr_b16 {vr(d + 2, 2)}, v{TA + t} offset:{ks * 8192 + 1024}")
    for j in range(DEPTH):
        rd(j)
    for j, (ks, t) in enumerate(jobs):
        if j + DEPTH < 32:
            rd(j + DEPTH)
        left = min(DEPTH, 31 - j)
        a(f"s_waitcnt lgkmcnt({2 * left})")
        c = "0" if ks == 0 else vr(AC + 4 * t, 4)
        a(f"v_mfma_f32_16x16x32_bf16 {vr(AC + 4 * t, 4)}, {vr(AF + 4 * ks, 4)}, {vr(BF + 4 * (j % 8), 4)}, {c}")
    stamp(3)
    for t in range(8):
        for hh in range(2):
            a(f"v_pk_mul_f32 {vr(AC + 4 * t + 2 * hh, 2)}, {vr(AC + 4 * t + 2 * hh, 2)}, s[48:49]")
    for r in range(4):
        for u in range(4):
            a(f"v_cvt_pk_bf16_f32 v{BF + 4 * r + u}, v{AC + 8 * u + r}, v{AC + 8 * u + 4 + r}")
        a(f"buffer_store_dwordx4 {vr(BF + 4 * r, 4)}, v5, s[36:39], s42 offen offset:{256 * r}{SC}")
    fin()
    a("s_endpgm")
    a(f"""K1_REPACK:
s_mov_b32 s30, 65536
s_mov_b32 s31, {FMT}
s_cmp_eq_u32 s3, 7
s_cbranch_scc1 K1_CONST
s_mul_i32 s46, s2, 3
s_add_u32 s46, s46, s3
s_sub_u32 s46, s46, 4
s_bfe_u32 s47, s46, 0x20006
s_bfe_u32 s48, s46, 0x30003
s_bfe_u32 s49, s46, 0x10002
s_bfe_u32 s50, s46, 0x10001
s_and_b32 s51, s46, 1
v_and_b32 v3, 7, v2
v_lshrrev_b32 v4, 3, v2
s_lshl_b32 s52, s48, 1
s_add_u32 s52, s52, s49
s_lshl_b32 s52, s52, 10
s_lshl_b32 s55, s46, 7
s_add_u32 s55, s55, {WF_OFF}
v_lshlrev_b32 v7, 1, v2
s_cmp_ge_u32 s46, 256
s_cbranch_scc1 K1_RP_H
s_lshr_b32 s53, s47, 1
s_lshl_b32 s53, s53, 3
s_and_b32 s54, s47, 1
s_add_u32 s53, s53, s54
s_lshl_b32 s54, s50, 2
s_add_u32 s53, s53, s54
s_lshl_b32 s54, s51, 1
s_add_u32 s53, s53, s54
s_add_u32 s52, s52, s53
s_lshl_b32 s52, s52, 1
v_lshlrev_b32 v5, 8, v3
v_lshl_or_b32 v5, v4, 5, v5
buffer_load_ushort v6, v5, s[24:27], s52 offen
s_branch K1_RP_ST
K1_RP_H:
s_lshl_b32 s53, s47, 5
s_lshl_b32 s54, s51, 4
s_add_u32 s53, s53, s54
s_add_u32 s53, s53, s50
v_lshlrev_b32 v5, 8, v3
s_cmp_ge_u32 s46, 512
s_cbranch_scc0 K1_RP_H1
s_lshr_b32 s52, s48, 2
s_lshl_b32 s52, s52, 2
s_and_b32 s54, s48, 1
s_lshl_b32 s54, s54, 6
s_add_u32 s52, s52, s54
s_lshl_b32 s54, s49, 5
s_add_u32 s52, s52, s54
s_and_b32 s54, s48, 2
s_add_u32 s52, s52, s54
s_add_u32 s52, s52, 128
s_lshl_b32 s52, s52, 7
v_lshrrev_b32 v5, 1, v3
v_lshlrev_b32 v5, 11, v5
v_and_b32 v6, 1, v3
v_lshl_or_b32 v5, v6, 8, v5
K1_RP_H1:
s_add_u32 s52, s52, s53
s_lshl_b32 s52, s52, 1
v_lshl_or_b32 v5, v4, 2, v5
buffer_load_ushort v6, v5, s[28:31], s52 offen
K1_RP_ST:
s_waitcnt vmcnt(0)
s_barrier
buffer_store_short v6, v7, s[16:19], s55 offen{SC}
""")
    fin()
    a(f"""s_endpgm
K1_CONST:
s_load_dwordx2 s[32:33], s[0:1], 48
s_waitcnt vmcnt(0) lgkmcnt(0)
s_barrier
s_cmp_lg_u32 s2, 0
s_cbranch_scc1 K1_EXIT2
s_mov_b32 s34, 256
s_mov_b32 s35, {FMT}
s_mov_b32 s46, 65536
s_mov_b32 s47, {CON_OFF}
v_and_b32 v3, 7, v2
v_lshlrev_b32 v3, 5, v3
v_bfe_u32 v4, v2, 4, 1
v_lshl_or_b32 v3, v4, 3, v3
v_bfe_u32 v4, v2, 3, 1
v_lshl_or_b32 v3, v4, 2, v3
v_lshrrev_b32 v4, 5, v2
v_lshl_or_b32 v4, v4, 1, v3
buffer_load_ushort v8, v4, s[24:27], s46 offen
buffer_load_ushort v9, v4, s[24:27], s46 offen offset:16
buffer_load_ushort v10, v4, s[24:27], s46 offen offset:256
buffer_load_ushort v11, v4, s[24:27], s46 offen offset:272
buffer_load_ushort v12, v3, s[32:35], 0 offen
buffer_load_ushort v13, v3, s[32:35], 0 offen offset:2
buffer_load_ushort v14, v3, s[32:35], 0 offen offset:16
buffer_load_ushort v15, v3, s[32:35], 0 offen offset:18
v_lshlrev_b32 v5, 3, v2
v_and_b32 v6, 31, v2
v_lshlrev_b32 v6, 4, v6
s_waitcnt vmcnt(0)
v_lshl_or_b32 v8, v10, 16, v8
v_lshl_or_b32 v9, v11, 16, v9
""")
    for i in range(4):
        a(f"v_lshlrev_b32 v{12 + i}, 16, v{12 + i}")
        a(f"v_mul_f32 v{12 + i}, {f32(-LN2 * KAPPA)}, v{12 + i}")
    a(f"""buffer_store_dwordx2 v[8:9], v5, s[16:19], s47 offen{SC}
buffer_store_dwordx4 v[12:15], v6, s[16:19], s47 offen offset:512{SC}
K1_EXIT2:
""")
    fin()
    a("s_endpgm")


vACC, vC, vD, vG, vE, vM = 192, 160, 128, 96, 80, 64
vP, vX, vY, vI, vSEL, vWX = 56, 48, 40, 32, 28, 24
vQ = 20
vT, vSRC = 18, 16
vAX, vAS, vAT, vK, vOFF, vL4, vIDX, vLR, vFA = 15, 14, 13, 12, 11, 10, 9, 8, 7
vL = 6


def gen_k2(a, opt):
    sW = 3
    sKP = 24
    sEX = 26
    sMORE, sMODE, sTOT, sBASE, sPR, sRO = 34, 35, 36, 37, 38, 39
    sCUR, sEND, sEVT, sSW, sFL, sP0, sPF, sRES = 40, 41, 42, 43, 44, 45, 46, 47
    sT = 48
    sLF, sC, sNL = 63, 64, 65
    diag = opt.get("diag")
    SO = " " + opt.get("so", "").replace("_", " ") if opt.get("so") else ""
    vCP, vCD = vT, vT + 1
    vPD = vQ

    entry, stamp, dump = diag_tools(a, opt, 12, vL, DBG_OFF)

    def hop1_addr():
        a(f"""v_lshlrev_b32 v1, 10, v{vL}
s_lshl_b32 s{sT}, s{sW}, 15
s_lshl_b32 s{sT + 1}, s2, 2
s_add_u32 s{sT}, s{sT}, s{sT + 1}
s_add_u32 s{sT}, s{sT}, {TAB_OFF}
""")

    def hop1():
        a(f"""s_mov_b32 exec_hi, 0
buffer_load_dword v{vCP}, v1, s[12:15], s{sT} offen
s_mov_b32 exec_hi, -1
""")

    def zero_acc(z):
        for cb in range(4):
            a(f"v_mfma_f32_32x32x16_bf16 {vr(vACC + 16 * cb, 16)}, {vr(z, 4)}, {vr(z, 4)}, 0")

    def pos_dma(j):
        out = []
        if j % 4 == 0:
            out.append(f"s_add_u32 s{sT + 13}, s{sT + 12}, {1024 * j}")
            out.append(f"s_add_u32 m0, s{sT + 13}, {POS}")
        out.append(f"buffer_load_dwordx4 v5, s[8:11], s{sT + 13} offen offset:{1024 * (j % 4)} lds")
        return "\n".join(out)

    def pos_extra(tag):
        a(f"""s_cmp_ge_u32 s{sW}, 2
s_cbranch_scc1 K2_NOEXTRA{tag}
s_lshl_b32 s{sT + 13}, s{sW}, 10
s_add_u32 s{sT + 13}, s{sT + 13}, {72 * 1024}
s_add_u32 m0, s{sT + 13}, {POS}
buffer_load_dwordx4 v5, s[8:11], s{sT + 13} offen lds
K2_NOEXTRA{tag}:
""")

    a(f""".globl {NAME}_kernel
.p2align 8
.type {NAME}_kernel,@function
{NAME}_kernel:
""")
    entry()
    a(f"""s_load_dwordx2 s[12:13], s[0:1], 80
s_load_dwordx2 s[4:5], s[0:1], 0
s_load_dwordx2 s[8:9], s[0:1], 8
s_load_dwordx2 s[20:21], s[0:1], 64
s_setprio 3
s_cmp_ge_u32 s2, {NB}
s_cbranch_scc1 K2_EXIT
v_lshrrev_b32 v1, 6, v0
v_and_b32 v{vL}, 63, v0
s_mov_b32 s14, {WS1_SIZE}
s_mov_b32 s15, {FMT}
v_readfirstlane_b32 s{sW}, v1
""")
    hop1_addr()
    a(f"""s_mul_i32 s{sT + 2}, s2, {BN * 256}
s_sub_u32 s6, {N * 256}, s{sT + 2}
s_min_u32 s6, s6, {BN * 256}
s_mov_b32 s7, {FMT}
v_lshrrev_b32 v3, 4, v{vL}
v_and_b32 v4, 15, v{vL}
s_and_b32 s{sT + 3}, s{sW}, 3
s_lshl_b32 s{sT + 3}, s{sT + 3}, 2
v_or_b32 v2, s{sT + 3}, v3
v_xor_b32 v2, v2, v4
v_lshlrev_b32 v2, 4, v2
v_lshl_or_b32 v2, v3, 8, v2
s_lshl_b32 s{sT + 4}, s{sW}, 10
s_add_u32 s{sT + 5}, s{sT + 4}, 8192
s_lshl_b32 s{sT + 6}, s{sW}, 13
s_add_u32 s{sT + 6}, s{sT + 6}, {WF_OFF}
s_add_u32 s{sT + 7}, s{sT + 6}, 4096
v_lshlrev_b32 v5, 4, v{vL}
s_mov_b32 s10, {N * 6 + 8}
s_mov_b32 s11, {FMT}
s_add_u32 m0, s{sT + 4}, {HST}
s_waitcnt lgkmcnt(0)
""")
    hop1()
    a(f"""s_setprio 0
s_add_u32 s4, s4, s{sT + 2}
s_addc_u32 s5, s5, 0
buffer_load_dwordx4 v2, s[4:7], s{sT + 4} offen lds
s_cmp_ge_u32 s{sW}, 6
s_cbranch_scc1 K2_JOB67
s_add_u32 m0, s{sT + 5}, {HST}
buffer_load_dwordx4 v2, s[4:7], s{sT + 5} offen lds
K2_JOBRET:
""")
    for ks in range(8):
        a(f"buffer_load_dwordx4 {vr(vG + 4 * ks, 4)}, v5, s[12:15], s{sT + 6 + ks // 4} offen offset:{1024 * (ks % 4)}")
    a(f"""s_add_u32 s16, s12, {BP_OFF}
s_addc_u32 s17, s13, 0
s_or_b32 s17, s17, {256 << 16}
s_mov_b32 s18, {N}
s_mov_b32 s19, {FMT}
s_mov_b32 s{sKP}, {f32(KAPPA / (1 + DELTA))}
s_mov_b32 s{sKP + 1}, {f32(KAPPA / (1 + DELTA))}
s_mov_b32 s{sBASE}, 0
s_mul_i32 s{sRO}, s{sW}, {32 * CS * 8}
s_mov_b32 s{sC}, 256
v_mov_b64 {vr(vSEL, 2)}, 0
v_mov_b64 {vr(vSEL + 2, 2)}, 0
v_add_u32 v1, s{sT + 4}, v5
v_lshlrev_b32 v{vL4}, 2, v{vL}
ds_write_b128 v1, {vr(vSEL, 4)} offset:{TARR}
""")
    zero_acc(vSEL)
    a(f"""v_lshrrev_b32 v1, 5, v{vL}
v_bfe_u32 v2, v{vL}, 1, 1
v_lshlrev_b32 v{vSRC + 1}, 5, v1
v_lshl_or_b32 v{vSRC + 1}, v2, 4, v{vSRC + 1}
v_bfe_u32 v3, v{vL}, 2, 3
v_and_b32 v4, 1, v{vL}
v_lshl_or_b32 v3, v3, 1, v4
v_lshlrev_b32 v{vAS}, 3, v3
v_xor_b32 v2, v2, v1
v_lshl_or_b32 v{vAX}, v2, 24, v{vAS}
v_bfe_u32 v2, v{vL}, 3, 1
v_bfe_u32 v3, v{vL}, 2, 1
v_lshl_or_b32 v3, v2, 2, v3
v_lshl_or_b32 v3, v1, 3, v3
v_lshlrev_b32 v{vAT}, 3, v3
v_bfe_u32 v2, v{vL}, 4, 1
v_and_b32 v3, 3, v{vL}
v_lshl_or_b32 v3, v2, 2, v3
v_add_u32 v3, 24, v3
v_lshlrev_b32 v{vK}, v3, 1
v_mov_b32 v{vIDX}, 0xdddddddd
v_and_b32 v2, 31, v{vL}
v_mul_u32_u24 v3, {RST}, v1
v_lshl_add_u32 v3, v2, 3, v3
v_add_u32 v{vLR}, {ROWS}, v3
v_lshlrev_b32 v3, 3, v1
v_sub_u32 v2, v2, v3
v_lshlrev_b32 v4, 4, v2
v_mov_b32 v0, 0x3f80
v_lshlrev_b32 v4, v4, v0
v_ashrrev_i32 v2, 1, v2
""")
    for u in range(2):
        for q in range(4):
            a(f"v_cmp_eq_u32 s[{sT + 2 * q}:{sT + 2 * q + 1}], {8 * u + q}, v2")
        for q in range(4):
            a(f"v_cndmask_b32 v{vI + 4 * u + q}, 0, v4, s[{sT + 2 * q}:{sT + 2 * q + 1}]")
    for i in range(0, 16, 2):
        a(f"v_mov_b64 {vr(vM + i, 2)}, 0")
    a(f"""v_and_b32 v3, 31, v{vL}
v_and_b32 v4, 15, v{vL}
v_xor_b32 v2, v1, v4
v_lshlrev_b32 v2, 4, v2
v_lshl_or_b32 v{vP}, v3, 8, v2
""")
    for ks in range(1, 8):
        a(f"v_xor_b32 v{vP + ks}, {ks << 5}, v{vP}")
    a(f"""s_cmp_eq_u32 s{sW}, 1
s_cbranch_scc0 K2_NOSEL2
ds_write_b128 v5, {vr(vSEL, 4)} offset:{SEL2}
K2_NOSEL2:
s_cmp_eq_u32 s{sW}, 0
s_cbranch_scc0 K2_NOROWB
v_add_u32 v1, -1, v{vL}
v_lshlrev_b32 v4, 4, v1
v_lshlrev_b32 v4, v4, v0
v_ashrrev_i32 v2, 1, v1
v_mov_b32 v{vE}, 0
""")
    for q in range(3):
        a(f"v_cmp_eq_u32 s[{sT + 2 * q}:{sT + 2 * q + 1}], {q}, v2")
    for q in range(3):
        a(f"v_cndmask_b32 v{vE + 1 + q}, 0, v4, s[{sT + 2 * q}:{sT + 2 * q + 1}]")
    a(f"""ds_write_b128 v5, {vr(vE, 4)} offset:{ROWB}
K2_NOROWB:
""")
    stamp(1)
    a("s_waitcnt vmcnt(10)")
    stamp(2)
    MK = vX
    RQ = vE
    RK = vE + 8
    AD = vE + 12
    a(f"""K2_BATCH:
s_mov_b32 exec_hi, 0
v_lshrrev_b32 v1, 16, v{vCP}
v_and_b32 v{vCD}, 0xffff, v{vCP}
v_mov_b32 v2, v1
s_mov_b32 s{sT}, {CS}
v_mad_u32_u24 v{vCD}, v{vL}, s{sT}, v{vCD}
s_lshl_b32 s{sT}, s{sW}, 10
s_mul_i32 s{sT + 12}, s{sW}, {9 * 1024}
""")
    scan_add(a, [2], n64=False)
    a(f"""v_sub_u32 v1, v2, v1
v_readlane_b32 s{sTOT}, v2, 31
v_sub_u32 v{vCD}, v{vCD}, v1
v_sub_u32_e64 v1, v1, s{sBASE} clamp
v_cmpx_gt_u32 vcc, {RB}, v1
v_lshl_add_u32 v1, v1, 2, s{sT}
ds_max_u32 v1, v{vCD} offset:{TARR}
s_mov_b64 exec, -1
v_add_u32 v1, s{sT}, v{vL4}
""")
    for k in range(4):
        a(f"ds_read_b32 v{MK + k}, v1 offset:{TARR + 256 * k}")
    a(f"s_sub_i32 s{sT + 1}, s{sTOT}, s{sBASE}")
    for k in range(4):
        a(f"v_cmp_gt_i32 s[{sEX + 2 * k}:{sEX + 2 * k + 1}], s{sT + 1}, v{vL}")
        if k < 3:
            a(f"s_sub_i32 s{sT + 1}, s{sT + 1}, 64")
    a(f"""s_lshl_b32 s{sT + 2}, s{sBASE}, 3
s_add_u32 s{sT + 2}, s{sT + 2}, s{sRO}
s_waitcnt lgkmcnt(0)
""")
    scan_add(a, [MK + k for k in range(4)], op="v_max_u32")
    for k in range(3):
        a(f"v_readlane_b32 s{sT + 4 + k}, v{MK + k}, 63")
    a(f"v_add_lshl_u32 v{MK}, v{MK}, v{vL}, 3")
    a(f"buffer_load_dwordx2 {vr(RQ, 2)}, v{MK}, s[12:15], s{sT + 2} offen")
    for k in range(1, 3):
        a(f"s_max_u32 s{sT + 4 + k}, s{sT + 4 + k}, s{sT + 3 + k}")
    for k in range(1, 4):
        a(f"v_max_u32 v{MK + k}, s{sT + 3 + k}, v{MK + k}")
        a(f"v_add_lshl_u32 v{MK + k}, v{MK + k}, v{vL}, 3")
        a(f"buffer_load_dwordx2 {vr(RQ + 2 * k, 2)}, v{MK + k}, s[12:15], s{sT + 2} offen offset:{512 * k}")
    stamp(3)
    a(f"""s_cmp_lg_u32 s{sBASE}, 0
s_cbranch_scc1 K2_SKIPGEMM
""")
    for j in range(3):
        a(pos_dma(j))
    a(f"""s_waitcnt vmcnt(15) lgkmcnt(0)
s_barrier
""")
    stamp(4)
    jobs = [(ks, rho) for ks in range(8) for rho in range(2)]
    DEP = 7

    def rdh(j):
        ks, rho = jobs[j]
        a(f"ds_read_b128 {vr(vD + 4 * (j % 8), 4)}, v{vP + ks} offset:{HST + 8192 * rho}")
    a(f"""v_lshlrev_b32 v1, 1, v{vL4}
v_and_b32 v2, 496, v5
ds_read_b32 v{vY}, v1 offset:{CONL}
ds_read_b32 v{vY + 4}, v1 offset:{CONL + 4}
ds_read_b128 {vr(vWX, 4)}, v2 offset:{CONL + 512}
""")
    for j in range(DEP):
        rdh(j)
    a("s_waitcnt vmcnt(7)")
    for j, (ks, rho) in enumerate(jobs):
        if j + DEP < 16:
            rdh(j + DEP)
        a(f"s_waitcnt lgkmcnt({min(DEP, 15 - j)})")
        c = "0" if ks == 0 else vr(vC + 16 * rho, 16)
        a(f"v_mfma_f32_32x32x16_bf16 {vr(vC + 16 * rho, 16)}, {vr(vD + 4 * (j % 8), 4)}, {vr(vG + 4 * ks, 4)}, {c}")
        if j % 2 == 1 and 3 + j // 2 < 9:
            a(pos_dma(3 + j // 2))
    stamp(5)
    a(f"""s_waitcnt vmcnt(9)
K2_RANK:
v_mov_b32 v0, 1
""")
    for k in range(4):
        a(f"v_and_b32 v{AD + k}, 0xff, v{RQ + 2 * k + 1}")
    for k in range(4):
        a(f"s_mov_b64 exec, s[{sEX + 2 * k}:{sEX + 2 * k + 1}]")
        a(f"ds_add_rtn_u32 v{RK + k}, v{AD + k}, v0 offset:{CNT}")
    a(f"""s_mov_b64 exec, -1
s_lshl_b32 s{sT}, s{sW}, 2
v_mov_b32 v1, s{sT}
v_mov_b32 v2, s{sTOT}
ds_write_b32 v1, v2 offset:{CNT + 224}
s_cmp_lg_u32 s{sBASE}, 0
s_cbranch_scc1 K2_NOY
""")
    pos_extra("A")
    a(f"""s_mov_b32 s{sT}, {f32(-LOG2E)}
s_mov_b32 s{sT + 1}, {f32(-LOG2E)}
""")
    for i in range(0, 28, 2):
        a(f"v_pk_mul_f32 {vr(vC + i, 2)}, {vr(vC + i, 2)}, s[{sT}:{sT + 1}]")
    a(f"""v_mov_b64 {vr(vC + 28, 2)}, 0
v_mov_b64 {vr(vC + 30, 2)}, 0
s_cmp_ge_u32 s{sW}, 4
s_cbranch_scc1 K2_HIY
v_lshrrev_b32 v1, 5, v{vL}
v_and_b32 v2, 124, v{vL4}
v_lshl_or_b32 v2, v1, 10, v2
s_lshl_b32 s{sT + 2}, s{sW}, 7
s_add_u32 s{sT + 2}, s{sT + 2}, {YTAB}
v_add_u32 v2, s{sT + 2}, v2
""")
    for i in range(0, 28, 2):
        rho, r = i // 16, i % 16
        pair = 16 * rho + 4 * (r >> 2) + ((r & 3) >> 1)
        a(f"v_cvt_pk_bf16_f32 v{vD + i // 2}, v{vC + i}, v{vC + i + 1}")
        a(f"ds_write_b32 v2, v{vD + i // 2} offset:{512 * pair}")
    a(f"""K2_NOY:
s_waitcnt lgkmcnt(0)
""")
    stamp(6)
    a(f"""s_barrier
ds_read_b32 v3, v{vL4} offset:{CNT}
v_cmp_gt_u32 vcc, {BN}, v{vL}
s_add_u32 s{sT + 8}, s{sBASE}, {RB}
v_bfrev_b32 v1, -2
s_waitcnt lgkmcnt(0)
v_max_u32 v4, 4, v3
v_cndmask_b32 v4, 0, v4, vcc
v_cmp_lt_u32 s[{sT + 6}:{sT + 7}], s{sT + 8}, v3
v_mov_b32 v2, v4
""")
    scan_add(a, [2])
    a(f"""v_sub_u32 v4, v2, v4
v_readlane_b32 s{sT}, v2, 63
""")
    for k in range(4):
        a(f"ds_bpermute_b32 v{MK + k}, v{AD + k}, v4")
    a(f"""v_cndmask_b32 v{vOFF}, v1, v4, vcc
s_lshr_b32 s{sMORE}, s{sT + 7}, 24
v_mov_b32 v0, 0xff00ffff
v_mov_b32 v1, 252
s_cmp_gt_u32 s{sW}, 4
s_cbranch_scc1 K2_NOPAD
s_cmp_eq_u32 s{sW}, 4
s_cbranch_scc1 K2_TAILPAD
v_add_lshl_u32 v4, v4, s{sW}, 3
s_mov_b64 exec, vcc
v_cmpx_ge_u32 vcc, s{sW}, v3
s_branch K2_DOPAD
K2_TAILPAD:
v_add_lshl_u32 v4, s{sT}, v{vL}, 3
K2_DOPAD:
ds_write_b64 v4, v[0:1] offset:{CREC}
s_mov_b64 exec, -1
K2_NOPAD:
s_add_u32 s{sT}, s{sT}, 15
s_lshr_b32 s{sT}, s{sT}, 4
s_lshr_b32 s{sT + 1}, s{sT}, 3
s_and_b32 s{sT + 2}, s{sT}, 7
s_mul_i32 s{sCUR}, s{sW}, s{sT + 1}
s_min_u32 s{sT + 3}, s{sW}, s{sT + 2}
s_add_u32 s{sCUR}, s{sCUR}, s{sT + 3}
s_add_u32 s{sEND}, s{sCUR}, s{sT + 1}
s_cmp_lt_u32 s{sW}, s{sT + 2}
s_addc_u32 s{sEND}, s{sEND}, 0
s_waitcnt lgkmcnt(0)
""")
    for k in range(4):
        a(f"v_add_lshl_u32 v{MK + k}, v{MK + k}, v{RK + k}, 3")
    for k in range(4):
        a(f"s_mov_b64 exec, s[{sEX + 2 * k}:{sEX + 2 * k + 1}]")
        a(f"ds_write_b64 v{MK + k}, {vr(RQ + 2 * k, 2)} offset:{CREC}")
    a("s_mov_b64 exec, -1")

    def window(first_step_sgpr):
        a(f"""s_lshl_b32 s{sT + 10}, s{first_step_sgpr}, 4
v_cmp_ge_u32 vcc, s{sT + 10}, v{vOFF}
s_bcnt1_i32_b64 s{sT + 9}, vcc
s_sub_u32 s{sT + 9}, s{sT + 9}, 1
s_lshr_b32 s{sP0}, s{sT + 9}, 1
s_lshl_b32 s{sT}, s{sP0}, 1
s_add_u32 s{sT}, s{sT}, 6
v_readlane_b32 s{sSW}, v{vOFF}, s{sT}
s_mul_i32 s{sT}, s{sP0}, 43
s_lshr_b32 s{sT}, s{sT}, 7
s_mul_i32 s{sT}, s{sT}, 3
s_lshr_b32 s{sSW}, s{sSW}, 4
""")

    def load_y():
        for i in range(3):
            a(f"""s_add_u32 s{sT + 4}, s{sT}, {i}
s_cmp_lt_u32 s{sT + 4}, s{sP0}
s_cselect_b32 s{sT + 1}, 3, 0
s_add_u32 s{sT + 4}, s{sT + 4}, s{sT + 1}
s_lshl_b32 s{sT + 4}, s{sT + 4}, 9
v_add_u32 v{1 + i}, s{sT + 4}, v{vL4}
ds_read_b32 v{vY + 1 + i}, v{1 + i} offset:{YTAB}
ds_read_b32 v{vY + 5 + i}, v{1 + i} offset:{YTAB + 256}
""")

    window(sCUR)
    a(f"""s_mov_b32 s{sPF}, s{sP0}
s_sub_u32 s{sRES}, s{sP0}, s{sT}
""")
    load_y()
    a(f"""v_readlane_b32 s{sT + 2}, v{vOFF}, s{sT + 9}
s_lshl_b32 s{sT + 11}, s{sEND}, 4
v_cmp_gt_u32 vcc, s{sT + 11}, v{vOFF}
s_bcnt1_i32_b64 s{sNL}, vcc
s_sub_u32 s{sNL}, s{sNL}, 1
s_mul_i32 s{sT + 3}, s{sP0}, {2 * RST}
s_and_b32 s{sT + 4}, s{sT + 9}, 1
s_add_u32 s{sT + 5}, s{sW}, 56
s_sub_u32 s{sT + 5}, s{sT + 5}, s{sT + 4}
s_mul_i32 s{sT + 5}, s{sT + 5}, {RST}
s_cmp_lt_u32 s{sT + 2}, s{sT + 10}
s_cselect_b32 s{sT + 5}, s{sT + 5}, s{sT + 3}
s_cmp_eq_u32 s{sT + 4}, 0
s_cselect_b32 s{sT + 6}, s{sT + 3}, s{sT + 5}
s_cselect_b32 s{sT + 5}, s{sT + 5}, 0x1000000
v_add_u32 v{vFA}, s{sT + 6}, v{vLR}
s_mov_b32 exec_hi, 0
v_add_u32 v{vFA}, s{sT + 5}, v{vLR}
s_mov_b32 exec_hi, -1
s_lshl_b32 s{sT + 2}, s{sT + 9}, 3
s_add_u32 s{sT + 3}, s{sT + 2}, s{sW}
s_lshl_b32 s{sT + 3}, s{sT + 3}, 1
s_lshl_b32 s{sT + 4}, s{sW}, 2
v_mov_b32 v0, s{sT + 3}
v_mov_b32 v4, 0x3f80
ds_write_b16 v0, v4 offset:{SEL2}
v_mov_b32 v0, s{sT + 4}
v_mov_b32 v4, s{sT + 2}
ds_write_b32 v0, v4 offset:{HEAD}
s_lshl_b32 s{sT + 8}, s{sCUR}, 7
v_lshl_add_u32 v0, v{vL}, 3, s{sT + 8}
s_add_u32 s{sT + 8}, s{sT + 8}, {CREC}
v_add_u32 v{vAX}, s{sT + 8}, v{vAX}
v_add_u32 v{vAS}, s{sT + 8}, v{vAS}
v_add_u32 v{vAT}, s{sT + 8}, v{vAT}
s_mov_b32 s{sFL}, -1
s_sub_u32 s{sEVT}, s{sSW}, 1
s_sub_i32 s{sPR}, s{sEND}, 2
s_max_i32 s{sPR}, s{sPR}, s{sCUR}
s_cmp_lt_u32 s{sW}, 4
s_cselect_b32 s{sPR}, s{sPR}, -1
s_min_u32 s{sEVT}, s{sEVT}, s{sPR}
s_sub_u32 s{sT + 11}, s{sT + 11}, s{sT + 10}
s_mov_b32 s{sT + 2}, {f32(KAPPA)}
s_mov_b32 s{sT + 3}, 0xffff0000
s_mov_b32 s{sT + 4}, {POS}
""")
    stamp(7)
    a(f"""s_waitcnt vmcnt(0) lgkmcnt(0)
s_barrier
""")
    stamp(8)
    R2, PP, RA, PA = vD, vD + 8, vD + 16, vE
    a(f"""ds_read_u16 v{vSRC}, v{vAS}
ds_read_u8 v{vX}, v{vAX} offset:2
ds_read_u8 v{vX + 4}, v{vAX} offset:{128 + 2}
ds_read2_b32 {vr(vT, 2)}, v{vAT} offset0:0 offset1:4
s_waitcnt lgkmcnt(3)
""")
    for u in range(4):
        a(f"buffer_load_dwordx4 {vr(vG + 4 * u, 4)}, {vr(vSRC, 2)}, s[16:19], 0 idxen offen offset:{64 * u}")
    a(f"""ds_read_u16 v{vSRC}, v{vAS} offset:128
K2_ST2:
""")
    for k in range(4):
        a(f"ds_read_b64 {vr(R2 + 2 * k, 2)}, v0 offset:{CREC + 512 * k}")
    for k in range(4):
        a(f"v_cmp_gt_i32 s[{sEX + 2 * k}:{sEX + 2 * k + 1}], s{sT + 11}, v{vL}")
        a(f"s_sub_i32 s{sT + 11}, s{sT + 11}, 64")
    a("s_waitcnt lgkmcnt(0)")
    for k in (3, 2, 1, 0):
        a(f"""s_mov_b64 exec, s[{sEX + 2 * k}:{sEX + 2 * k + 1}]
v_mad_u32_u16 v{PA + k}, v{R2 + 2 * k}, 6, s{sT + 4}
v_lshlrev_b32_sdwa v2, 2, v{R2 + 2 * k + 1} dst_sel:DWORD dst_unused:UNUSED_PAD src0_sel:DWORD src1_sel:BYTE_0
v_and_b32 v1, -4, v{PA + k}
ds_read_b128 {vr(RA + 4 * k, 4)}, v2 offset:{ROWA}
ds_read2_b32 {vr(PP + 2 * k, 2)}, v1 offset0:0 offset1:1
""")
    for k in (3, 2, 1, 0):
        p, ra, q = PP + 2 * k, RA + 4 * k, R2 + 2 * k
        a(f"s_mov_b64 exec, s[{sEX + 2 * k}:{sEX + 2 * k + 1}]")
        if k:
            a(f"s_cbranch_execz K2_SKIP{k}")
        a(f"""s_waitcnt lgkmcnt({2 * k})
v_alignbyte_b32 v2, v{p + 1}, v{p}, v{PA + k}
v_alignbyte_b32 v3, v{p + 1}, v{p + 1}, v{PA + k}
v_lshlrev_b32 v1, 16, v2
v_and_b32 v2, s{sT + 3}, v2
v_lshlrev_b32 v3, 16, v3
v_sub_f32 v1, v{ra}, v1
v_sub_f32 v2, v{ra + 1}, v2
v_sub_f32 v3, v{ra + 2}, v3
v_mul_f32 v4, v1, v1
v_cvt_pk_bf16_f32 v{p}, s{sT + 2}, v1
v_fmac_f32 v4, v2, v2
v_cvt_pk_bf16_f32 v{p + 1}, v2, v3
v_fmac_f32 v4, v3, v3
v_mul_f32 v4, {f32(-LOG2E)}, v4
v_cvt_pk_bf16_f32 v{q + 1}, v4, v{q + 1}
ds_write_b64 v0, {vr(p, 2)} offset:{TARR + 512 * k}
ds_write_b32 v0, v{q + 1} offset:{CREC + 512 * k + 4}
""")
        if k:
            a(f"K2_SKIP{k}:")
    a(f"""s_mov_b64 exec, -1
v_add_u32 v0, 2048, v0
s_cmp_gt_i32 s{sT + 11}, 0
s_cbranch_scc1 K2_ST2
""")
    for u in range(4):
        a(f"buffer_load_dwordx4 {vr(vG + 16 + 4 * u, 4)}, {vr(vSRC, 2)}, s[16:19], 0 idxen offen offset:{64 * u}")
    a(f"""ds_read_b128 {vr(vX, 4)}, v{vX} offset:{ROWB}
ds_read_b32 v{vX}, v{vAX} offset:4
ds_read_b128 {vr(vX + 4, 4)}, v{vX + 4} offset:{ROWB}
ds_read_b32 v{vX + 4}, v{vAX} offset:{128 + 4}
ds_read_u16 v{vSRC}, v{vAS} offset:256
s_mul_i32 s{sT}, s{sW}, {RST}
s_add_u32 s{sT}, s{sT}, {ROWS + 56 * RST}
v_lshl_add_u32 v1, v{vL}, 4, s{sT}
""")
    stamp(9)
    a(f"""s_barrier
s_mov_b32 exec_hi, 0xffff
ds_write_b128 v1, {vr(vSEL, 4)}
s_mov_b32 exec_hi, -1
s_setprio 1
s_cmp_lt_u32 s{sW}, 4
s_cbranch_scc0 K2_PRIO
s_setprio 2
K2_PRIO:
s_waitcnt vmcnt(4) lgkmcnt(0)
""")

    def pre(d, g, x, tau):
        return [
            f"v_mfma_f32_32x32x16_bf16 {vr(d, 16)}, {vr(g + 8 * tau, 4)}, {vr(vI, 4)}, 0",
            f"v_mfma_f32_32x32x16_bf16 {vr(d, 16)}, {vr(g + 8 * tau + 4, 4)}, {vr(vI + 4, 4)}, {vr(d, 16)}",
            f"v_mfma_f32_32x32x16_bf16 {vr(d, 16)}, {vr(x, 4)}, {vr(vY + 4 * tau, 4)}, {vr(d, 16)}",
        ]

    def seg(tau):
        return [f"v_smfmac_f32_32x32x32_bf16 {vr(vACC + 16 * (2 * tau + s), 16)}, {vr(vSEL, 4)}, {vr(vM + 8 * s, 8)}, v{vIDX}"
                for s in range(2)]

    for m in pre(vD, vG, vX, 0):
        a(m)

    def tile(d, mp, ms, mid, extra):
        for r in range(16):
            if r in (0, 3, 6):
                a(mp[r // 3])
            if r == 9:
                if mid:
                    a("s_waitcnt lgkmcnt(0)")
                a(ms[0])
                for x in mid:
                    a(x)
            wide = "_e64" if (r in (2, 5) or (r == 8 and not mid) or r == 15) else ""
            a(f"v_exp_f32{wide} v{vE + r}, v{d + r}")
        for g in range(0, 16, 2):
            a(f"v_pk_fma_f32 {vr(vE + g, 2)}, {vr(vE + g, 2)}, s[{sKP}:{sKP + 1}], s[{sKP}:{sKP + 1}] clamp")
        for g in range(4):
            a(f"v_pk_mul_f32 {vr(vP + 2 * g, 2)}, {vr(vE + 4 * g, 2)}, {vr(vE + 4 * g + 2, 2)}")
        for g in range(2):
            a(f"v_pk_mul_f32 {vr(vQ + 2 * g, 2)}, {vr(vP + 4 * g, 2)}, {vr(vP + 4 * g + 2, 2)}")
        for g in range(4):
            a(f"v_pk_mul_f32 {vr(vE + 4 * g + 2, 2)}, {vr(d + 4 * g, 2)}, {vr(vE + 4 * g + 2, 2)}")
            a(f"v_pk_mul_f32 {vr(vE + 4 * g, 2)}, {vr(vE + 4 * g, 2)}, {vr(d + 4 * g + 2, 2)}")
        a(ms[1])
        for r in range(4):
            a(f"v_rcp_f32 v{vQ + r}, v{vQ + r}")
        for x in extra:
            a(x)
        for g in range(4):
            a(f"v_pk_mul_f32 {vr(vP + 2 * g, 2)}, {vr(vP + 2 * g, 2)}, {vr(vQ + 2 * (g // 2), 2)}")
        for g in range(4):
            o = vP + 2 * (g ^ 1)
            a(f"v_pk_mul_f32 {vr(vM + 2 * g, 2)}, {vr(vE + 4 * g + 2, 2)}, {vr(o, 2)}")
            a(f"v_pk_mul_f32 {vr(vM + 8 + 2 * g, 2)}, {vr(vE + 4 * g, 2)}, {vr(o, 2)}")

    TOFF = TARR - CREC

    def step(par):
        g, x = vG + 16 * par, vX + 4 * par
        gn, xn = vG + 16 * (1 - par), vX + 4 * (1 - par)
        ex = [f"v_and_or_b32 v{vT + i}, v{vT + i}, v{vK}, v{vAT}" for i in range(2)]
        tile(vD, pre(vD + 16, g, x, 1), seg(1), [], ex)
        for u in range(4):
            a(f"buffer_load_dwordx4 {vr(g + 4 * u, 4)}, {vr(vSRC, 2)}, s[16:19], 0 idxen offen offset:{64 * u}")
        a(f"""ds_read_b64_tr_b16 {vr(vSEL, 2)}, v{vT} offset:{TOFF + 128 * par}
ds_read_b64_tr_b16 {vr(vSEL + 2, 2)}, v{vT + 1} offset:{TOFF + 128 * par + 16}
ds_read_u8 v{x}, v{vAX} offset:{256 + 128 * par + 2}
ds_read2_b32 {vr(vT, 2)}, v{vAT} offset0:{32 * par + 32} offset1:{32 * par + 36}
ds_read_u16 v{vSRC}, v{vAS} offset:{384 + 128 * par}
s_cmp_eq_u32 s{sCUR}, s{sEVT}
s_cbranch_scc1 K2_EVT{par}
K2_RET{par}:
s_add_u32 s{sCUR}, s{sCUR}, 1
s_waitcnt vmcnt(4) lgkmcnt(5)
""")
        mid = [f"ds_read_b128 {vr(x, 4)}, v{x} offset:{ROWB}", f"ds_read_b32 v{x}, v{vAX} offset:{256 + 128 * par + 4}"]
        ex = []
        if par == 1:
            ex = [f"v_add_u32 v{vAX}, s{sC}, v{vAX}", f"v_add_u32 v{vAS}, s{sC}, v{vAS}", f"v_add_u32_e64 v{vAT}, s{sC}, v{vAT}"]
        tile(vD + 16, pre(vD, gn, xn, 0), seg(0), mid, ex)
        a(f"s_cmp_lt_u32 s{sCUR}, s{sEND}")
        a("s_cbranch_scc0 K2_DONE" if par == 0 else "s_cbranch_scc1 K2_LOOP")

    stamp(10)
    a(f"""s_nop 11
.p2align 3
K2_LOOP:
""")
    step(0)
    step(1)
    a("K2_DONE:")
    stamp(11)
    for m in seg(1):
        a(m)
    a(f"""s_lshl_b32 s{sT + 8}, s{sW}, 13
s_add_u32 s{sT + 8}, s{sT + 8}, {WF_OFF + 32768}
s_add_u32 s{sT + 9}, s{sT + 8}, 4096
v_lshlrev_b32 v5, 4, v{vL}
s_mov_b32 s{sMODE}, 2
s_lshr_b32 s{sLF}, s{sNL}, 1
s_cmp_lt_u32 s{sW}, 4
s_cbranch_scc1 K2_FLUSH
""")
    for ks in range(8):
        a(f"buffer_load_dwordx4 {vr(vG + 4 * ks, 4)}, v5, s[12:15], s{sT + 8 + ks // 4} offen offset:{1024 * (ks % 4)}")
    a(f"""K2_FLUSH:
s_cmp_eq_u32 s{sRES}, 1
s_cbranch_scc1 K2_FL1
s_cmp_eq_u32 s{sRES}, 2
s_cbranch_scc1 K2_FL2
""")
    for i in range(3):
        r = lambda cb, c=0: vACC + 16 * cb + 4 * i + c
        a(f"""K2_FL{i}:
s_lshl_b32 s{sT}, s{sPF}, 1
s_cmp_eq_u32 s{sT}, s{sNL}
s_cselect_b32 exec_hi, 0, -1
s_add_u32 s{sPF}, s{sPF}, 1
s_mul_i32 s{sT}, s{sPF}, {2 * RST}
s_mov_b32 s{sRES}, {(i + 1) % 3}
v_pk_mul_f32 v[2:3], {vr(r(0), 2)}, {vr(vWX, 2)} op_sel:[0,0] op_sel_hi:[1,0]
v_pk_mul_f32 v[4:5], {vr(r(0, 2), 2)}, {vr(vWX, 2)} op_sel:[0,0] op_sel_hi:[1,0]
v_cvt_pk_bf16_f32 v0, v{r(0)}, v{r(1)}
""")
        for cb in range(1, 4):
            o = cb & 1
            for h in range(2):
                a(f"v_pk_fma_f32 v[{2 + 2 * h}:{3 + 2 * h}], {vr(r(cb, 2 * h), 2)}, {vr(vWX + (cb & 2), 2)}, v[{2 + 2 * h}:{3 + 2 * h}] "
                  f"op_sel:[0,{o},0] op_sel_hi:[1,{o},1]")
        a(f"""v_cvt_pk_bf16_f32 v1, v{r(2)}, v{r(3)}
ds_write2_b64 v{vFA}, v[2:3], v[4:5] offset0:32 offset1:64
ds_write_b64 v{vFA}, v[0:1]
v_add_u32 v{vFA}, s{sT}, v{vLR}
s_cmp_eq_u32 s{sMODE}, 2
s_cbranch_scc1 K2_FLZ{i}
""")
        for cb in range(4):
            for h in range(2):
                a(f"v_mov_b64 {vr(r(cb, 2 * h), 2)}, 0")
        a(f"""K2_FLZ{i}:
s_cmp_le_i32 s{sPF}, s{sLF}
""")
        a("s_cbranch_scc0 K2_FLEND" if i < 2 else "s_cbranch_scc1 K2_FL0")
    a(f"""K2_FLEND:
s_cmp_lg_u32 s{sMODE}, 2
s_cbranch_scc1 K2_EVA
s_mov_b32 exec_hi, -1
s_cmp_lt_u32 s{sW}, 4
s_cbranch_scc1 K2_POS
""")
    S2, TB = vE, vE + 8
    NP = 13
    hx = {0: vAX, 2: vAT, 8: vK, 10: vOFF}
    rows = []
    for p in range(NP):
        rho, r = (2 * p) // 16, (2 * p) % 16
        rows.append(32 * rho + 8 * (r >> 2) + (r & 3))
    a(f"""v_and_b32 v1, 31, v{vL}
v_lshrrev_b32 v2, 5, v{vL}
v_lshlrev_b32 v3, 4, v1
v_lshl_or_b32 v3, v2, 3, v3
ds_read_b64 {vr(S2, 2)}, v3 offset:{SEL2}
ds_read_b64 {vr(S2 + 4, 2)}, v3 offset:{SEL2 + 512}
v_mul_u32_u24 v1, {RST}, v1
v_lshl_add_u32 v1, v2, 4, v1
v_add_u32 v1, {ROWS}, v1
v_mov_b64 {vr(S2 + 2, 2)}, 0
v_mov_b64 {vr(S2 + 6, 2)}, 0
v_mov_b64 {vr(TB + 2, 2)}, 0
""")
    stamp(12)
    a(f"""s_waitcnt lgkmcnt(0)
s_barrier
""")
    stamp(13)
    jobs = [(rho, ks) for rho in (1, 0) for ks in range(8)]
    for j, (rho, ks) in enumerate(jobs[:15]):
        a(f"ds_read_b128 {vr(vACC + 4 * j, 4)}, v1 offset:{rho * 32 * RST + ks * 32}")
    a("s_waitcnt vmcnt(0)")

    def mm(j):
        rho, ks = jobs[j]
        if j == 0:
            a("s_waitcnt lgkmcnt(14)")
            a(f"ds_read_b128 {vr(vACC + 60, 4)}, v1 offset:{7 * 32}")
        else:
            a(f"s_waitcnt lgkmcnt({15 - j})")
        a(f"v_mfma_f32_32x32x16_bf16 {vr(vC + 16 * rho, 16)}, {vr(vACC + 4 * j, 4)}, {vr(vG + 4 * ks, 4)}, {vr(vC + 16 * rho, 16)}")
    for j in range(10):
        mm(j)
    a(f"""v_cvt_pk_bf16_f32 v{TB}, v{vC + 28}, v{vC + 29}
v_cvt_pk_bf16_f32 v{TB + 1}, v{vC + 30}, v{vC + 31}
""")
    mm(10)
    a(f"v_mfma_f32_32x32x16_bf16 {vr(vC + 16, 16)}, {vr(S2 + 4, 4)}, {vr(TB, 4)}, {vr(vC + 16, 16)}")
    for j in range(11, 16):
        mm(j)
    a(f"v_mfma_f32_32x32x16_bf16 {vr(vC, 16)}, {vr(S2, 4)}, {vr(TB, 4)}, {vr(vC, 16)}")
    a(f"""s_cmp_lg_u32 s{sMORE}, 0
s_cbranch_scc1 K2_MORE
s_mul_i32 s{sT}, s2, {BN * 256}
s_add_u32 s20, s20, s{sT}
s_addc_u32 s21, s21, 0
s_mov_b32 s22, s6
s_mov_b32 s23, {FMT}
s_sub_u32 s{sT + 1}, s{sW}, 4
s_lshl_b32 s{sT + 2}, s{sT + 1}, 6
s_lshl_b32 s{sT + 3}, s{sT + 1}, 2
v_bfe_u32 v3, v{vL}, 4, 1
v_lshl_or_b32 v3, v2, 2, v3
v_and_b32 v4, 15, v{vL}
v_lshlrev_b32 v5, 8, v3
v_lshl_or_b32 v{vAS}, v4, 2, v5
v_add_u32 v{vAS}, s{sT + 2}, v{vAS}
v_lshrrev_b32 v4, 2, v4
v_or_b32 v4, s{sT + 3}, v4
v_xor_b32 v4, v4, v3
v_lshl_or_b32 v5, v4, 4, v5
v_and_b32 v4, 3, v{vL}
v_lshl_or_b32 v{vAX}, v4, 2, v5
v_xor_b32 v{vAT}, 32, v{vAX}
v_xor_b32 v{vK}, 128, v{vAX}
v_xor_b32 v{vOFF}, 160, v{vAX}
""")
    stamp(14)
    for p in range(NP):
        a(f"ds_read_b32 v{vX + p}, v{hx[rows[p] & 15]} offset:{HST + rows[p] * 256}")
    a(f"""s_mov_b32 s{sT}, {f32(-LN2)}
s_mov_b32 s{sT + 1}, {f32(-LN2)}
s_mov_b32 s{sT + 2}, 0xffff0000
s_mov_b32 s{sT + 4}, 0
s_mov_b32 s{sT + 5}, 4096
s_mov_b32 s{sT + 6}, 8192
s_mov_b32 s{sT + 7}, 12288
""")
    first = True
    for ps in ([8, 9, 10, 11, 12], [0, 1, 2, 3], [4, 5, 6, 7]):
        for p in ps:
            a(f"v_permlane16_swap_b32 v{vC + 2 * p}, v{vC + 2 * p + 1}")
        for p in ps:
            for i in range(2):
                a(f"v_exp_f32 v{vD + 2 * p + i}, v{vC + 2 * p + i}")
        if first:
            a("s_waitcnt lgkmcnt(0)")
            first = False
        for p in ps:
            a(f"v_pk_add_f32 {vr(vD + 2 * p, 2)}, {vr(vD + 2 * p, 2)}, 1.0 op_sel_hi:[1,0]")
        for p in ps:
            for i in range(2):
                a(f"v_rcp_f32 v{vD + 2 * p + i}, v{vD + 2 * p + i}")
        for p in ps:
            a(f"v_lshlrev_b32 v{vG + 2 * p}, 16, v{vX + p}")
            a(f"v_and_b32 v{vG + 2 * p + 1}, s{sT + 2}, v{vX + p}")
        for p in ps:
            a(f"v_pk_mul_f32 {vr(vD + 2 * p, 2)}, {vr(vD + 2 * p, 2)}, {vr(vC + 2 * p, 2)}")
        for p in ps:
            a(f"v_pk_fma_f32 {vr(vD + 2 * p, 2)}, {vr(vD + 2 * p, 2)}, s[{sT}:{sT + 1}], {vr(vG + 2 * p, 2)}")
        for p in ps:
            a(f"v_cvt_pk_bf16_f32 v{vX + p}, v{vD + 2 * p}, v{vD + 2 * p + 1}")
        for p in ps:
            o = rows[p] * 256
            a(f"buffer_store_dword v{vX + p}, v{vAS}, s[20:23], s{sT + 4 + o // 4096} offen offset:{o % 4096}{SO}")
    dump()
    a("""K2_EXIT:
s_endpgm
""")
    a(f"""K2_POS:
s_lshl_b32 s{sT}, s{sW}, 8
s_add_u32 s{sT}, s{sT}, {ROWS + 256}
v_mul_u32_u24 v1, {RST}, v{vL}
v_add_u32 v1, s{sT}, v1
s_lshl_b32 s{sT + 1}, s{sW}, 9
v_lshl_add_u32 v2, v{vL}, 3, s{sT + 1}
ds_read_b32 v3, v{vL4} offset:{HEAD - 224}
""")
    stamp(12)
    a(f"""s_waitcnt lgkmcnt(0)
s_barrier
""")
    stamp(13)
    a(f"""s_cmp_ge_u32 s{sW}, 2
s_cbranch_scc1 K2_POSEND
""")
    for i in range(16):
        if i == 15:
            a("s_waitcnt lgkmcnt(14)")
        a(f"ds_read_b128 {vr(vACC + 4 * i, 4)}, v1 offset:{16 * i}")
    a(f"v_add_u32 v3, s{sT + 1}, v3")
    for i in range(8):
        a(f"s_waitcnt lgkmcnt({14 - 2 * i})")
        for h in range(2):
            a(f"v_pk_add_f32 {vr(vACC + 8 * i + 2 * h, 2)}, {vr(vACC + 8 * i + 2 * h, 2)}, {vr(vACC + 8 * i + 4 + 2 * h, 2)}")
    w = 32
    while w >= 8:
        for i in range(0, w, 8):
            for h in range(2):
                a(f"v_pk_add_f32 {vr(vACC + i + 2 * h, 2)}, {vr(vACC + i + 2 * h, 2)}, {vr(vACC + w + i + 2 * h, 2)}")
        w //= 2
    a(f"""v_pk_add_f32 {vr(vACC, 2)}, {vr(vACC, 2)}, {vr(vACC + 2, 2)}
v_pk_add_f32 {vr(vC + 28, 2)}, {vr(vC + 28, 2)}, {vr(vACC, 2)}
ds_write_b64 v2, {vr(vC + 28, 2)} offset:{PS}
s_mov_b32 exec_lo, 0
s_mov_b32 exec_hi, 0xff000000
ds_add_f32 v3, v{vACC} offset:{PS}
ds_add_f32 v3, v{vACC + 1} offset:{PS + 4}
s_mov_b64 exec, -1
ds_read_b64 {vr(vC + 28, 2)}, v2 offset:{PS}
v_lshlrev_b32 v4, 2, v{vL4}
s_lshl_b32 s{sT + 1}, s{sW}, 3
v_add_u32 v4, s{sT + 1}, v4
ds_read_b32 v0, v4 offset:{ROWA - 4}
ds_read_b32 v1, v4 offset:{ROWA}
s_cmp_lg_u32 s{sMORE}, 0
s_cbranch_scc1 K2_MORE
s_mul_i32 s{sT}, s2, {BN * 6}
s_sub_u32 s22, {N * 6}, s{sT}
s_min_u32 s22, s22, {BN * 6}
s_add_u32 s{sT}, s{sT}, {N * 256}
s_add_u32 s20, s20, s{sT}
s_addc_u32 s21, s21, 0
s_mov_b32 s23, {FMT}
v_mul_u32_u24 v5, 6, v{vL}
v_cmp_gt_u32 vcc, s22, v5
s_add_u32 s22, s22, 2
s_lshl_b32 s{sT + 1}, s{sW}, 2
s_waitcnt lgkmcnt(0)
v_pk_add_f32 v[0:1], v[0:1], {vr(vC + 28, 2)}
v_cvt_pk_bf16_f32 v4, v0, v1
s_mov_b64 exec, vcc
buffer_store_short_d16_hi v4, v5, s[20:23], s{sT + 1} offen
s_cmp_eq_u32 s{sW}, 0
s_cbranch_scc1 K2_EXIT2
buffer_store_short v4, v5, s[20:23], 0 offen offset:2
s_branch K2_EXIT2
K2_POSEND:
s_cmp_lg_u32 s{sMORE}, 0
s_cbranch_scc1 K2_MORE
K2_EXIT2:
""")
    dump()
    a("s_endpgm")
    a(f"""K2_JOB67:
s_cmp_eq_u32 s{sW}, 7
s_cbranch_scc1 K2_JOB7
s_mov_b32 m0, {CONL}
s_mov_b32 s{sT + 8}, {CON_OFF}
buffer_load_dwordx4 v5, s[12:15], s{sT + 8} offen lds
s_branch K2_JOBRET
K2_JOB7:
s_mul_i32 s{sT + 8}, s2, {BN * 6}
v_mul_u32_u24 v1, 6, v{vL}
v_mov_b64 {vr(vPD, 2)}, 0
s_mov_b32 exec_hi, {(1 << (BN - 32)) - 1}
buffer_load_dwordx2 {vr(vPD, 2)}, v1, s[8:11], s{sT + 8} offen
s_mov_b32 exec_hi, -1
s_branch K2_JOBRET
K2_HIY:
s_cmp_eq_u32 s{sW}, 7
s_cbranch_scc0 K2_NOY
v_lshlrev_b32 v2, 16, v{vPD}
v_and_b32 v3, 0xffff0000, v{vPD}
v_lshlrev_b32 v4, 16, v{vPD + 1}
ds_write_b96 v5, v[2:4] offset:{ROWA}
s_branch K2_NOY
K2_SKIPGEMM:
s_waitcnt vmcnt(0) lgkmcnt(0)
s_barrier
s_branch K2_RANK
""")
    a(f"""K2_MORE:
s_waitcnt vmcnt(0) lgkmcnt(0)
s_barrier
s_setprio 0
s_add_u32 s{sBASE}, s{sBASE}, {RB}
v_and_b32 v{vAS}, 0x7f, v{vAS}
v_and_b32 v{vAX}, 0x0100007f, v{vAX}
v_and_b32 v{vAT}, 0x7f, v{vAT}
v_mov_b64 {vr(vSEL, 2)}, 0
v_mov_b64 {vr(vSEL + 2, 2)}, 0
v_lshlrev_b32 v5, 4, v{vL}
s_cmp_lt_u32 s{sW}, 4
s_cbranch_scc1 K2_KEEP
v_mov_b64 {vr(vC + 28, 2)}, 0
v_mov_b64 {vr(vC + 30, 2)}, 0
K2_KEEP:
""")
    hop1_addr()
    hop1()
    a(f"s_mul_i32 s{sT + 12}, s{sW}, {9 * 1024}")
    for j in range(9):
        a(pos_dma(j))
    pos_extra("B")
    a(f"""s_lshl_b32 s{sT}, s{sW}, 10
v_add_u32 v1, s{sT}, v5
ds_write_b128 v1, {vr(vSEL, 4)} offset:{TARR}
ds_write_b128 v5, {vr(vSEL, 4)} offset:{SEL2}
ds_write_b32 v{vL4}, v{vSEL} offset:{CNT}
""")
    zero_acc(vSEL)
    a(f"""s_waitcnt vmcnt(0)
s_branch K2_BATCH
""")
    a(f"""K2_EVT0:
s_mov_b32 s{sMODE}, 0
s_branch K2_EVT
K2_EVT1:
s_mov_b32 s{sMODE}, 1
K2_EVT:
s_cmp_lg_u32 s{sPR}, s{sCUR}
s_cbranch_scc1 K2_EVP
s_setprio 0
s_mov_b32 s{sPR}, -1
K2_EVP:
s_cmp_lg_u32 s{sFL}, s{sCUR}
s_cbranch_scc1 K2_EVA
s_mov_b32 s{sFL}, -1
s_sub_u32 s{sLF}, s{sP0}, 1
s_branch K2_FLUSH
K2_EVA:
s_sub_u32 s{sEVT}, s{sSW}, 1
s_cmp_lg_u32 s{sEVT}, s{sCUR}
s_cbranch_scc1 K2_EVB
s_mov_b32 s{sFL}, s{sSW}
s_mov_b32 s{sEVT}, s{sSW}
""")
    window(sFL)
    load_y()
    a(f"""s_waitcnt lgkmcnt(0)
K2_EVB:
s_min_u32 s{sEVT}, s{sEVT}, s{sPR}
s_cmp_eq_u32 s{sMODE}, 0
s_cbranch_scc1 K2_RET0
s_branch K2_RET1
""")


def kd(name, vgpr, sgpr=96):
    return f""".amdhsa_kernel {name}
  .amdhsa_next_free_vgpr {vgpr}
  .amdhsa_next_free_sgpr {sgpr}
  .amdhsa_accum_offset {(vgpr + 3) // 4 * 4}
  .amdhsa_group_segment_fixed_size 0
  .amdhsa_kernarg_size 88
  .amdhsa_user_sgpr_count 2
  .amdhsa_user_sgpr_kernarg_segment_ptr 1
  .amdhsa_system_sgpr_workgroup_id_x 1
.end_amdhsa_kernel
"""


def build(opt=None, verbose=False):
    opt = opt or {}
    ref = open(f"cdna_kernels/{NAME}.s.ref").read().split("\n")
    head = [l for l in ref if l.startswith(";") and "@launch" not in l and "Override" not in l and "grid=ceil" not in l]
    e = ref.index('.amdgcn_target "amdgcn-amd-amdhsa--gfx950"')
    head = [l for l in ref[:e] if "@launch" not in l and "Override" not in l and "grid=ceil" not in l]
    head.append(f"; @launch kernel=k1_kernel grid=({NB + NCH},1,1) block=(512,1,1) lds={K1_LDS}")
    head.append(f"; @launch kernel={NAME}_kernel grid=({NB},1,1) block=(512,1,1) lds={K2_LDS}")
    a1, a2 = Asm(), Asm()
    gen_k1(a1, opt)
    gen_k2(a2, opt)
    n1 = a1.fix_hazards(verbose)
    n2 = a2.fix_hazards(verbose)
    s = "\n".join(head) + '\n.amdgcn_target "amdgcn-amd-amdhsa--gfx950"\n.text\n'
    s += a1.text() + a2.text()
    s += '.section .rodata,"a"\n.p2align 6\n' + kd("k1_kernel", 104) + ".p2align 6\n" + kd(NAME + "_kernel", 256)
    return s


if __name__ == "__main__":
    out = sys.argv[1] if len(sys.argv) > 1 else f"cdna_kernels/{NAME}.s"
    opt = dict(kv.split("=") for kv in sys.argv[2:])
    open(out, "w").write(build(opt, verbose="v" in opt))
    print("written", out)
```

```python
import sys, struct, math
sys.path.insert(0, "work")
from asmlib import Asm, vr, sr

NAME = "standalone__cheap_equivariant_egnn__graph"
N, E = 12500, 400000
NB, BN = 256, 49
CH, NCH, CS = 1564, 256, 1568
WF_OFF = NCH * CS * 8
CON_OFF = WF_OFF + 98304
TAB_OFF = CON_OFF + 1024
WS1_SIZE = TAB_OFF + NCH * 1024 + 4096
BP_OFF = 4 << 20
DBG_OFF = 16 << 20
FMT = 0x00020000


def f32(x):
    return struct.unpack("<I", struct.pack("<f", x))[0]


LOG2E = 1.4426950408889634
LN2 = 0.6931471805599453
KAPPA = 2.0 ** -31
DELTA = 2.0 ** -8 * 0.70
K1_LDS = 49152

RB = 256
ROWB = 0
CNT = 256
HEAD = 512
ROWA = 1024
SEL2 = 2048
PS = 3072
CONL = 4096
CREC = 5120
TARR = CREC + 18432
HST = TARR + 18432
YTAB = HST + 14336
POS = YTAB + 14336
ROWS = POS
RST = 784
K2_LDS = POS + 74 * 1024


def scan_add(a, v, n64=True, op="v_add_u32"):
    for sh in (1, 2, 4, 8):
        for r in v:
            a(f"{op}_dpp v{r}, v{r}, v{r} row_shr:{sh} row_mask:0xf bank_mask:0xf bound_ctrl:1")
    for r in v:
        a(f"{op}_dpp v{r}, v{r}, v{r} row_bcast:15 row_mask:0xa bank_mask:0xf")
    if n64:
        for r in v:
            a(f"{op}_dpp v{r}, v{r}, v{r} row_bcast:31 row_mask:0xc bank_mask:0xf")


def diag_tools(a, opt, ws, lane, off, kern):
    diag = opt.get("diag")
    only = [int(x) for x in opt["st"].split(",")] if "st" in opt else None

    probe = opt["probe"].split(",") if "probe" in opt else None

    def entry():
        if diag:
            a("s_memrealtime s[86:87]\ns_memtime s[70:71]")
        if probe and kern == "1":
            a("s_memrealtime s[86:87]")

    def stamp(i):
        if probe and kern == "1" and i == 1 and probe[0] == "2":
            a.nsave = getattr(a, "nsave", 0) + 1
            a(f"""s_cmp_eq_u32 s2, 0
s_cbranch_scc0 PSAVE{a.nsave}
v_mov_b32 v60, s86
v_mov_b32 v61, 0
s_mov_b32 s88, {WS1_SIZE - 4096}
buffer_store_dword v60, v61, s[16:19], s88 offen
PSAVE{a.nsave}:
""")
        if probe and probe[0] == kern and int(probe[1]) == i:
            a.nprobe = getattr(a, "nprobe", 0) + 1
            if kern == "2":
                a(f"""s_add_u32 s88, s12, {WS1_SIZE - 4096}
s_addc_u32 s89, s13, 0
s_load_dword s86, s[88:89], 0
""")
            a(f"""PROBE{kern}_{a.nprobe}:
s_memrealtime s[66:67]
s_waitcnt lgkmcnt(0)
s_sub_u32 s66, s66, s86
s_cmp_lt_u32 s66, {probe[2]}
s_cbranch_scc1 PROBE{kern}_{a.nprobe}
""")
        if diag and (only is None or i in only or i == 15):
            a(f"""s_memtime s[66:67]
s_waitcnt lgkmcnt(0)
s_mov_b32 s{70 + i}, s66
""")

    def dump():
        stamp(15)
        if not diag:
            return
        a(f"""s_memrealtime s[66:67]
s_waitcnt lgkmcnt(0)
s_mov_b32 s87, s66
s_mov_b64 exec, -1
s_add_u32 s88, s{ws}, {off}
s_addc_u32 s89, s{ws + 1}, 0
s_mov_b32 s90, {1 << 20}
s_mov_b32 s91, {FMT}
s_lshl_b32 s66, s2, 3
s_add_u32 s66, s66, s3
s_lshl_b32 s66, s66, 7
v_mov_b32 v1, 0
""")
        for i in range(18):
            a(f"v_writelane_b32 v1, s{70 + i}, {i}")
        a(f"""v_lshlrev_b32 v2, 2, v{lane}
s_mov_b64 exec, 0x3ffff
buffer_store_dword v1, v2, s[88:91], s66 offen
""")
    return entry, stamp, dump


def gen_k1(a, opt):
    entry, stamp, dump = diag_tools(a, {k: v for k, v in opt.items() if k != "st"}, 16, 2, DBG_OFF + (1 << 20), "1")

    SC = " " + opt.get("sc", "sc1").replace("_", " ")

    def fin():
        if opt.get("diag"):
            stamp(5)
            a("s_waitcnt vmcnt(0)")
            dump()
    a(""".globl k1_kernel
.p2align 8
.type k1_kernel,@function
k1_kernel:
""")
    entry()
    a(f"""s_load_dwordx2 s[4:5], s[0:1], 32
s_load_dwordx2 s[8:9], s[0:1], 24
s_load_dwordx2 s[12:13], s[0:1], 16
s_load_dwordx2 s[16:17], s[0:1], 80
s_load_dwordx2 s[20:21], s[0:1], 0
s_load_dwordx2 s[24:25], s[0:1], 40
s_load_dwordx2 s[28:29], s[0:1], 56
s_cmp_ge_u32 s2, {NB + NCH}
s_cbranch_scc1 K1_EXIT
v_lshrrev_b32 v1, 6, v0
v_and_b32 v2, 63, v0
s_mov_b32 s18, {WS1_SIZE}
s_mov_b32 s19, {FMT}
v_readfirstlane_b32 s3, v1
s_cmp_lt_u32 s2, {NB}
s_cbranch_scc1 K1_GEMM
""")
    DST, SRC, EA, AD, RK, HI, T0 = 4, 8, 12, 16, 20, 24, 28
    a(f"""; sort role: one chunk of {CH} edges is grouped by destination bin
s_sub_u32 s40, s2, {NB}
s_mov_b32 s6, {E * 4}
s_mov_b32 s7, {FMT}
s_mov_b32 s10, {E * 4}
s_mov_b32 s11, {FMT}
s_mov_b32 s14, {E * 2}
s_mov_b32 s15, {FMT}
s_mul_i32 s41, s40, {CH * 4}
s_mul_i32 s42, s40, {CH * 2}
v_lshlrev_b32 v3, 4, v0
v_lshlrev_b32 v14, 3, v0
v_lshlrev_b32 v15, 2, v0
v_mov_b32 v40, 0
s_mov_b32 s43, {CH // 4}
s_cmp_eq_u32 s40, {NCH - 1}
s_cselect_b32 s43, {(E - (NCH - 1) * CH) // 4}, s43
v_cmp_gt_u32 vcc, s43, v0
ds_write_b32 v15, v40
s_mov_b64 s[44:45], vcc
s_waitcnt lgkmcnt(0)
s_mov_b64 exec, s[44:45]
buffer_load_dwordx4 {vr(DST, 4)}, v3, s[4:7], s41 offen
buffer_load_dwordx2 {vr(EA, 2)}, v14, s[12:15], s42 offen
buffer_load_dwordx4 {vr(SRC, 4)}, v3, s[8:11], s41 offen
s_mov_b32 s46, -49
s_mov_b32 s47, 0xff100000
s_mov_b32 s54, 0x01000000
s_mov_b32 s48, {f32(-LOG2E)}
s_mov_b32 s49, {f32(-LOG2E)}
s_mov_b32 s50, 0xffff0000
s_mul_i32 s51, s40, {CS * 8}
s_lshl_b32 s52, s40, 10
s_add_u32 s52, s52, {TAB_OFF}
s_add_u32 s53, s51, 8192
v_mov_b32 v41, 1
""")
    stamp(1)
    a("s_barrier\ns_waitcnt vmcnt(2)")
    stamp(2)
    for i in range(4):
        a(f"v_mul_u32_u24 v{T0 + i}, 21400, v{DST + i}")
    for i in range(4):
        a(f"v_lshrrev_b32 v{T0 + i}, 20, v{T0 + i}")
    for i in range(4):
        a(f"v_lshlrev_b32 v{AD + i}, 2, v{T0 + i}")
    for i in range(4):
        a(f"ds_add_rtn_u32 v{RK + i}, v{AD + i}, v41")
    for i in range(4):
        a(f"v_mad_i32_i24 v{DST + i}, v{T0 + i}, s46, v{DST + i}")
    for i in range(4):
        a(f"v_mul_u32_u24 v{T0 + i}, 43, v{DST + i}")
    for i in range(4):
        a(f"v_lshrrev_b32 v{T0 + i}, 8, v{T0 + i}")
    for i in range(4):
        a(f"v_lshlrev_b32 v{HI + i}, 2, v{DST + i}")
    for i in range(4):
        a(f"v_mad_i32_i24 v{DST + i}, v{T0 + i}, -6, v{DST + i}")
    a("s_waitcnt vmcnt(1)")
    for j in range(2):
        a(f"v_lshlrev_b32 v{T0 + 2 * j}, 16, v{EA + j}")
        a(f"v_and_b32 v{T0 + 2 * j + 1}, s50, v{EA + j}")
    for j in range(2):
        a(f"v_pk_mul_f32 {vr(T0 + 2 * j, 2)}, {vr(T0 + 2 * j, 2)}, s[48:49]")
    for j in range(2):
        a(f"v_cvt_pk_bf16_f32 v{EA + j}, v{T0 + 2 * j}, v{T0 + 2 * j + 1}")
    for j in range(2):
        a(f"v_lshl_or_b32 v{HI + 2 * j}, v{EA + j}, 16, v{HI + 2 * j}")
        a(f"v_and_or_b32 v{HI + 2 * j + 1}, v{EA + j}, s50, v{HI + 2 * j + 1}")
    for i in range(4):
        a(f"v_lshlrev_b32 v{T0 + i}, v{DST + i}, s54")
    a("s_waitcnt vmcnt(0)")
    for i in range(4):
        a(f"v_lshl_add_u32 v{SRC + i}, v{DST + i}, 20, v{SRC + i}")
    for i in range(4):
        a(f"v_xad_u32 v{SRC + i}, v{T0 + i}, s47, v{SRC + i}")
    C0, O0 = 32, 36
    a(f"""s_mov_b64 exec, -1
v_lshlrev_b32 v42, 4, v2
s_waitcnt lgkmcnt(0)
s_barrier
""")
    stamp(3)
    a(f"""ds_read_b128 {vr(C0, 4)}, v42
s_waitcnt lgkmcnt(0)
v_add_u32 v43, v{C0}, v{C0 + 1}
v_add3_u32 v43, v43, v{C0 + 2}, v{C0 + 3}
v_mov_b32 v44, v43
""")
    scan_add(a, [44])
    a(f"""v_sub_u32 v{O0}, v44, v43
v_add_u32 v{O0 + 1}, v{O0}, v{C0}
v_add_u32 v{O0 + 2}, v{O0 + 1}, v{C0 + 1}
v_add_u32 v{O0 + 3}, v{O0 + 2}, v{C0 + 2}
ds_write_b128 v42, {vr(O0, 4)} offset:1024
s_cmp_lg_u32 s3, 7
s_cbranch_scc1 K1_NOTAB
""")
    for i in range(4):
        a(f"v_lshl_or_b32 v{C0 + i}, v{C0 + i}, 16, v{O0 + i}")
    a(f"""buffer_store_dwordx4 {vr(C0, 4)}, v42, s[16:19], s52 offen{SC}
s_branch K1_SCAT_DONE
K1_NOTAB:
s_mov_b64 exec, s[44:45]
""")
    for i in range(4):
        a(f"ds_read_b32 v{AD + i}, v{AD + i} offset:1024")
    for i in range(4):
        a(f"s_waitcnt lgkmcnt({3 - i})")
        a(f"v_add_lshl_u32 v{AD + i}, v{AD + i}, v{RK + i}, 3")
    for i in range(4):
        a(f"v_add_u32 v{AD + i}, 2048, v{AD + i}")
        a(f"ds_write2_b32 v{AD + i}, v{SRC + i}, v{HI + i} offset0:0 offset1:1")
    a(f"""s_mov_b64 exec, -1
K1_SCAT_DONE:
v_cmp_gt_u32 vcc, {(CH * 8 - 8192) // 16}, v0
s_waitcnt lgkmcnt(0)
s_barrier
""")
    stamp(4)
    a(f"""ds_read_b128 v[4:7], v3 offset:2048
ds_read_b128 v[8:11], v3 offset:{2048 + 8192}
s_waitcnt lgkmcnt(1)
buffer_store_dwordx4 v[4:7], v3, s[16:19], s51 offen{SC}
s_mov_b64 exec, vcc
s_waitcnt lgkmcnt(0)
buffer_store_dwordx4 v[8:11], v3, s[16:19], s53 offen{SC}
""")
    fin()
    a("K1_EXIT:\ns_endpgm")
    a(f"""K1_GEMM:
; GEMM role: B' rows of one bin, weight fragment repack, small constants
s_mul_i32 s40, s2, {BN * 256}
s_sub_u32 s22, {N * 256}, s40
s_min_u32 s22, s22, {BN * 256}
s_mov_b32 s23, {FMT}
s_mov_b32 s26, {258 * 256}
s_mov_b32 s27, {FMT}
v_lshrrev_b32 v3, 4, v2
v_and_b32 v4, 15, v2
v_lshlrev_b32 v5, 1, v3
v_xor_b32 v5, v5, v4
v_lshlrev_b32 v5, 4, v5
v_lshl_or_b32 v5, v3, 8, v5
v_xor_b32 v6, 128, v5
s_and_b32 s41, s3, 3
s_lshl_b32 s41, s41, 2
v_or_b32 v7, s41, v3
v_xor_b32 v7, v7, v4
v_lshlrev_b32 v7, 4, v7
v_lshl_or_b32 v7, v3, 8, v7
s_lshl_b32 s42, s3, 12
s_add_u32 s43, s42, 32768
s_lshl_b32 s44, s3, 10
s_add_u32 s45, s44, 8192
s_mov_b32 m0, s42
s_waitcnt lgkmcnt(0)
s_add_u32 s20, s20, s40
s_addc_u32 s21, s21, 0
buffer_load_dwordx4 v5, s[24:27], s43 offen lds
buffer_load_dwordx4 v5, s[24:27], s43 offen offset:1024 lds
buffer_load_dwordx4 v6, s[24:27], s43 offen offset:2048 lds
buffer_load_dwordx4 v6, s[24:27], s43 offen offset:3072 lds
s_add_u32 m0, s44, 32768
buffer_load_dwordx4 v7, s[20:23], s44 offen lds
s_add_u32 m0, s45, 32768
buffer_load_dwordx4 v7, s[20:23], s45 offen lds
s_cmp_ge_u32 s3, 4
s_cbranch_scc1 K1_REPACK
""")
    TA, HA, AF, BF, AC = 8, 16, 20, 36, 68
    a(f"""v_bfe_u32 v5, v2, 2, 2
v_and_b32 v6, 1, v3
v_lshl_or_b32 v6, v6, 2, v5
v_lshl_or_b32 v5, v3, 3, v5
v_lshlrev_b32 v5, 8, v5
v_lshl_or_b32 v5, v6, 5, v5
v_and_b32 v6, 3, v2
v_lshl_or_b32 v{TA}, v6, 3, v5
""")
    for t in range(1, 8):
        a(f"v_xor_b32 v{TA + t}, {t << 5}, v{TA}")
    a(f"""v_xor_b32 v5, v3, v4
v_lshlrev_b32 v5, 4, v5
v_lshl_or_b32 v5, v4, 8, v5
v_add_u32 v{HA}, s42, v5
""")
    for ks in range(1, 4):
        a(f"v_xor_b32 v{HA + ks}, {ks << 6}, v{HA}")
    a(f"""s_add_u32 s36, s16, {BP_OFF}
s_addc_u32 s37, s17, 0
s_add_u32 s36, s36, s40
s_addc_u32 s37, s37, 0
s_mov_b32 s38, {BN * 256}
s_mov_b32 s39, {FMT}
s_mov_b32 s48, {f32(-LOG2E)}
s_mov_b32 s49, {f32(-LOG2E)}
v_lshlrev_b32 v5, 10, v3
v_lshl_or_b32 v5, v4, 4, v5
""")
    stamp(1)
    a("s_waitcnt vmcnt(0)\ns_barrier")
    stamp(2)
    for ks in range(4):
        a(f"ds_read_b128 {vr(AF + 4 * ks, 4)}, v{HA + ks} offset:32768")
    DEPTH = 4
    jobs = [(ks, t) for ks in range(4) for t in range(8)]

    def rd(j):
        ks, t = jobs[j]
        d = BF + 4 * (j % 8)
        a(f"ds_read_b64_tr_b16 {vr(d, 2)}, v{TA + t} offset:{ks * 8192}")
        a(f"ds_read_b64_tr_b16 {vr(d + 2, 2)}, v{TA + t} offset:{ks * 8192 + 1024}")
    for j in range(DEPTH):
        rd(j)
    for j, (ks, t) in enumerate(jobs):
        if j + DEPTH < 32:
            rd(j + DEPTH)
        left = min(DEPTH, 31 - j)
        a(f"s_waitcnt lgkmcnt({2 * left})")
        c = "0" if ks == 0 else vr(AC + 4 * t, 4)
        a(f"v_mfma_f32_16x16x32_bf16 {vr(AC + 4 * t, 4)}, {vr(AF + 4 * ks, 4)}, {vr(BF + 4 * (j % 8), 4)}, {c}")
    stamp(3)
    for t in range(8):
        for hh in range(2):
            a(f"v_pk_mul_f32 {vr(AC + 4 * t + 2 * hh, 2)}, {vr(AC + 4 * t + 2 * hh, 2)}, s[48:49]")
    for r in range(4):
        for u in range(4):
            a(f"v_cvt_pk_bf16_f32 v{BF + 4 * r + u}, v{AC + 8 * u + r}, v{AC + 8 * u + 4 + r}")
        a(f"buffer_store_dwordx4 {vr(BF + 4 * r, 4)}, v5, s[36:39], s42 offen offset:{256 * r}{SC}")
    fin()
    a("s_endpgm")
    a(f"""K1_REPACK:
s_mov_b32 s30, 65536
s_mov_b32 s31, {FMT}
s_cmp_eq_u32 s3, 7
s_cbranch_scc1 K1_CONST
s_mul_i32 s46, s2, 3
s_add_u32 s46, s46, s3
s_sub_u32 s46, s46, 4
s_bfe_u32 s47, s46, 0x20006
s_bfe_u32 s48, s46, 0x30003
s_bfe_u32 s49, s46, 0x10002
s_bfe_u32 s50, s46, 0x10001
s_and_b32 s51, s46, 1
v_and_b32 v3, 7, v2
v_lshrrev_b32 v4, 3, v2
s_lshl_b32 s52, s48, 1
s_add_u32 s52, s52, s49
s_lshl_b32 s52, s52, 10
s_lshl_b32 s55, s46, 7
s_add_u32 s55, s55, {WF_OFF}
v_lshlrev_b32 v7, 1, v2
s_cmp_ge_u32 s46, 256
s_cbranch_scc1 K1_RP_H
s_lshr_b32 s53, s47, 1
s_lshl_b32 s53, s53, 3
s_and_b32 s54, s47, 1
s_add_u32 s53, s53, s54
s_lshl_b32 s54, s50, 2
s_add_u32 s53, s53, s54
s_lshl_b32 s54, s51, 1
s_add_u32 s53, s53, s54
s_add_u32 s52, s52, s53
s_lshl_b32 s52, s52, 1
v_lshlrev_b32 v5, 8, v3
v_lshl_or_b32 v5, v4, 5, v5
buffer_load_ushort v6, v5, s[24:27], s52 offen
s_branch K1_RP_ST
K1_RP_H:
s_lshl_b32 s53, s47, 5
s_lshl_b32 s54, s51, 4
s_add_u32 s53, s53, s54
s_add_u32 s53, s53, s50
v_lshlrev_b32 v5, 8, v3
s_cmp_ge_u32 s46, 512
s_cbranch_scc0 K1_RP_H1
s_lshr_b32 s52, s48, 2
s_lshl_b32 s52, s52, 2
s_and_b32 s54, s48, 1
s_lshl_b32 s54, s54, 6
s_add_u32 s52, s52, s54
s_lshl_b32 s54, s49, 5
s_add_u32 s52, s52, s54
s_and_b32 s54, s48, 2
s_add_u32 s52, s52, s54
s_add_u32 s52, s52, 128
s_lshl_b32 s52, s52, 7
v_lshrrev_b32 v5, 1, v3
v_lshlrev_b32 v5, 11, v5
v_and_b32 v6, 1, v3
v_lshl_or_b32 v5, v6, 8, v5
K1_RP_H1:
s_add_u32 s52, s52, s53
s_lshl_b32 s52, s52, 1
v_lshl_or_b32 v5, v4, 2, v5
buffer_load_ushort v6, v5, s[28:31], s52 offen
K1_RP_ST:
s_waitcnt vmcnt(0)
s_barrier
buffer_store_short v6, v7, s[16:19], s55 offen{SC}
""")
    fin()
    a(f"""s_endpgm
K1_CONST:
s_load_dwordx2 s[32:33], s[0:1], 48
s_waitcnt vmcnt(0) lgkmcnt(0)
s_barrier
s_cmp_lg_u32 s2, 0
s_cbranch_scc1 K1_EXIT2
s_mov_b32 s34, 256
s_mov_b32 s35, {FMT}
s_mov_b32 s46, 65536
s_mov_b32 s47, {CON_OFF}
v_and_b32 v3, 7, v2
v_lshlrev_b32 v3, 5, v3
v_bfe_u32 v4, v2, 4, 1
v_lshl_or_b32 v3, v4, 3, v3
v_bfe_u32 v4, v2, 3, 1
v_lshl_or_b32 v3, v4, 2, v3
v_lshrrev_b32 v4, 5, v2
v_lshl_or_b32 v4, v4, 1, v3
buffer_load_ushort v8, v4, s[24:27], s46 offen
buffer_load_ushort v9, v4, s[24:27], s46 offen offset:16
buffer_load_ushort v10, v4, s[24:27], s46 offen offset:256
buffer_load_ushort v11, v4, s[24:27], s46 offen offset:272
buffer_load_ushort v12, v3, s[32:35], 0 offen
buffer_load_ushort v13, v3, s[32:35], 0 offen offset:2
buffer_load_ushort v14, v3, s[32:35], 0 offen offset:16
buffer_load_ushort v15, v3, s[32:35], 0 offen offset:18
v_lshlrev_b32 v5, 3, v2
v_and_b32 v6, 31, v2
v_lshlrev_b32 v6, 4, v6
s_waitcnt vmcnt(0)
v_lshl_or_b32 v8, v10, 16, v8
v_lshl_or_b32 v9, v11, 16, v9
""")
    for i in range(4):
        a(f"v_lshlrev_b32 v{12 + i}, 16, v{12 + i}")
        a(f"v_mul_f32 v{12 + i}, {f32(-LN2 * KAPPA)}, v{12 + i}")
    a(f"""buffer_store_dwordx2 v[8:9], v5, s[16:19], s47 offen{SC}
buffer_store_dwordx4 v[12:15], v6, s[16:19], s47 offen offset:512{SC}
K1_EXIT2:
""")
    fin()
    a("s_endpgm")


vACC, vC, vD, vG, vE, vM = 192, 160, 128, 96, 80, 64
vP, vX, vY, vI, vSEL, vWX = 56, 48, 40, 32, 28, 24
vQ = 20
vT, vSRC = 18, 16
vAX, vAS, vAT, vK, vOFF, vL4, vIDX, vLR, vFA = 15, 14, 13, 12, 11, 10, 9, 8, 7
vL = 6


def gen_k2(a, opt):
    sW = 3
    sKP = 24
    sEX = 26
    sMORE, sMODE, sTOT, sBASE, sPR, sRO = 34, 35, 36, 37, 38, 39
    sCUR, sEND, sEVT, sSW, sFL, sP0, sPF, sRES = 40, 41, 42, 43, 44, 45, 46, 47
    sT = 48
    sLF, sC, sNL = 63, 64, 65
    diag = opt.get("diag")
    SO = " " + opt.get("so", "").replace("_", " ") if opt.get("so") else ""
    vCP, vCD = vT, vT + 1
    vPD = vQ

    entry, stamp, dump = diag_tools(a, opt, 12, vL, DBG_OFF, "2")

    def hop1_addr():
        a(f"""v_lshlrev_b32 v1, 10, v{vL}
s_lshl_b32 s{sT}, s{sW}, 15
s_lshl_b32 s{sT + 1}, s2, 2
s_add_u32 s{sT}, s{sT}, s{sT + 1}
s_add_u32 s{sT}, s{sT}, {TAB_OFF}
""")

    def hop1():
        a(f"""s_mov_b32 exec_hi, 0
buffer_load_dword v{vCP}, v1, s[12:15], s{sT} offen
s_mov_b32 exec_hi, -1
""")

    def zero_acc(z):
        for cb in range(4):
            a(f"v_mfma_f32_32x32x16_bf16 {vr(vACC + 16 * cb, 16)}, {vr(z, 4)}, {vr(z, 4)}, 0")

    def pos_dma(j):
        out = []
        if j % 4 == 0:
            out.append(f"s_add_u32 s{sT + 13}, s{sT + 12}, {1024 * j}")
            out.append(f"s_add_u32 m0, s{sT + 13}, {POS}")
        out.append(f"buffer_load_dwordx4 v5, s[8:11], s{sT + 13} offen offset:{1024 * (j % 4)} lds")
        return "\n".join(out)

    def pos_extra(tag):
        a(f"""s_cmp_ge_u32 s{sW}, 2
s_cbranch_scc1 K2_NOEXTRA{tag}
s_lshl_b32 s{sT + 13}, s{sW}, 10
s_add_u32 s{sT + 13}, s{sT + 13}, {72 * 1024}
s_add_u32 m0, s{sT + 13}, {POS}
buffer_load_dwordx4 v5, s[8:11], s{sT + 13} offen lds
K2_NOEXTRA{tag}:
""")

    a(f""".globl {NAME}_kernel
.p2align 8
.type {NAME}_kernel,@function
{NAME}_kernel:
""")
    entry()
    a(f"""s_load_dwordx2 s[12:13], s[0:1], 80
s_load_dwordx2 s[4:5], s[0:1], 0
s_load_dwordx2 s[8:9], s[0:1], 8
s_load_dwordx2 s[20:21], s[0:1], 64
s_setprio 3
s_cmp_ge_u32 s2, {NB}
s_cbranch_scc1 K2_EXIT
v_lshrrev_b32 v1, 6, v0
v_and_b32 v{vL}, 63, v0
s_mov_b32 s14, {WS1_SIZE}
s_mov_b32 s15, {FMT}
v_readfirstlane_b32 s{sW}, v1
""")
    hop1_addr()
    a(f"""s_mul_i32 s{sT + 2}, s2, {BN * 256}
s_sub_u32 s6, {N * 256}, s{sT + 2}
s_min_u32 s6, s6, {BN * 256}
s_mov_b32 s7, {FMT}
v_lshrrev_b32 v3, 4, v{vL}
v_and_b32 v4, 15, v{vL}
s_and_b32 s{sT + 3}, s{sW}, 3
s_lshl_b32 s{sT + 3}, s{sT + 3}, 2
v_or_b32 v2, s{sT + 3}, v3
v_xor_b32 v2, v2, v4
v_lshlrev_b32 v2, 4, v2
v_lshl_or_b32 v2, v3, 8, v2
s_lshl_b32 s{sT + 4}, s{sW}, 10
s_add_u32 s{sT + 5}, s{sT + 4}, 8192
s_lshl_b32 s{sT + 6}, s{sW}, 13
s_add_u32 s{sT + 6}, s{sT + 6}, {WF_OFF}
s_add_u32 s{sT + 7}, s{sT + 6}, 4096
v_lshlrev_b32 v5, 4, v{vL}
s_mov_b32 s10, {N * 6 + 8}
s_mov_b32 s11, {FMT}
s_add_u32 m0, s{sT + 4}, {HST}
s_waitcnt lgkmcnt(0)
""")
    if "probe" in opt:
        stamp(0)
    hop1()
    a(f"""s_setprio 0
s_add_u32 s4, s4, s{sT + 2}
s_addc_u32 s5, s5, 0
buffer_load_dwordx4 v2, s[4:7], s{sT + 4} offen lds
s_cmp_ge_u32 s{sW}, 6
s_cbranch_scc1 K2_JOB67
s_add_u32 m0, s{sT + 5}, {HST}
buffer_load_dwordx4 v2, s[4:7], s{sT + 5} offen lds
K2_JOBRET:
""")
    for ks in range(8):
        a(f"buffer_load_dwordx4 {vr(vG + 4 * ks, 4)}, v5, s[12:15], s{sT + 6 + ks // 4} offen offset:{1024 * (ks % 4)}")
    a(f"""s_add_u32 s16, s12, {BP_OFF}
s_addc_u32 s17, s13, 0
s_or_b32 s17, s17, {256 << 16}
s_mov_b32 s18, {N}
s_mov_b32 s19, {FMT}
s_mov_b32 s{sKP}, {f32(KAPPA / (1 + DELTA))}
s_mov_b32 s{sKP + 1}, {f32(KAPPA / (1 + DELTA))}
s_mov_b32 s{sBASE}, 0
s_mul_i32 s{sRO}, s{sW}, {32 * CS * 8}
s_mov_b32 s{sC}, 256
v_mov_b64 {vr(vSEL, 2)}, 0
v_mov_b64 {vr(vSEL + 2, 2)}, 0
v_add_u32 v1, s{sT + 4}, v5
v_lshlrev_b32 v{vL4}, 2, v{vL}
ds_write_b128 v1, {vr(vSEL, 4)} offset:{TARR}
""")
    zero_acc(vSEL)
    a(f"""v_lshrrev_b32 v1, 5, v{vL}
v_bfe_u32 v2, v{vL}, 1, 1
v_lshlrev_b32 v{vSRC + 1}, 5, v1
v_lshl_or_b32 v{vSRC + 1}, v2, 4, v{vSRC + 1}
v_bfe_u32 v3, v{vL}, 2, 3
v_and_b32 v4, 1, v{vL}
v_lshl_or_b32 v3, v3, 1, v4
v_lshlrev_b32 v{vAS}, 3, v3
v_xor_b32 v2, v2, v1
v_lshl_or_b32 v{vAX}, v2, 24, v{vAS}
v_bfe_u32 v2, v{vL}, 3, 1
v_bfe_u32 v3, v{vL}, 2, 1
v_lshl_or_b32 v3, v2, 2, v3
v_lshl_or_b32 v3, v1, 3, v3
v_lshlrev_b32 v{vAT}, 3, v3
v_bfe_u32 v2, v{vL}, 4, 1
v_and_b32 v3, 3, v{vL}
v_lshl_or_b32 v3, v2, 2, v3
v_add_u32 v3, 24, v3
v_lshlrev_b32 v{vK}, v3, 1
v_mov_b32 v{vIDX}, 0xdddddddd
v_and_b32 v2, 31, v{vL}
v_mul_u32_u24 v3, {RST}, v1
v_lshl_add_u32 v3, v2, 3, v3
v_add_u32 v{vLR}, {ROWS}, v3
v_lshlrev_b32 v3, 3, v1
v_sub_u32 v2, v2, v3
v_lshlrev_b32 v4, 4, v2
v_mov_b32 v0, 0x3f80
v_lshlrev_b32 v4, v4, v0
v_ashrrev_i32 v2, 1, v2
""")
    for u in range(2):
        for q in range(4):
            a(f"v_cmp_eq_u32 s[{sT + 2 * q}:{sT + 2 * q + 1}], {8 * u + q}, v2")
        for q in range(4):
            a(f"v_cndmask_b32 v{vI + 4 * u + q}, 0, v4, s[{sT + 2 * q}:{sT + 2 * q + 1}]")
    for i in range(0, 16, 2):
        a(f"v_mov_b64 {vr(vM + i, 2)}, 0")
    a(f"""v_and_b32 v3, 31, v{vL}
v_and_b32 v4, 15, v{vL}
v_xor_b32 v2, v1, v4
v_lshlrev_b32 v2, 4, v2
v_lshl_or_b32 v{vP}, v3, 8, v2
""")
    for ks in range(1, 8):
        a(f"v_xor_b32 v{vP + ks}, {ks << 5}, v{vP}")
    a(f"""s_cmp_eq_u32 s{sW}, 1
s_cbranch_scc0 K2_NOSEL2
ds_write_b128 v5, {vr(vSEL, 4)} offset:{SEL2}
K2_NOSEL2:
s_cmp_eq_u32 s{sW}, 0
s_cbranch_scc0 K2_NOROWB
v_add_u32 v1, -1, v{vL}
v_lshlrev_b32 v4, 4, v1
v_lshlrev_b32 v4, v4, v0
v_ashrrev_i32 v2, 1, v1
v_mov_b32 v{vE}, 0
""")
    for q in range(3):
        a(f"v_cmp_eq_u32 s[{sT + 2 * q}:{sT + 2 * q + 1}], {q}, v2")
    for q in range(3):
        a(f"v_cndmask_b32 v{vE + 1 + q}, 0, v4, s[{sT + 2 * q}:{sT + 2 * q + 1}]")
    a(f"""ds_write_b128 v5, {vr(vE, 4)} offset:{ROWB}
K2_NOROWB:
""")
    stamp(1)
    a("s_waitcnt vmcnt(10)")
    stamp(2)
    MK = vX
    RQ = vE
    RK = vE + 8
    AD = vE + 12
    a(f"""K2_BATCH:
s_mov_b32 exec_hi, 0
v_lshrrev_b32 v1, 16, v{vCP}
v_and_b32 v{vCD}, 0xffff, v{vCP}
v_mov_b32 v2, v1
s_mov_b32 s{sT}, {CS}
v_mad_u32_u24 v{vCD}, v{vL}, s{sT}, v{vCD}
s_lshl_b32 s{sT}, s{sW}, 10
s_mul_i32 s{sT + 12}, s{sW}, {9 * 1024}
""")
    scan_add(a, [2], n64=False)
    a(f"""v_sub_u32 v1, v2, v1
v_readlane_b32 s{sTOT}, v2, 31
v_sub_u32 v{vCD}, v{vCD}, v1
v_sub_u32_e64 v1, v1, s{sBASE} clamp
v_cmpx_gt_u32 vcc, {RB}, v1
v_lshl_add_u32 v1, v1, 2, s{sT}
ds_max_u32 v1, v{vCD} offset:{TARR}
s_mov_b64 exec, -1
v_add_u32 v1, s{sT}, v{vL4}
""")
    for k in range(4):
        a(f"ds_read_b32 v{MK + k}, v1 offset:{TARR + 256 * k}")
    a(f"s_sub_i32 s{sT + 1}, s{sTOT}, s{sBASE}")
    for k in range(4):
        a(f"v_cmp_gt_i32 s[{sEX + 2 * k}:{sEX + 2 * k + 1}], s{sT + 1}, v{vL}")
        if k < 3:
            a(f"s_sub_i32 s{sT + 1}, s{sT + 1}, 64")
    a(f"""s_lshl_b32 s{sT + 2}, s{sBASE}, 3
s_add_u32 s{sT + 2}, s{sT + 2}, s{sRO}
s_waitcnt lgkmcnt(0)
""")
    scan_add(a, [MK + k for k in range(4)], op="v_max_u32")
    for k in range(3):
        a(f"v_readlane_b32 s{sT + 4 + k}, v{MK + k}, 63")
    a(f"v_add_lshl_u32 v{MK}, v{MK}, v{vL}, 3")
    a(f"buffer_load_dwordx2 {vr(RQ, 2)}, v{MK}, s[12:15], s{sT + 2} offen")
    for k in range(1, 3):
        a(f"s_max_u32 s{sT + 4 + k}, s{sT + 4 + k}, s{sT + 3 + k}")
    for k in range(1, 4):
        a(f"v_max_u32 v{MK + k}, s{sT + 3 + k}, v{MK + k}")
        a(f"v_add_lshl_u32 v{MK + k}, v{MK + k}, v{vL}, 3")
        a(f"buffer_load_dwordx2 {vr(RQ + 2 * k, 2)}, v{MK + k}, s[12:15], s{sT + 2} offen offset:{512 * k}")
    stamp(3)
    a(f"""s_cmp_lg_u32 s{sBASE}, 0
s_cbranch_scc1 K2_SKIPGEMM
""")
    for j in range(3):
        a(pos_dma(j))
    a(f"""s_waitcnt vmcnt(15) lgkmcnt(0)
s_barrier
""")
    stamp(4)
    jobs = [(ks, rho) for ks in range(8) for rho in range(2)]
    DEP = 7

    def rdh(j):
        ks, rho = jobs[j]
        a(f"ds_read_b128 {vr(vD + 4 * (j % 8), 4)}, v{vP + ks} offset:{HST + 8192 * rho}")
    a(f"""v_lshlrev_b32 v1, 1, v{vL4}
v_and_b32 v2, 496, v5
ds_read_b32 v{vY}, v1 offset:{CONL}
ds_read_b32 v{vY + 4}, v1 offset:{CONL + 4}
ds_read_b128 {vr(vWX, 4)}, v2 offset:{CONL + 512}
""")
    for j in range(DEP):
        rdh(j)
    a("s_waitcnt vmcnt(7)")
    for j, (ks, rho) in enumerate(jobs):
        if j + DEP < 16:
            rdh(j + DEP)
        a(f"s_waitcnt lgkmcnt({min(DEP, 15 - j)})")
        c = "0" if ks == 0 else vr(vC + 16 * rho, 16)
        a(f"v_mfma_f32_32x32x16_bf16 {vr(vC + 16 * rho, 16)}, {vr(vD + 4 * (j % 8), 4)}, {vr(vG + 4 * ks, 4)}, {c}")
        if j % 2 == 1 and 3 + j // 2 < 9:
            a(pos_dma(3 + j // 2))
    stamp(5)
    a(f"""s_waitcnt vmcnt(9)
K2_RANK:
v_mov_b32 v0, 1
""")
    for k in range(4):
        a(f"v_and_b32 v{AD + k}, 0xff, v{RQ + 2 * k + 1}")
    for k in range(4):
        a(f"s_mov_b64 exec, s[{sEX + 2 * k}:{sEX + 2 * k + 1}]")
        a(f"ds_add_rtn_u32 v{RK + k}, v{AD + k}, v0 offset:{CNT}")
    a(f"""s_mov_b64 exec, -1
s_lshl_b32 s{sT}, s{sW}, 2
v_mov_b32 v1, s{sT}
v_mov_b32 v2, s{sTOT}
ds_write_b32 v1, v2 offset:{CNT + 224}
s_cmp_lg_u32 s{sBASE}, 0
s_cbranch_scc1 K2_NOY
""")
    pos_extra("A")
    a(f"""s_mov_b32 s{sT}, {f32(-LOG2E)}
s_mov_b32 s{sT + 1}, {f32(-LOG2E)}
""")
    for i in range(0, 28, 2):
        a(f"v_pk_mul_f32 {vr(vC + i, 2)}, {vr(vC + i, 2)}, s[{sT}:{sT + 1}]")
    a(f"""v_mov_b64 {vr(vC + 28, 2)}, 0
v_mov_b64 {vr(vC + 30, 2)}, 0
s_cmp_ge_u32 s{sW}, 4
s_cbranch_scc1 K2_HIY
v_lshrrev_b32 v1, 5, v{vL}
v_and_b32 v2, 124, v{vL4}
v_lshl_or_b32 v2, v1, 10, v2
s_lshl_b32 s{sT + 2}, s{sW}, 7
s_add_u32 s{sT + 2}, s{sT + 2}, {YTAB}
v_add_u32 v2, s{sT + 2}, v2
""")
    for i in range(0, 28, 2):
        rho, r = i // 16, i % 16
        pair = 16 * rho + 4 * (r >> 2) + ((r & 3) >> 1)
        a(f"v_cvt_pk_bf16_f32 v{vD + i // 2}, v{vC + i}, v{vC + i + 1}")
        a(f"ds_write_b32 v2, v{vD + i // 2} offset:{512 * pair}")
    a(f"""K2_NOY:
s_waitcnt lgkmcnt(0)
""")
    stamp(6)
    a(f"""s_barrier
ds_read_b32 v3, v{vL4} offset:{CNT}
v_cmp_gt_u32 vcc, {BN}, v{vL}
s_add_u32 s{sT + 8}, s{sBASE}, {RB}
v_bfrev_b32 v1, -2
s_waitcnt lgkmcnt(0)
v_max_u32 v4, 4, v3
v_cndmask_b32 v4, 0, v4, vcc
v_cmp_lt_u32 s[{sT + 6}:{sT + 7}], s{sT + 8}, v3
v_mov_b32 v2, v4
""")
    scan_add(a, [2])
    a(f"""v_sub_u32 v4, v2, v4
v_readlane_b32 s{sT}, v2, 63
""")
    for k in range(4):
        a(f"ds_bpermute_b32 v{MK + k}, v{AD + k}, v4")
    a(f"""v_cndmask_b32 v{vOFF}, v1, v4, vcc
s_lshr_b32 s{sMORE}, s{sT + 7}, 24
v_mov_b32 v0, 0xff00ffff
v_mov_b32 v1, 252
s_cmp_gt_u32 s{sW}, 4
s_cbranch_scc1 K2_NOPAD
s_cmp_eq_u32 s{sW}, 4
s_cbranch_scc1 K2_TAILPAD
v_add_lshl_u32 v4, v4, s{sW}, 3
s_mov_b64 exec, vcc
v_cmpx_ge_u32 vcc, s{sW}, v3
s_branch K2_DOPAD
K2_TAILPAD:
v_add_lshl_u32 v4, s{sT}, v{vL}, 3
K2_DOPAD:
ds_write_b64 v4, v[0:1] offset:{CREC}
s_mov_b64 exec, -1
K2_NOPAD:
s_add_u32 s{sT}, s{sT}, 15
s_lshr_b32 s{sT}, s{sT}, 4
s_lshr_b32 s{sT + 1}, s{sT}, 3
s_and_b32 s{sT + 2}, s{sT}, 7
s_mul_i32 s{sCUR}, s{sW}, s{sT + 1}
s_min_u32 s{sT + 3}, s{sW}, s{sT + 2}
s_add_u32 s{sCUR}, s{sCUR}, s{sT + 3}
s_add_u32 s{sEND}, s{sCUR}, s{sT + 1}
s_cmp_lt_u32 s{sW}, s{sT + 2}
s_addc_u32 s{sEND}, s{sEND}, 0
s_waitcnt lgkmcnt(0)
""")
    for k in range(4):
        a(f"v_add_lshl_u32 v{MK + k}, v{MK + k}, v{RK + k}, 3")
    for k in range(4):
        a(f"s_mov_b64 exec, s[{sEX + 2 * k}:{sEX + 2 * k + 1}]")
        a(f"ds_write_b64 v{MK + k}, {vr(RQ + 2 * k, 2)} offset:{CREC}")
    a("s_mov_b64 exec, -1")

    def window(first_step_sgpr):
        a(f"""s_lshl_b32 s{sT + 10}, s{first_step_sgpr}, 4
v_cmp_ge_u32 vcc, s{sT + 10}, v{vOFF}
s_bcnt1_i32_b64 s{sT + 9}, vcc
s_sub_u32 s{sT + 9}, s{sT + 9}, 1
s_lshr_b32 s{sP0}, s{sT + 9}, 1
s_lshl_b32 s{sT}, s{sP0}, 1
s_add_u32 s{sT}, s{sT}, 6
v_readlane_b32 s{sSW}, v{vOFF}, s{sT}
s_mul_i32 s{sT}, s{sP0}, 43
s_lshr_b32 s{sT}, s{sT}, 7
s_mul_i32 s{sT}, s{sT}, 3
s_lshr_b32 s{sSW}, s{sSW}, 4
""")

    def load_y():
        for i in range(3):
            a(f"""s_add_u32 s{sT + 4}, s{sT}, {i}
s_cmp_lt_u32 s{sT + 4}, s{sP0}
s_cselect_b32 s{sT + 1}, 3, 0
s_add_u32 s{sT + 4}, s{sT + 4}, s{sT + 1}
s_lshl_b32 s{sT + 4}, s{sT + 4}, 9
v_add_u32 v{1 + i}, s{sT + 4}, v{vL4}
ds_read_b32 v{vY + 1 + i}, v{1 + i} offset:{YTAB}
ds_read_b32 v{vY + 5 + i}, v{1 + i} offset:{YTAB + 256}
""")

    window(sCUR)
    a(f"""s_mov_b32 s{sPF}, s{sP0}
s_sub_u32 s{sRES}, s{sP0}, s{sT}
""")
    load_y()
    a(f"""v_readlane_b32 s{sT + 2}, v{vOFF}, s{sT + 9}
s_lshl_b32 s{sT + 11}, s{sEND}, 4
v_cmp_gt_u32 vcc, s{sT + 11}, v{vOFF}
s_bcnt1_i32_b64 s{sNL}, vcc
s_sub_u32 s{sNL}, s{sNL}, 1
s_mul_i32 s{sT + 3}, s{sP0}, {2 * RST}
s_and_b32 s{sT + 4}, s{sT + 9}, 1
s_add_u32 s{sT + 5}, s{sW}, 56
s_sub_u32 s{sT + 5}, s{sT + 5}, s{sT + 4}
s_mul_i32 s{sT + 5}, s{sT + 5}, {RST}
s_cmp_lt_u32 s{sT + 2}, s{sT + 10}
s_cselect_b32 s{sT + 5}, s{sT + 5}, s{sT + 3}
s_cmp_eq_u32 s{sT + 4}, 0
s_cselect_b32 s{sT + 6}, s{sT + 3}, s{sT + 5}
s_cselect_b32 s{sT + 5}, s{sT + 5}, 0x1000000
v_add_u32 v{vFA}, s{sT + 6}, v{vLR}
s_mov_b32 exec_hi, 0
v_add_u32 v{vFA}, s{sT + 5}, v{vLR}
s_mov_b32 exec_hi, -1
s_lshl_b32 s{sT + 2}, s{sT + 9}, 3
s_add_u32 s{sT + 3}, s{sT + 2}, s{sW}
s_lshl_b32 s{sT + 3}, s{sT + 3}, 1
s_lshl_b32 s{sT + 4}, s{sW}, 2
v_mov_b32 v0, s{sT + 3}
v_mov_b32 v4, 0x3f80
ds_write_b16 v0, v4 offset:{SEL2}
v_mov_b32 v0, s{sT + 4}
v_mov_b32 v4, s{sT + 2}
ds_write_b32 v0, v4 offset:{HEAD}
s_lshl_b32 s{sT + 8}, s{sCUR}, 7
v_lshl_add_u32 v0, v{vL}, 3, s{sT + 8}
s_add_u32 s{sT + 8}, s{sT + 8}, {CREC}
v_add_u32 v{vAX}, s{sT + 8}, v{vAX}
v_add_u32 v{vAS}, s{sT + 8}, v{vAS}
v_add_u32 v{vAT}, s{sT + 8}, v{vAT}
s_mov_b32 s{sFL}, -1
s_sub_u32 s{sEVT}, s{sSW}, 1
s_sub_i32 s{sPR}, s{sEND}, 2
s_max_i32 s{sPR}, s{sPR}, s{sCUR}
s_cmp_lt_u32 s{sW}, 4
s_cselect_b32 s{sPR}, s{sPR}, -1
s_min_u32 s{sEVT}, s{sEVT}, s{sPR}
s_sub_u32 s{sT + 11}, s{sT + 11}, s{sT + 10}
s_mov_b32 s{sT + 2}, {f32(KAPPA)}
s_mov_b32 s{sT + 3}, 0xffff0000
s_mov_b32 s{sT + 4}, {POS}
""")
    stamp(7)
    a(f"""s_waitcnt vmcnt(0) lgkmcnt(0)
s_barrier
""")
    stamp(8)
    R2, PP, RA, PA = vD, vD + 8, vD + 16, vE
    a(f"""ds_read_u16 v{vSRC}, v{vAS}
ds_read_u8 v{vX}, v{vAX} offset:2
ds_read_u8 v{vX + 4}, v{vAX} offset:{128 + 2}
ds_read2_b32 {vr(vT, 2)}, v{vAT} offset0:0 offset1:4
s_waitcnt lgkmcnt(3)
""")
    for u in range(4):
        a(f"buffer_load_dwordx4 {vr(vG + 4 * u, 4)}, {vr(vSRC, 2)}, s[16:19], 0 idxen offen offset:{64 * u}")
    a(f"""ds_read_u16 v{vSRC}, v{vAS} offset:128
K2_ST2:
""")
    for k in range(4):
        a(f"ds_read_b64 {vr(R2 + 2 * k, 2)}, v0 offset:{CREC + 512 * k}")
    for k in range(4):
        a(f"v_cmp_gt_i32 s[{sEX + 2 * k}:{sEX + 2 * k + 1}], s{sT + 11}, v{vL}")
        a(f"s_sub_i32 s{sT + 11}, s{sT + 11}, 64")
    a("s_waitcnt lgkmcnt(0)")
    for k in (3, 2, 1, 0):
        a(f"""s_mov_b64 exec, s[{sEX + 2 * k}:{sEX + 2 * k + 1}]
v_mad_u32_u16 v{PA + k}, v{R2 + 2 * k}, 6, s{sT + 4}
v_lshlrev_b32_sdwa v2, 2, v{R2 + 2 * k + 1} dst_sel:DWORD dst_unused:UNUSED_PAD src0_sel:DWORD src1_sel:BYTE_0
v_and_b32 v1, -4, v{PA + k}
ds_read_b128 {vr(RA + 4 * k, 4)}, v2 offset:{ROWA}
ds_read2_b32 {vr(PP + 2 * k, 2)}, v1 offset0:0 offset1:1
""")
    for k in (3, 2, 1, 0):
        p, ra, q = PP + 2 * k, RA + 4 * k, R2 + 2 * k
        a(f"s_mov_b64 exec, s[{sEX + 2 * k}:{sEX + 2 * k + 1}]")
        if k:
            a(f"s_cbranch_execz K2_SKIP{k}")
        a(f"""s_waitcnt lgkmcnt({2 * k})
v_alignbyte_b32 v2, v{p + 1}, v{p}, v{PA + k}
v_alignbyte_b32 v3, v{p + 1}, v{p + 1}, v{PA + k}
v_lshlrev_b32 v1, 16, v2
v_and_b32 v2, s{sT + 3}, v2
v_lshlrev_b32 v3, 16, v3
v_sub_f32 v1, v{ra}, v1
v_sub_f32 v2, v{ra + 1}, v2
v_sub_f32 v3, v{ra + 2}, v3
v_mul_f32 v4, v1, v1
v_cvt_pk_bf16_f32 v{p}, s{sT + 2}, v1
v_fmac_f32 v4, v2, v2
v_cvt_pk_bf16_f32 v{p + 1}, v2, v3
v_fmac_f32 v4, v3, v3
v_mul_f32 v4, {f32(-LOG2E)}, v4
v_cvt_pk_bf16_f32 v{q + 1}, v4, v{q + 1}
ds_write_b64 v0, {vr(p, 2)} offset:{TARR + 512 * k}
ds_write_b32 v0, v{q + 1} offset:{CREC + 512 * k + 4}
""")
        if k:
            a(f"K2_SKIP{k}:")
    a(f"""s_mov_b64 exec, -1
v_add_u32 v0, 2048, v0
s_cmp_gt_i32 s{sT + 11}, 0
s_cbranch_scc1 K2_ST2
""")
    for u in range(4):
        a(f"buffer_load_dwordx4 {vr(vG + 16 + 4 * u, 4)}, {vr(vSRC, 2)}, s[16:19], 0 idxen offen offset:{64 * u}")
    a(f"""ds_read_b128 {vr(vX, 4)}, v{vX} offset:{ROWB}
ds_read_b32 v{vX}, v{vAX} offset:4
ds_read_b128 {vr(vX + 4, 4)}, v{vX + 4} offset:{ROWB}
ds_read_b32 v{vX + 4}, v{vAX} offset:{128 + 4}
ds_read_u16 v{vSRC}, v{vAS} offset:256
s_mul_i32 s{sT}, s{sW}, {RST}
s_add_u32 s{sT}, s{sT}, {ROWS + 56 * RST}
v_lshl_add_u32 v1, v{vL}, 4, s{sT}
""")
    stamp(9)
    a(f"""s_barrier
s_mov_b32 exec_hi, 0xffff
ds_write_b128 v1, {vr(vSEL, 4)}
s_mov_b32 exec_hi, -1
s_setprio 1
s_cmp_lt_u32 s{sW}, 4
s_cbranch_scc0 K2_PRIO
s_setprio 2
K2_PRIO:
s_waitcnt vmcnt(4) lgkmcnt(0)
""")

    def pre(d, g, x, tau):
        return [
            f"v_mfma_f32_32x32x16_bf16 {vr(d, 16)}, {vr(g + 8 * tau, 4)}, {vr(vI, 4)}, 0",
            f"v_mfma_f32_32x32x16_bf16 {vr(d, 16)}, {vr(g + 8 * tau + 4, 4)}, {vr(vI + 4, 4)}, {vr(d, 16)}",
            f"v_mfma_f32_32x32x16_bf16 {vr(d, 16)}, {vr(x, 4)}, {vr(vY + 4 * tau, 4)}, {vr(d, 16)}",
        ]

    def seg(tau):
        return [f"v_smfmac_f32_32x32x32_bf16 {vr(vACC + 16 * (2 * tau + s), 16)}, {vr(vSEL, 4)}, {vr(vM + 8 * s, 8)}, v{vIDX}"
                for s in range(2)]

    for m in pre(vD, vG, vX, 0):
        a(m)

    def tile(d, mp, ms, mid, extra):
        for r in range(16):
            if r in (0, 3, 6):
                a(mp[r // 3])
            if r == 9:
                if mid:
                    a("s_waitcnt lgkmcnt(0)")
                a(ms[0])
                for x in mid:
                    a(x)
            wide = "_e64" if (r in (2, 5) or (r == 8 and not mid) or r == 15) else ""
            a(f"v_exp_f32{wide} v{vE + r}, v{d + r}")
        for g in range(0, 16, 2):
            a(f"v_pk_fma_f32 {vr(vE + g, 2)}, {vr(vE + g, 2)}, s[{sKP}:{sKP + 1}], s[{sKP}:{sKP + 1}] clamp")
        for g in range(4):
            a(f"v_pk_mul_f32 {vr(vP + 2 * g, 2)}, {vr(vE + 4 * g, 2)}, {vr(vE + 4 * g + 2, 2)}")
        for g in range(2):
            a(f"v_pk_mul_f32 {vr(vQ + 2 * g, 2)}, {vr(vP + 4 * g, 2)}, {vr(vP + 4 * g + 2, 2)}")
        for g in range(4):
            a(f"v_pk_mul_f32 {vr(vE + 4 * g + 2, 2)}, {vr(d + 4 * g, 2)}, {vr(vE + 4 * g + 2, 2)}")
            a(f"v_pk_mul_f32 {vr(vE + 4 * g, 2)}, {vr(vE + 4 * g, 2)}, {vr(d + 4 * g + 2, 2)}")
        a(ms[1])
        for r in range(4):
            a(f"v_rcp_f32 v{vQ + r}, v{vQ + r}")
        for x in extra:
            a(x)
        for g in range(4):
            a(f"v_pk_mul_f32 {vr(vP + 2 * g, 2)}, {vr(vP + 2 * g, 2)}, {vr(vQ + 2 * (g // 2), 2)}")
        for g in range(4):
            o = vP + 2 * (g ^ 1)
            a(f"v_pk_mul_f32 {vr(vM + 2 * g, 2)}, {vr(vE + 4 * g + 2, 2)}, {vr(o, 2)}")
            a(f"v_pk_mul_f32 {vr(vM + 8 + 2 * g, 2)}, {vr(vE + 4 * g, 2)}, {vr(o, 2)}")

    TOFF = TARR - CREC

    def step(par):
        g, x = vG + 16 * par, vX + 4 * par
        gn, xn = vG + 16 * (1 - par), vX + 4 * (1 - par)
        ex = [f"v_and_or_b32 v{vT + i}, v{vT + i}, v{vK}, v{vAT}" for i in range(2)]
        tile(vD, pre(vD + 16, g, x, 1), seg(1), [], ex)
        for u in range(4):
            a(f"buffer_load_dwordx4 {vr(g + 4 * u, 4)}, {vr(vSRC, 2)}, s[16:19], 0 idxen offen offset:{64 * u}")
        a(f"""ds_read_b64_tr_b16 {vr(vSEL, 2)}, v{vT} offset:{TOFF + 128 * par}
ds_read_b64_tr_b16 {vr(vSEL + 2, 2)}, v{vT + 1} offset:{TOFF + 128 * par + 16}
ds_read_u8 v{x}, v{vAX} offset:{256 + 128 * par + 2}
ds_read2_b32 {vr(vT, 2)}, v{vAT} offset0:{32 * par + 32} offset1:{32 * par + 36}
ds_read_u16 v{vSRC}, v{vAS} offset:{384 + 128 * par}
s_cmp_eq_u32 s{sCUR}, s{sEVT}
s_cbranch_scc1 K2_EVT{par}
K2_RET{par}:
s_add_u32 s{sCUR}, s{sCUR}, 1
s_waitcnt vmcnt(4) lgkmcnt(5)
""")
        mid = [f"ds_read_b128 {vr(x, 4)}, v{x} offset:{ROWB}", f"ds_read_b32 v{x}, v{vAX} offset:{256 + 128 * par + 4}"]
        ex = []
        if par == 1:
            ex = [f"v_add_u32 v{vAX}, s{sC}, v{vAX}", f"v_add_u32 v{vAS}, s{sC}, v{vAS}", f"v_add_u32_e64 v{vAT}, s{sC}, v{vAT}"]
        tile(vD + 16, pre(vD, gn, xn, 0), seg(0), mid, ex)
        a(f"s_cmp_lt_u32 s{sCUR}, s{sEND}")
        a("s_cbranch_scc0 K2_DONE" if par == 0 else "s_cbranch_scc1 K2_LOOP")

    stamp(10)
    a(f"""s_nop 11
.p2align 3
K2_LOOP:
""")
    step(0)
    step(1)
    a("K2_DONE:")
    stamp(11)
    for m in seg(1):
        a(m)
    a(f"""s_lshl_b32 s{sT + 8}, s{sW}, 13
s_add_u32 s{sT + 8}, s{sT + 8}, {WF_OFF + 32768}
s_add_u32 s{sT + 9}, s{sT + 8}, 4096
v_lshlrev_b32 v5, 4, v{vL}
s_mov_b32 s{sMODE}, 2
s_lshr_b32 s{sLF}, s{sNL}, 1
s_cmp_lt_u32 s{sW}, 4
s_cbranch_scc1 K2_FLUSH
""")
    for ks in range(8):
        a(f"buffer_load_dwordx4 {vr(vG + 4 * ks, 4)}, v5, s[12:15], s{sT + 8 + ks // 4} offen offset:{1024 * (ks % 4)}")
    a(f"""K2_FLUSH:
s_cmp_eq_u32 s{sRES}, 1
s_cbranch_scc1 K2_FL1
s_cmp_eq_u32 s{sRES}, 2
s_cbranch_scc1 K2_FL2
""")
    for i in range(3):
        r = lambda cb, c=0: vACC + 16 * cb + 4 * i + c
        a(f"""K2_FL{i}:
s_lshl_b32 s{sT}, s{sPF}, 1
s_cmp_eq_u32 s{sT}, s{sNL}
s_cselect_b32 exec_hi, 0, -1
s_add_u32 s{sPF}, s{sPF}, 1
s_mul_i32 s{sT}, s{sPF}, {2 * RST}
s_mov_b32 s{sRES}, {(i + 1) % 3}
v_pk_mul_f32 v[2:3], {vr(r(0), 2)}, {vr(vWX, 2)} op_sel:[0,0] op_sel_hi:[1,0]
v_pk_mul_f32 v[4:5], {vr(r(0, 2), 2)}, {vr(vWX, 2)} op_sel:[0,0] op_sel_hi:[1,0]
v_cvt_pk_bf16_f32 v0, v{r(0)}, v{r(1)}
""")
        for cb in range(1, 4):
            o = cb & 1
            for h in range(2):
                a(f"v_pk_fma_f32 v[{2 + 2 * h}:{3 + 2 * h}], {vr(r(cb, 2 * h), 2)}, {vr(vWX + (cb & 2), 2)}, v[{2 + 2 * h}:{3 + 2 * h}] "
                  f"op_sel:[0,{o},0] op_sel_hi:[1,{o},1]")
        a(f"""v_cvt_pk_bf16_f32 v1, v{r(2)}, v{r(3)}
ds_write2_b64 v{vFA}, v[2:3], v[4:5] offset0:32 offset1:64
ds_write_b64 v{vFA}, v[0:1]
v_add_u32 v{vFA}, s{sT}, v{vLR}
s_cmp_eq_u32 s{sMODE}, 2
s_cbranch_scc1 K2_FLZ{i}
""")
        for cb in range(4):
            for h in range(2):
                a(f"v_mov_b64 {vr(r(cb, 2 * h), 2)}, 0")
        a(f"""K2_FLZ{i}:
s_cmp_le_i32 s{sPF}, s{sLF}
""")
        a("s_cbranch_scc0 K2_FLEND" if i < 2 else "s_cbranch_scc1 K2_FL0")
    a(f"""K2_FLEND:
s_cmp_lg_u32 s{sMODE}, 2
s_cbranch_scc1 K2_EVA
s_mov_b32 exec_hi, -1
s_cmp_lt_u32 s{sW}, 4
s_cbranch_scc1 K2_POS
""")
    S2, TB = vE, vE + 8
    NP = 13
    hx = {0: vAX, 2: vAT, 8: vK, 10: vOFF}
    rows = []
    for p in range(NP):
        rho, r = (2 * p) // 16, (2 * p) % 16
        rows.append(32 * rho + 8 * (r >> 2) + (r & 3))
    a(f"""v_and_b32 v1, 31, v{vL}
v_lshrrev_b32 v2, 5, v{vL}
v_lshlrev_b32 v3, 4, v1
v_lshl_or_b32 v3, v2, 3, v3
ds_read_b64 {vr(S2, 2)}, v3 offset:{SEL2}
ds_read_b64 {vr(S2 + 4, 2)}, v3 offset:{SEL2 + 512}
v_mul_u32_u24 v1, {RST}, v1
v_lshl_add_u32 v1, v2, 4, v1
v_add_u32 v1, {ROWS}, v1
v_mov_b64 {vr(S2 + 2, 2)}, 0
v_mov_b64 {vr(S2 + 6, 2)}, 0
v_mov_b64 {vr(TB + 2, 2)}, 0
""")
    stamp(12)
    a(f"""s_waitcnt lgkmcnt(0)
s_barrier
""")
    stamp(13)
    jobs = [(rho, ks) for rho in (1, 0) for ks in range(8)]
    for j, (rho, ks) in enumerate(jobs[:15]):
        a(f"ds_read_b128 {vr(vACC + 4 * j, 4)}, v1 offset:{rho * 32 * RST + ks * 32}")
    a("s_waitcnt vmcnt(0)")

    def mm(j):
        rho, ks = jobs[j]
        if j == 0:
            a("s_waitcnt lgkmcnt(14)")
            a(f"ds_read_b128 {vr(vACC + 60, 4)}, v1 offset:{7 * 32}")
        else:
            a(f"s_waitcnt lgkmcnt({15 - j})")
        a(f"v_mfma_f32_32x32x16_bf16 {vr(vC + 16 * rho, 16)}, {vr(vACC + 4 * j, 4)}, {vr(vG + 4 * ks, 4)}, {vr(vC + 16 * rho, 16)}")
    for j in range(10):
        mm(j)
    a(f"""v_cvt_pk_bf16_f32 v{TB}, v{vC + 28}, v{vC + 29}
v_cvt_pk_bf16_f32 v{TB + 1}, v{vC + 30}, v{vC + 31}
""")
    mm(10)
    a(f"v_mfma_f32_32x32x16_bf16 {vr(vC + 16, 16)}, {vr(S2 + 4, 4)}, {vr(TB, 4)}, {vr(vC + 16, 16)}")
    for j in range(11, 16):
        mm(j)
    a(f"v_mfma_f32_32x32x16_bf16 {vr(vC, 16)}, {vr(S2, 4)}, {vr(TB, 4)}, {vr(vC, 16)}")
    a(f"""s_cmp_lg_u32 s{sMORE}, 0
s_cbranch_scc1 K2_MORE
s_mul_i32 s{sT}, s2, {BN * 256}
s_add_u32 s20, s20, s{sT}
s_addc_u32 s21, s21, 0
s_mov_b32 s22, s6
s_mov_b32 s23, {FMT}
s_sub_u32 s{sT + 1}, s{sW}, 4
s_lshl_b32 s{sT + 2}, s{sT + 1}, 6
s_lshl_b32 s{sT + 3}, s{sT + 1}, 2
v_bfe_u32 v3, v{vL}, 4, 1
v_lshl_or_b32 v3, v2, 2, v3
v_and_b32 v4, 15, v{vL}
v_lshlrev_b32 v5, 8, v3
v_lshl_or_b32 v{vAS}, v4, 2, v5
v_add_u32 v{vAS}, s{sT + 2}, v{vAS}
v_lshrrev_b32 v4, 2, v4
v_or_b32 v4, s{sT + 3}, v4
v_xor_b32 v4, v4, v3
v_lshl_or_b32 v5, v4, 4, v5
v_and_b32 v4, 3, v{vL}
v_lshl_or_b32 v{vAX}, v4, 2, v5
v_xor_b32 v{vAT}, 32, v{vAX}
v_xor_b32 v{vK}, 128, v{vAX}
v_xor_b32 v{vOFF}, 160, v{vAX}
""")
    stamp(14)
    for p in range(NP):
        a(f"ds_read_b32 v{vX + p}, v{hx[rows[p] & 15]} offset:{HST + rows[p] * 256}")
    a(f"""s_mov_b32 s{sT}, {f32(-LN2)}
s_mov_b32 s{sT + 1}, {f32(-LN2)}
s_mov_b32 s{sT + 2}, 0xffff0000
s_mov_b32 s{sT + 4}, 0
s_mov_b32 s{sT + 5}, 4096
s_mov_b32 s{sT + 6}, 8192
s_mov_b32 s{sT + 7}, 12288
""")
    first = True
    for ps in ([8, 9, 10, 11, 12], [0, 1, 2, 3], [4, 5, 6, 7]):
        for p in ps:
            a(f"v_permlane16_swap_b32 v{vC + 2 * p}, v{vC + 2 * p + 1}")
        for p in ps:
            for i in range(2):
                a(f"v_exp_f32 v{vD + 2 * p + i}, v{vC + 2 * p + i}")
        if first:
            a("s_waitcnt lgkmcnt(0)")
            first = False
        for p in ps:
            a(f"v_pk_add_f32 {vr(vD + 2 * p, 2)}, {vr(vD + 2 * p, 2)}, 1.0 op_sel_hi:[1,0]")
        for p in ps:
            for i in range(2):
                a(f"v_rcp_f32 v{vD + 2 * p + i}, v{vD + 2 * p + i}")
        for p in ps:
            a(f"v_lshlrev_b32 v{vG + 2 * p}, 16, v{vX + p}")
            a(f"v_and_b32 v{vG + 2 * p + 1}, s{sT + 2}, v{vX + p}")
        for p in ps:
            a(f"v_pk_mul_f32 {vr(vD + 2 * p, 2)}, {vr(vD + 2 * p, 2)}, {vr(vC + 2 * p, 2)}")
        for p in ps:
            a(f"v_pk_fma_f32 {vr(vD + 2 * p, 2)}, {vr(vD + 2 * p, 2)}, s[{sT}:{sT + 1}], {vr(vG + 2 * p, 2)}")
        for p in ps:
            a(f"v_cvt_pk_bf16_f32 v{vX + p}, v{vD + 2 * p}, v{vD + 2 * p + 1}")
        for p in ps:
            o = rows[p] * 256
            a(f"buffer_store_dword v{vX + p}, v{vAS}, s[20:23], s{sT + 4 + o // 4096} offen offset:{o % 4096}{SO}")
    dump()
    a("""K2_EXIT:
s_endpgm
""")
    a(f"""K2_POS:
s_lshl_b32 s{sT}, s{sW}, 8
s_add_u32 s{sT}, s{sT}, {ROWS + 256}
v_mul_u32_u24 v1, {RST}, v{vL}
v_add_u32 v1, s{sT}, v1
s_lshl_b32 s{sT + 1}, s{sW}, 9
v_lshl_add_u32 v2, v{vL}, 3, s{sT + 1}
ds_read_b32 v3, v{vL4} offset:{HEAD - 224}
""")
    stamp(12)
    a(f"""s_waitcnt lgkmcnt(0)
s_barrier
""")
    stamp(13)
    a(f"""s_cmp_ge_u32 s{sW}, 2
s_cbranch_scc1 K2_POSEND
""")
    for i in range(16):
        if i == 15:
            a("s_waitcnt lgkmcnt(14)")
        a(f"ds_read_b128 {vr(vACC + 4 * i, 4)}, v1 offset:{16 * i}")
    a(f"v_add_u32 v3, s{sT + 1}, v3")
    for i in range(8):
        a(f"s_waitcnt lgkmcnt({14 - 2 * i})")
        for h in range(2):
            a(f"v_pk_add_f32 {vr(vACC + 8 * i + 2 * h, 2)}, {vr(vACC + 8 * i + 2 * h, 2)}, {vr(vACC + 8 * i + 4 + 2 * h, 2)}")
    w = 32
    while w >= 8:
        for i in range(0, w, 8):
            for h in range(2):
                a(f"v_pk_add_f32 {vr(vACC + i + 2 * h, 2)}, {vr(vACC + i + 2 * h, 2)}, {vr(vACC + w + i + 2 * h, 2)}")
        w //= 2
    a(f"""v_pk_add_f32 {vr(vACC, 2)}, {vr(vACC, 2)}, {vr(vACC + 2, 2)}
v_pk_add_f32 {vr(vC + 28, 2)}, {vr(vC + 28, 2)}, {vr(vACC, 2)}
ds_write_b64 v2, {vr(vC + 28, 2)} offset:{PS}
s_mov_b32 exec_lo, 0
s_mov_b32 exec_hi, 0xff000000
ds_add_f32 v3, v{vACC} offset:{PS}
ds_add_f32 v3, v{vACC + 1} offset:{PS + 4}
s_mov_b64 exec, -1
ds_read_b64 {vr(vC + 28, 2)}, v2 offset:{PS}
v_lshlrev_b32 v4, 2, v{vL4}
s_lshl_b32 s{sT + 1}, s{sW}, 3
v_add_u32 v4, s{sT + 1}, v4
ds_read_b32 v0, v4 offset:{ROWA - 4}
ds_read_b32 v1, v4 offset:{ROWA}
s_cmp_lg_u32 s{sMORE}, 0
s_cbranch_scc1 K2_MORE
s_mul_i32 s{sT}, s2, {BN * 6}
s_sub_u32 s22, {N * 6}, s{sT}
s_min_u32 s22, s22, {BN * 6}
s_add_u32 s{sT}, s{sT}, {N * 256}
s_add_u32 s20, s20, s{sT}
s_addc_u32 s21, s21, 0
s_mov_b32 s23, {FMT}
v_mul_u32_u24 v5, 6, v{vL}
v_cmp_gt_u32 vcc, s22, v5
s_add_u32 s22, s22, 2
s_lshl_b32 s{sT + 1}, s{sW}, 2
s_waitcnt lgkmcnt(0)
v_pk_add_f32 v[0:1], v[0:1], {vr(vC + 28, 2)}
v_cvt_pk_bf16_f32 v4, v0, v1
s_mov_b64 exec, vcc
buffer_store_short_d16_hi v4, v5, s[20:23], s{sT + 1} offen
s_cmp_eq_u32 s{sW}, 0
s_cbranch_scc1 K2_EXIT2
buffer_store_short v4, v5, s[20:23], 0 offen offset:2
s_branch K2_EXIT2
K2_POSEND:
s_cmp_lg_u32 s{sMORE}, 0
s_cbranch_scc1 K2_MORE
K2_EXIT2:
""")
    dump()
    a("s_endpgm")
    a(f"""K2_JOB67:
s_cmp_eq_u32 s{sW}, 7
s_cbranch_scc1 K2_JOB7
s_mov_b32 m0, {CONL}
s_mov_b32 s{sT + 8}, {CON_OFF}
buffer_load_dwordx4 v5, s[12:15], s{sT + 8} offen lds
s_branch K2_JOBRET
K2_JOB7:
s_mul_i32 s{sT + 8}, s2, {BN * 6}
v_mul_u32_u24 v1, 6, v{vL}
v_mov_b64 {vr(vPD, 2)}, 0
s_mov_b32 exec_hi, {(1 << (BN - 32)) - 1}
buffer_load_dwordx2 {vr(vPD, 2)}, v1, s[8:11], s{sT + 8} offen
s_mov_b32 exec_hi, -1
s_branch K2_JOBRET
K2_HIY:
s_cmp_eq_u32 s{sW}, 7
s_cbranch_scc0 K2_NOY
v_lshlrev_b32 v2, 16, v{vPD}
v_and_b32 v3, 0xffff0000, v{vPD}
v_lshlrev_b32 v4, 16, v{vPD + 1}
ds_write_b96 v5, v[2:4] offset:{ROWA}
s_branch K2_NOY
K2_SKIPGEMM:
s_waitcnt vmcnt(0) lgkmcnt(0)
s_barrier
s_branch K2_RANK
""")
    a(f"""K2_MORE:
s_waitcnt vmcnt(0) lgkmcnt(0)
s_barrier
s_setprio 0
s_add_u32 s{sBASE}, s{sBASE}, {RB}
v_and_b32 v{vAS}, 0x7f, v{vAS}
v_and_b32 v{vAX}, 0x0100007f, v{vAX}
v_and_b32 v{vAT}, 0x7f, v{vAT}
v_mov_b64 {vr(vSEL, 2)}, 0
v_mov_b64 {vr(vSEL + 2, 2)}, 0
v_lshlrev_b32 v5, 4, v{vL}
s_cmp_lt_u32 s{sW}, 4
s_cbranch_scc1 K2_KEEP
v_mov_b64 {vr(vC + 28, 2)}, 0
v_mov_b64 {vr(vC + 30, 2)}, 0
K2_KEEP:
""")
    hop1_addr()
    hop1()
    a(f"s_mul_i32 s{sT + 12}, s{sW}, {9 * 1024}")
    for j in range(9):
        a(pos_dma(j))
    pos_extra("B")
    a(f"""s_lshl_b32 s{sT}, s{sW}, 10
v_add_u32 v1, s{sT}, v5
ds_write_b128 v1, {vr(vSEL, 4)} offset:{TARR}
ds_write_b128 v5, {vr(vSEL, 4)} offset:{SEL2}
ds_write_b32 v{vL4}, v{vSEL} offset:{CNT}
""")
    zero_acc(vSEL)
    a(f"""s_waitcnt vmcnt(0)
s_branch K2_BATCH
""")
    a(f"""K2_EVT0:
s_mov_b32 s{sMODE}, 0
s_branch K2_EVT
K2_EVT1:
s_mov_b32 s{sMODE}, 1
K2_EVT:
s_cmp_lg_u32 s{sPR}, s{sCUR}
s_cbranch_scc1 K2_EVP
s_setprio 0
s_mov_b32 s{sPR}, -1
K2_EVP:
s_cmp_lg_u32 s{sFL}, s{sCUR}
s_cbranch_scc1 K2_EVA
s_mov_b32 s{sFL}, -1
s_sub_u32 s{sLF}, s{sP0}, 1
s_branch K2_FLUSH
K2_EVA:
s_sub_u32 s{sEVT}, s{sSW}, 1
s_cmp_lg_u32 s{sEVT}, s{sCUR}
s_cbranch_scc1 K2_EVB
s_mov_b32 s{sFL}, s{sSW}
s_mov_b32 s{sEVT}, s{sSW}
""")
    window(sFL)
    load_y()
    a(f"""s_waitcnt lgkmcnt(0)
K2_EVB:
s_min_u32 s{sEVT}, s{sEVT}, s{sPR}
s_cmp_eq_u32 s{sMODE}, 0
s_cbranch_scc1 K2_RET0
s_branch K2_RET1
""")


def kd(name, vgpr, sgpr=96):
    return f""".amdhsa_kernel {name}
  .amdhsa_next_free_vgpr {vgpr}
  .amdhsa_next_free_sgpr {sgpr}
  .amdhsa_accum_offset {(vgpr + 3) // 4 * 4}
  .amdhsa_group_segment_fixed_size 0
  .amdhsa_kernarg_size 88
  .amdhsa_user_sgpr_count 2
  .amdhsa_user_sgpr_kernarg_segment_ptr 1
  .amdhsa_system_sgpr_workgroup_id_x 1
.end_amdhsa_kernel
"""


def build(opt=None, verbose=False):
    opt = opt or {}
    ref = open(f"cdna_kernels/{NAME}.s.ref").read().split("\n")
    head = [l for l in ref if l.startswith(";") and "@launch" not in l and "Override" not in l and "grid=ceil" not in l]
    e = ref.index('.amdgcn_target "amdgcn-amd-amdhsa--gfx950"')
    head = [l for l in ref[:e] if "@launch" not in l and "Override" not in l and "grid=ceil" not in l]
    head.append(f"; @launch kernel=k1_kernel grid=({NB + NCH},1,1) block=(512,1,1) lds={K1_LDS}")
    head.append(f"; @launch kernel={NAME}_kernel grid=({NB},1,1) block=(512,1,1) lds={K2_LDS}")
    a1, a2 = Asm(), Asm()
    gen_k1(a1, opt)
    gen_k2(a2, opt)
    n1 = a1.fix_hazards(verbose)
    n2 = a2.fix_hazards(verbose)
    s = "\n".join(head) + '\n.amdgcn_target "amdgcn-amd-amdhsa--gfx950"\n.text\n'
    s += a1.text() + a2.text()
    s += '.section .rodata,"a"\n.p2align 6\n' + kd("k1_kernel", 104) + ".p2align 6\n" + kd(NAME + "_kernel", 256)
    return s


if __name__ == "__main__":
    out = sys.argv[1] if len(sys.argv) > 1 else f"cdna_kernels/{NAME}.s"
    opt = dict(kv.split("=") for kv in sys.argv[2:])
    open(out, "w").write(build(opt, verbose="v" in opt))
    print("written", out)
```

```python
import sys, struct, math
sys.path.insert(0, "work")
from asmlib import Asm, vr, sr

NAME = "standalone__cheap_equivariant_egnn__graph"
N, E = 12500, 400000
NB, BN = 256, 49
CH, NCH, CS = 1564, 256, 1568
WF_OFF = NCH * CS * 8
CON_OFF = WF_OFF + 98304
TAB_OFF = CON_OFF + 1024
WS1_SIZE = TAB_OFF + NCH * 1024 + 4096
BP_OFF = 4 << 20
DBG_OFF = 16 << 20
FMT = 0x00020000


def f32(x):
    return struct.unpack("<I", struct.pack("<f", x))[0]


LOG2E = 1.4426950408889634
LN2 = 0.6931471805599453
KAPPA = 2.0 ** -31
DELTA = 2.0 ** -8 * 0.70
K1_LDS = 49152

RB = 256
ROWB = 0
CNT = 256
HEAD = 512
ROWA = 1024
SEL2 = 2048
PS = 3072
CONL = 4096
CREC = 5120
TARR = CREC + 18432
HST = TARR + 18432
YTAB = HST + 14336
POS = YTAB + 14336
ROWS = POS
RST = 784
K2_LDS = POS + 74 * 1024


def scan_add(a, v, n64=True, op="v_add_u32"):
    for sh in (1, 2, 4, 8):
        for r in v:
            a(f"{op}_dpp v{r}, v{r}, v{r} row_shr:{sh} row_mask:0xf bank_mask:0xf bound_ctrl:1")
    for r in v:
        a(f"{op}_dpp v{r}, v{r}, v{r} row_bcast:15 row_mask:0xa bank_mask:0xf")
    if n64:
        for r in v:
            a(f"{op}_dpp v{r}, v{r}, v{r} row_bcast:31 row_mask:0xc bank_mask:0xf")


def diag_tools(a, opt, ws, lane, off, kern):
    diag = opt.get("diag")
    only = [int(x) for x in opt["st"].split(",")] if "st" in opt else None

    clk = "s_memrealtime" if "rt" in opt else "s_memtime"
    probe = opt["probe"].split(",") if "probe" in opt else None

    def entry():
        if diag:
            a(f"s_memrealtime s[86:87]\n{clk} s[70:71]")
        if probe and kern == "1":
            a("s_memrealtime s[86:87]")

    def stamp(i):
        if probe and kern == "1" and i == 1 and probe[0] == "2":
            a.nsave = getattr(a, "nsave", 0) + 1
            a(f"""s_cmp_eq_u32 s2, 0
s_cbranch_scc0 PSAVE{a.nsave}
v_mov_b32 v60, s86
v_mov_b32 v61, 0
s_mov_b32 s88, {WS1_SIZE - 4096}
buffer_store_dword v60, v61, s[16:19], s88 offen
PSAVE{a.nsave}:
""")
        if probe and probe[0] == kern and int(probe[1]) == i:
            a.nprobe = getattr(a, "nprobe", 0) + 1
            if kern == "2":
                a(f"""s_add_u32 s88, s12, {WS1_SIZE - 4096}
s_addc_u32 s89, s13, 0
s_load_dword s86, s[88:89], 0
""")
            a(f"""PROBE{kern}_{a.nprobe}:
s_memrealtime s[66:67]
s_waitcnt lgkmcnt(0)
s_sub_u32 s66, s66, s86
s_cmp_lt_u32 s66, {probe[2]}
s_cbranch_scc1 PROBE{kern}_{a.nprobe}
""")
        if diag and (only is None or i in only or i == 15):
            a(f"""{clk} s[66:67]
s_waitcnt lgkmcnt(0)
s_mov_b32 s{70 + i}, s66
""")

    def dump():
        stamp(15)
        if not diag:
            return
        a(f"""s_memrealtime s[66:67]
s_waitcnt lgkmcnt(0)
s_mov_b32 s87, s66
s_mov_b64 exec, -1
s_add_u32 s88, s{ws}, {off}
s_addc_u32 s89, s{ws + 1}, 0
s_mov_b32 s90, {1 << 20}
s_mov_b32 s91, {FMT}
s_lshl_b32 s66, s2, 3
s_add_u32 s66, s66, s3
s_lshl_b32 s66, s66, 7
v_mov_b32 v1, 0
""")
        for i in range(18):
            a(f"v_writelane_b32 v1, s{70 + i}, {i}")
        a(f"""v_lshlrev_b32 v2, 2, v{lane}
s_mov_b64 exec, 0x3ffff
buffer_store_dword v1, v2, s[88:91], s66 offen
""")
    return entry, stamp, dump


def gen_k1(a, opt):
    entry, stamp, dump = diag_tools(a, {k: v for k, v in opt.items() if k != "st"}, 16, 2, DBG_OFF + (1 << 20), "1")

    SC = " " + opt.get("sc", "sc1").replace("_", " ")

    def fin():
        if opt.get("diag"):
            stamp(5)
            a("s_waitcnt vmcnt(0)")
            dump()
    a(""".globl k1_kernel
.p2align 8
.type k1_kernel,@function
k1_kernel:
""")
    entry()
    a(f"""s_load_dwordx2 s[4:5], s[0:1], 32
s_load_dwordx2 s[8:9], s[0:1], 24
s_load_dwordx2 s[12:13], s[0:1], 16
s_load_dwordx2 s[16:17], s[0:1], 80
s_load_dwordx2 s[20:21], s[0:1], 0
s_load_dwordx2 s[24:25], s[0:1], 40
s_load_dwordx2 s[28:29], s[0:1], 56
s_cmp_ge_u32 s2, {NB + NCH}
s_cbranch_scc1 K1_EXIT
v_lshrrev_b32 v1, 6, v0
v_and_b32 v2, 63, v0
s_mov_b32 s18, {WS1_SIZE}
s_mov_b32 s19, {FMT}
v_readfirstlane_b32 s3, v1
s_cmp_lt_u32 s2, {NB}
s_cbranch_scc1 K1_GEMM
""")
    DST, SRC, EA, AD, RK, HI, T0 = 4, 8, 12, 16, 20, 24, 28
    a(f"""; sort role: one chunk of {CH} edges is grouped by destination bin
s_sub_u32 s40, s2, {NB}
s_mov_b32 s6, {E * 4}
s_mov_b32 s7, {FMT}
s_mov_b32 s10, {E * 4}
s_mov_b32 s11, {FMT}
s_mov_b32 s14, {E * 2}
s_mov_b32 s15, {FMT}
s_mul_i32 s41, s40, {CH * 4}
s_mul_i32 s42, s40, {CH * 2}
v_lshlrev_b32 v3, 4, v0
v_lshlrev_b32 v14, 3, v0
v_lshlrev_b32 v15, 2, v0
v_mov_b32 v40, 0
s_mov_b32 s43, {CH // 4}
s_cmp_eq_u32 s40, {NCH - 1}
s_cselect_b32 s43, {(E - (NCH - 1) * CH) // 4}, s43
v_cmp_gt_u32 vcc, s43, v0
ds_write_b32 v15, v40
s_mov_b64 s[44:45], vcc
s_waitcnt lgkmcnt(0)
s_mov_b64 exec, s[44:45]
buffer_load_dwordx4 {vr(DST, 4)}, v3, s[4:7], s41 offen
buffer_load_dwordx2 {vr(EA, 2)}, v14, s[12:15], s42 offen
buffer_load_dwordx4 {vr(SRC, 4)}, v3, s[8:11], s41 offen
s_mov_b32 s46, -49
s_mov_b32 s47, 0xff100000
s_mov_b32 s54, 0x01000000
s_mov_b32 s48, {f32(-LOG2E)}
s_mov_b32 s49, {f32(-LOG2E)}
s_mov_b32 s50, 0xffff0000
s_mul_i32 s51, s40, {CS * 8}
s_lshl_b32 s52, s40, 10
s_add_u32 s52, s52, {TAB_OFF}
s_add_u32 s53, s51, 8192
v_mov_b32 v41, 1
""")
    stamp(1)
    a("s_barrier\ns_waitcnt vmcnt(2)")
    stamp(2)
    for i in range(4):
        a(f"v_mul_u32_u24 v{T0 + i}, 21400, v{DST + i}")
    for i in range(4):
        a(f"v_lshrrev_b32 v{T0 + i}, 20, v{T0 + i}")
    for i in range(4):
        a(f"v_lshlrev_b32 v{AD + i}, 2, v{T0 + i}")
    for i in range(4):
        a(f"ds_add_rtn_u32 v{RK + i}, v{AD + i}, v41")
    for i in range(4):
        a(f"v_mad_i32_i24 v{DST + i}, v{T0 + i}, s46, v{DST + i}")
    for i in range(4):
        a(f"v_mul_u32_u24 v{T0 + i}, 43, v{DST + i}")
    for i in range(4):
        a(f"v_lshrrev_b32 v{T0 + i}, 8, v{T0 + i}")
    for i in range(4):
        a(f"v_lshlrev_b32 v{HI + i}, 2, v{DST + i}")
    for i in range(4):
        a(f"v_mad_i32_i24 v{DST + i}, v{T0 + i}, -6, v{DST + i}")
    a("s_waitcnt vmcnt(1)")
    for j in range(2):
        a(f"v_lshlrev_b32 v{T0 + 2 * j}, 16, v{EA + j}")
        a(f"v_and_b32 v{T0 + 2 * j + 1}, s50, v{EA + j}")
    for j in range(2):
        a(f"v_pk_mul_f32 {vr(T0 + 2 * j, 2)}, {vr(T0 + 2 * j, 2)}, s[48:49]")
    for j in range(2):
        a(f"v_cvt_pk_bf16_f32 v{EA + j}, v{T0 + 2 * j}, v{T0 + 2 * j + 1}")
    for j in range(2):
        a(f"v_lshl_or_b32 v{HI + 2 * j}, v{EA + j}, 16, v{HI + 2 * j}")
        a(f"v_and_or_b32 v{HI + 2 * j + 1}, v{EA + j}, s50, v{HI + 2 * j + 1}")
    for i in range(4):
        a(f"v_lshlrev_b32 v{T0 + i}, v{DST + i}, s54")
    a("s_waitcnt vmcnt(0)")
    for i in range(4):
        a(f"v_lshl_add_u32 v{SRC + i}, v{DST + i}, 20, v{SRC + i}")
    for i in range(4):
        a(f"v_xad_u32 v{SRC + i}, v{T0 + i}, s47, v{SRC + i}")
    C0, O0 = 32, 36
    a(f"""s_mov_b64 exec, -1
v_lshlrev_b32 v42, 4, v2
s_waitcnt lgkmcnt(0)
s_barrier
""")
    stamp(3)
    a(f"""ds_read_b128 {vr(C0, 4)}, v42
s_waitcnt lgkmcnt(0)
v_add_u32 v43, v{C0}, v{C0 + 1}
v_add3_u32 v43, v43, v{C0 + 2}, v{C0 + 3}
v_mov_b32 v44, v43
""")
    scan_add(a, [44])
    a(f"""v_sub_u32 v{O0}, v44, v43
v_add_u32 v{O0 + 1}, v{O0}, v{C0}
v_add_u32 v{O0 + 2}, v{O0 + 1}, v{C0 + 1}
v_add_u32 v{O0 + 3}, v{O0 + 2}, v{C0 + 2}
ds_write_b128 v42, {vr(O0, 4)} offset:1024
s_cmp_lg_u32 s3, 7
s_cbranch_scc1 K1_NOTAB
""")
    for i in range(4):
        a(f"v_lshl_or_b32 v{C0 + i}, v{C0 + i}, 16, v{O0 + i}")
    a(f"""buffer_store_dwordx4 {vr(C0, 4)}, v42, s[16:19], s52 offen{SC}
s_branch K1_SCAT_DONE
K1_NOTAB:
s_mov_b64 exec, s[44:45]
""")
    for i in range(4):
        a(f"ds_read_b32 v{AD + i}, v{AD + i} offset:1024")
    for i in range(4):
        a(f"s_waitcnt lgkmcnt({3 - i})")
        a(f"v_add_lshl_u32 v{AD + i}, v{AD + i}, v{RK + i}, 3")
    for i in range(4):
        a(f"v_add_u32 v{AD + i}, 2048, v{AD + i}")
        a(f"ds_write2_b32 v{AD + i}, v{SRC + i}, v{HI + i} offset0:0 offset1:1")
    a(f"""s_mov_b64 exec, -1
K1_SCAT_DONE:
v_cmp_gt_u32 vcc, {(CH * 8 - 8192) // 16}, v0
s_waitcnt lgkmcnt(0)
s_barrier
""")
    stamp(4)
    a(f"""ds_read_b128 v[4:7], v3 offset:2048
ds_read_b128 v[8:11], v3 offset:{2048 + 8192}
s_waitcnt lgkmcnt(1)
buffer_store_dwordx4 v[4:7], v3, s[16:19], s51 offen{SC}
s_mov_b64 exec, vcc
s_waitcnt lgkmcnt(0)
buffer_store_dwordx4 v[8:11], v3, s[16:19], s53 offen{SC}
""")
    fin()
    a("K1_EXIT:\ns_endpgm")
    a(f"""K1_GEMM:
; GEMM role: B' rows of one bin, weight fragment repack, small constants
s_mul_i32 s40, s2, {BN * 256}
s_sub_u32 s22, {N * 256}, s40
s_min_u32 s22, s22, {BN * 256}
s_mov_b32 s23, {FMT}
s_mov_b32 s26, {258 * 256}
s_mov_b32 s27, {FMT}
v_lshrrev_b32 v3, 4, v2
v_and_b32 v4, 15, v2
v_lshlrev_b32 v5, 1, v3
v_xor_b32 v5, v5, v4
v_lshlrev_b32 v5, 4, v5
v_lshl_or_b32 v5, v3, 8, v5
v_xor_b32 v6, 128, v5
s_and_b32 s41, s3, 3
s_lshl_b32 s41, s41, 2
v_or_b32 v7, s41, v3
v_xor_b32 v7, v7, v4
v_lshlrev_b32 v7, 4, v7
v_lshl_or_b32 v7, v3, 8, v7
s_lshl_b32 s42, s3, 12
s_add_u32 s43, s42, 32768
s_lshl_b32 s44, s3, 10
s_add_u32 s45, s44, 8192
s_mov_b32 m0, s42
s_waitcnt lgkmcnt(0)
s_add_u32 s20, s20, s40
s_addc_u32 s21, s21, 0
buffer_load_dwordx4 v5, s[24:27], s43 offen lds
buffer_load_dwordx4 v5, s[24:27], s43 offen offset:1024 lds
buffer_load_dwordx4 v6, s[24:27], s43 offen offset:2048 lds
buffer_load_dwordx4 v6, s[24:27], s43 offen offset:3072 lds
s_add_u32 m0, s44, 32768
buffer_load_dwordx4 v7, s[20:23], s44 offen lds
s_add_u32 m0, s45, 32768
buffer_load_dwordx4 v7, s[20:23], s45 offen lds
s_cmp_ge_u32 s3, 4
s_cbranch_scc1 K1_REPACK
""")
    TA, HA, AF, BF, AC = 8, 16, 20, 36, 68
    a(f"""v_bfe_u32 v5, v2, 2, 2
v_and_b32 v6, 1, v3
v_lshl_or_b32 v6, v6, 2, v5
v_lshl_or_b32 v5, v3, 3, v5
v_lshlrev_b32 v5, 8, v5
v_lshl_or_b32 v5, v6, 5, v5
v_and_b32 v6, 3, v2
v_lshl_or_b32 v{TA}, v6, 3, v5
""")
    for t in range(1, 8):
        a(f"v_xor_b32 v{TA + t}, {t << 5}, v{TA}")
    a(f"""v_xor_b32 v5, v3, v4
v_lshlrev_b32 v5, 4, v5
v_lshl_or_b32 v5, v4, 8, v5
v_add_u32 v{HA}, s42, v5
""")
    for ks in range(1, 4):
        a(f"v_xor_b32 v{HA + ks}, {ks << 6}, v{HA}")
    a(f"""s_add_u32 s36, s16, {BP_OFF}
s_addc_u32 s37, s17, 0
s_add_u32 s36, s36, s40
s_addc_u32 s37, s37, 0
s_mov_b32 s38, {BN * 256}
s_mov_b32 s39, {FMT}
s_mov_b32 s48, {f32(-LOG2E)}
s_mov_b32 s49, {f32(-LOG2E)}
v_lshlrev_b32 v5, 10, v3
v_lshl_or_b32 v5, v4, 4, v5
""")
    stamp(1)
    a("s_waitcnt vmcnt(0)\ns_barrier")
    stamp(2)
    for ks in range(4):
        a(f"ds_read_b128 {vr(AF + 4 * ks, 4)}, v{HA + ks} offset:32768")
    DEPTH = 4
    jobs = [(ks, t) for ks in range(4) for t in range(8)]

    def rd(j):
        ks, t = jobs[j]
        d = BF + 4 * (j % 8)
        a(f"ds_read_b64_tr_b16 {vr(d, 2)}, v{TA + t} offset:{ks * 8192}")
        a(f"ds_read_b64_tr_b16 {vr(d + 2, 2)}, v{TA + t} offset:{ks * 8192 + 1024}")
    for j in range(DEPTH):
        rd(j)
    for j, (ks, t) in enumerate(jobs):
        if j + DEPTH < 32:
            rd(j + DEPTH)
        left = min(DEPTH, 31 - j)
        a(f"s_waitcnt lgkmcnt({2 * left})")
        c = "0" if ks == 0 else vr(AC + 4 * t, 4)
        a(f"v_mfma_f32_16x16x32_bf16 {vr(AC + 4 * t, 4)}, {vr(AF + 4 * ks, 4)}, {vr(BF + 4 * (j % 8), 4)}, {c}")
    stamp(3)
    for t in range(8):
        for hh in range(2):
            a(f"v_pk_mul_f32 {vr(AC + 4 * t + 2 * hh, 2)}, {vr(AC + 4 * t + 2 * hh, 2)}, s[48:49]")
    for r in range(4):
        for u in range(4):
            a(f"v_cvt_pk_bf16_f32 v{BF + 4 * r + u}, v{AC + 8 * u + r}, v{AC + 8 * u + 4 + r}")
        a(f"buffer_store_dwordx4 {vr(BF + 4 * r, 4)}, v5, s[36:39], s42 offen offset:{256 * r}{SC}")
    fin()
    a("s_endpgm")
    a(f"""K1_REPACK:
s_mov_b32 s30, 65536
s_mov_b32 s31, {FMT}
s_cmp_eq_u32 s3, 7
s_cbranch_scc1 K1_CONST
s_mul_i32 s46, s2, 3
s_add_u32 s46, s46, s3
s_sub_u32 s46, s46, 4
s_bfe_u32 s47, s46, 0x20006
s_bfe_u32 s48, s46, 0x30003
s_bfe_u32 s49, s46, 0x10002
s_bfe_u32 s50, s46, 0x10001
s_and_b32 s51, s46, 1
v_and_b32 v3, 7, v2
v_lshrrev_b32 v4, 3, v2
s_lshl_b32 s52, s48, 1
s_add_u32 s52, s52, s49
s_lshl_b32 s52, s52, 10
s_lshl_b32 s55, s46, 7
s_add_u32 s55, s55, {WF_OFF}
v_lshlrev_b32 v7, 1, v2
s_cmp_ge_u32 s46, 256
s_cbranch_scc1 K1_RP_H
s_lshr_b32 s53, s47, 1
s_lshl_b32 s53, s53, 3
s_and_b32 s54, s47, 1
s_add_u32 s53, s53, s54
s_lshl_b32 s54, s50, 2
s_add_u32 s53, s53, s54
s_lshl_b32 s54, s51, 1
s_add_u32 s53, s53, s54
s_add_u32 s52, s52, s53
s_lshl_b32 s52, s52, 1
v_lshlrev_b32 v5, 8, v3
v_lshl_or_b32 v5, v4, 5, v5
buffer_load_ushort v6, v5, s[24:27], s52 offen
s_branch K1_RP_ST
K1_RP_H:
s_lshl_b32 s53, s47, 5
s_lshl_b32 s54, s51, 4
s_add_u32 s53, s53, s54
s_add_u32 s53, s53, s50
v_lshlrev_b32 v5, 8, v3
s_cmp_ge_u32 s46, 512
s_cbranch_scc0 K1_RP_H1
s_lshr_b32 s52, s48, 2
s_lshl_b32 s52, s52, 2
s_and_b32 s54, s48, 1
s_lshl_b32 s54, s54, 6
s_add_u32 s52, s52, s54
s_lshl_b32 s54, s49, 5
s_add_u32 s52, s52, s54
s_and_b32 s54, s48, 2
s_add_u32 s52, s52, s54
s_add_u32 s52, s52, 128
s_lshl_b32 s52, s52, 7
v_lshrrev_b32 v5, 1, v3
v_lshlrev_b32 v5, 11, v5
v_and_b32 v6, 1, v3
v_lshl_or_b32 v5, v6, 8, v5
K1_RP_H1:
s_add_u32 s52, s52, s53
s_lshl_b32 s52, s52, 1
v_lshl_or_b32 v5, v4, 2, v5
buffer_load_ushort v6, v5, s[28:31], s52 offen
K1_RP_ST:
s_waitcnt vmcnt(0)
s_barrier
buffer_store_short v6, v7, s[16:19], s55 offen{SC}
""")
    fin()
    a(f"""s_endpgm
K1_CONST:
s_load_dwordx2 s[32:33], s[0:1], 48
s_waitcnt vmcnt(0) lgkmcnt(0)
s_barrier
s_cmp_lg_u32 s2, 0
s_cbranch_scc1 K1_EXIT2
s_mov_b32 s34, 256
s_mov_b32 s35, {FMT}
s_mov_b32 s46, 65536
s_mov_b32 s47, {CON_OFF}
v_and_b32 v3, 7, v2
v_lshlrev_b32 v3, 5, v3
v_bfe_u32 v4, v2, 4, 1
v_lshl_or_b32 v3, v4, 3, v3
v_bfe_u32 v4, v2, 3, 1
v_lshl_or_b32 v3, v4, 2, v3
v_lshrrev_b32 v4, 5, v2
v_lshl_or_b32 v4, v4, 1, v3
buffer_load_ushort v8, v4, s[24:27], s46 offen
buffer_load_ushort v9, v4, s[24:27], s46 offen offset:16
buffer_load_ushort v10, v4, s[24:27], s46 offen offset:256
buffer_load_ushort v11, v4, s[24:27], s46 offen offset:272
buffer_load_ushort v12, v3, s[32:35], 0 offen
buffer_load_ushort v13, v3, s[32:35], 0 offen offset:2
buffer_load_ushort v14, v3, s[32:35], 0 offen offset:16
buffer_load_ushort v15, v3, s[32:35], 0 offen offset:18
v_lshlrev_b32 v5, 3, v2
v_and_b32 v6, 31, v2
v_lshlrev_b32 v6, 4, v6
s_waitcnt vmcnt(0)
v_lshl_or_b32 v8, v10, 16, v8
v_lshl_or_b32 v9, v11, 16, v9
""")
    for i in range(4):
        a(f"v_lshlrev_b32 v{12 + i}, 16, v{12 + i}")
        a(f"v_mul_f32 v{12 + i}, {f32(-LN2 * KAPPA)}, v{12 + i}")
    a(f"""buffer_store_dwordx2 v[8:9], v5, s[16:19], s47 offen{SC}
buffer_store_dwordx4 v[12:15], v6, s[16:19], s47 offen offset:512{SC}
K1_EXIT2:
""")
    fin()
    a("s_endpgm")


vACC, vC, vD, vG, vE, vM = 192, 160, 128, 96, 80, 64
vP, vX, vY, vI, vSEL, vWX = 56, 48, 40, 32, 28, 24
vQ = 20
vT, vSRC = 18, 16
vAX, vAS, vAT, vK, vOFF, vL4, vIDX, vLR, vFA = 15, 14, 13, 12, 11, 10, 9, 8, 7
vL = 6


def gen_k2(a, opt):
    sW = 3
    sKP = 24
    sEX = 26
    sMORE, sMODE, sTOT, sBASE, sPR, sRO = 34, 35, 36, 37, 38, 39
    sCUR, sEND, sEVT, sSW, sFL, sP0, sPF, sRES = 40, 41, 42, 43, 44, 45, 46, 47
    sT = 48
    sLF, sC, sNL = 63, 64, 65
    diag = opt.get("diag")
    SO = " " + opt.get("so", "").replace("_", " ") if opt.get("so") else ""
    vCP, vCD = vT, vT + 1
    vPD = vQ

    entry, stamp, dump = diag_tools(a, opt, 12, vL, DBG_OFF, "2")

    def hop1_addr():
        a(f"""v_lshlrev_b32 v1, 10, v{vL}
s_lshl_b32 s{sT}, s{sW}, 15
s_lshl_b32 s{sT + 1}, s2, 2
s_add_u32 s{sT}, s{sT}, s{sT + 1}
s_add_u32 s{sT}, s{sT}, {TAB_OFF}
""")

    def hop1():
        a(f"""s_mov_b32 exec_hi, 0
buffer_load_dword v{vCP}, v1, s[12:15], s{sT} offen
s_mov_b32 exec_hi, -1
""")

    def zero_acc(z):
        for cb in range(4):
            a(f"v_mfma_f32_32x32x16_bf16 {vr(vACC + 16 * cb, 16)}, {vr(z, 4)}, {vr(z, 4)}, 0")

    def pos_dma(j):
        out = []
        if j % 4 == 0:
            out.append(f"s_add_u32 s{sT + 13}, s{sT + 12}, {1024 * j}")
            out.append(f"s_add_u32 m0, s{sT + 13}, {POS}")
        out.append(f"buffer_load_dwordx4 v5, s[8:11], s{sT + 13} offen offset:{1024 * (j % 4)} lds")
        return "\n".join(out)

    def pos_extra(tag):
        a(f"""s_cmp_ge_u32 s{sW}, 2
s_cbranch_scc1 K2_NOEXTRA{tag}
s_lshl_b32 s{sT + 13}, s{sW}, 10
s_add_u32 s{sT + 13}, s{sT + 13}, {72 * 1024}
s_add_u32 m0, s{sT + 13}, {POS}
buffer_load_dwordx4 v5, s[8:11], s{sT + 13} offen lds
K2_NOEXTRA{tag}:
""")

    a(f""".globl {NAME}_kernel
.p2align 8
.type {NAME}_kernel,@function
{NAME}_kernel:
""")
    entry()
    a(f"""s_load_dwordx2 s[12:13], s[0:1], 80
s_load_dwordx2 s[4:5], s[0:1], 0
s_load_dwordx2 s[8:9], s[0:1], 8
s_load_dwordx2 s[20:21], s[0:1], 64
s_setprio 3
s_cmp_ge_u32 s2, {NB}
s_cbranch_scc1 K2_EXIT
v_lshrrev_b32 v1, 6, v0
v_and_b32 v{vL}, 63, v0
s_mov_b32 s14, {WS1_SIZE}
s_mov_b32 s15, {FMT}
v_readfirstlane_b32 s{sW}, v1
""")
    hop1_addr()
    a(f"""s_mul_i32 s{sT + 2}, s2, {BN * 256}
s_sub_u32 s6, {N * 256}, s{sT + 2}
s_min_u32 s6, s6, {BN * 256}
s_mov_b32 s7, {FMT}
v_lshrrev_b32 v3, 4, v{vL}
v_and_b32 v4, 15, v{vL}
s_and_b32 s{sT + 3}, s{sW}, 3
s_lshl_b32 s{sT + 3}, s{sT + 3}, 2
v_or_b32 v2, s{sT + 3}, v3
v_xor_b32 v2, v2, v4
v_lshlrev_b32 v2, 4, v2
v_lshl_or_b32 v2, v3, 8, v2
s_lshl_b32 s{sT + 4}, s{sW}, 10
s_add_u32 s{sT + 5}, s{sT + 4}, 8192
s_lshl_b32 s{sT + 6}, s{sW}, 13
s_add_u32 s{sT + 6}, s{sT + 6}, {WF_OFF}
s_add_u32 s{sT + 7}, s{sT + 6}, 4096
v_lshlrev_b32 v5, 4, v{vL}
s_mov_b32 s10, {N * 6 + 8}
s_mov_b32 s11, {FMT}
s_add_u32 m0, s{sT + 4}, {HST}
s_waitcnt lgkmcnt(0)
""")
    if "probe" in opt:
        stamp(0)
    hop1()
    a(f"""s_setprio 0
s_add_u32 s4, s4, s{sT + 2}
s_addc_u32 s5, s5, 0
buffer_load_dwordx4 v2, s[4:7], s{sT + 4} offen lds
s_cmp_ge_u32 s{sW}, 6
s_cbranch_scc1 K2_JOB67
s_add_u32 m0, s{sT + 5}, {HST}
buffer_load_dwordx4 v2, s[4:7], s{sT + 5} offen lds
K2_JOBRET:
""")
    for ks in range(8):
        a(f"buffer_load_dwordx4 {vr(vG + 4 * ks, 4)}, v5, s[12:15], s{sT + 6 + ks // 4} offen offset:{1024 * (ks % 4)}")
    a(f"""s_add_u32 s16, s12, {BP_OFF}
s_addc_u32 s17, s13, 0
s_or_b32 s17, s17, {256 << 16}
s_mov_b32 s18, {N}
s_mov_b32 s19, {FMT}
s_mov_b32 s{sKP}, {f32(KAPPA / (1 + DELTA))}
s_mov_b32 s{sKP + 1}, {f32(KAPPA / (1 + DELTA))}
s_mov_b32 s{sBASE}, 0
s_mul_i32 s{sRO}, s{sW}, {32 * CS * 8}
s_mov_b32 s{sC}, 256
v_mov_b64 {vr(vSEL, 2)}, 0
v_mov_b64 {vr(vSEL + 2, 2)}, 0
v_add_u32 v1, s{sT + 4}, v5
v_lshlrev_b32 v{vL4}, 2, v{vL}
ds_write_b128 v1, {vr(vSEL, 4)} offset:{TARR}
""")
    zero_acc(vSEL)
    a(f"""v_lshrrev_b32 v1, 5, v{vL}
v_bfe_u32 v2, v{vL}, 1, 1
v_lshlrev_b32 v{vSRC + 1}, 5, v1
v_lshl_or_b32 v{vSRC + 1}, v2, 4, v{vSRC + 1}
v_bfe_u32 v3, v{vL}, 2, 3
v_and_b32 v4, 1, v{vL}
v_lshl_or_b32 v3, v3, 1, v4
v_lshlrev_b32 v{vAS}, 3, v3
v_xor_b32 v2, v2, v1
v_lshl_or_b32 v{vAX}, v2, 24, v{vAS}
v_bfe_u32 v2, v{vL}, 3, 1
v_bfe_u32 v3, v{vL}, 2, 1
v_lshl_or_b32 v3, v2, 2, v3
v_lshl_or_b32 v3, v1, 3, v3
v_lshlrev_b32 v{vAT}, 3, v3
v_bfe_u32 v2, v{vL}, 4, 1
v_and_b32 v3, 3, v{vL}
v_lshl_or_b32 v3, v2, 2, v3
v_add_u32 v3, 24, v3
v_lshlrev_b32 v{vK}, v3, 1
v_mov_b32 v{vIDX}, 0xdddddddd
v_and_b32 v2, 31, v{vL}
v_mul_u32_u24 v3, {RST}, v1
v_lshl_add_u32 v3, v2, 3, v3
v_add_u32 v{vLR}, {ROWS}, v3
v_lshlrev_b32 v3, 3, v1
v_sub_u32 v2, v2, v3
v_lshlrev_b32 v4, 4, v2
v_mov_b32 v0, 0x3f80
v_lshlrev_b32 v4, v4, v0
v_ashrrev_i32 v2, 1, v2
""")
    for u in range(2):
        for q in range(4):
            a(f"v_cmp_eq_u32 s[{sT + 2 * q}:{sT + 2 * q + 1}], {8 * u + q}, v2")
        for q in range(4):
            a(f"v_cndmask_b32 v{vI + 4 * u + q}, 0, v4, s[{sT + 2 * q}:{sT + 2 * q + 1}]")
    for i in range(0, 16, 2):
        a(f"v_mov_b64 {vr(vM + i, 2)}, 0")
    a(f"""v_and_b32 v3, 31, v{vL}
v_and_b32 v4, 15, v{vL}
v_xor_b32 v2, v1, v4
v_lshlrev_b32 v2, 4, v2
v_lshl_or_b32 v{vP}, v3, 8, v2
""")
    for ks in range(1, 8):
        a(f"v_xor_b32 v{vP + ks}, {ks << 5}, v{vP}")
    a(f"""s_cmp_eq_u32 s{sW}, 1
s_cbranch_scc0 K2_NOSEL2
ds_write_b128 v5, {vr(vSEL, 4)} offset:{SEL2}
K2_NOSEL2:
s_cmp_eq_u32 s{sW}, 0
s_cbranch_scc0 K2_NOROWB
v_add_u32 v1, -1, v{vL}
v_lshlrev_b32 v4, 4, v1
v_lshlrev_b32 v4, v4, v0
v_ashrrev_i32 v2, 1, v1
v_mov_b32 v{vE}, 0
""")
    for q in range(3):
        a(f"v_cmp_eq_u32 s[{sT + 2 * q}:{sT + 2 * q + 1}], {q}, v2")
    for q in range(3):
        a(f"v_cndmask_b32 v{vE + 1 + q}, 0, v4, s[{sT + 2 * q}:{sT + 2 * q + 1}]")
    a(f"""ds_write_b128 v5, {vr(vE, 4)} offset:{ROWB}
K2_NOROWB:
""")
    stamp(1)
    a("s_waitcnt vmcnt(10)")
    stamp(2)
    MK = vX
    RQ = vE
    RK = vE + 8
    AD = vE + 12
    a(f"""K2_BATCH:
s_mov_b32 exec_hi, 0
v_lshrrev_b32 v1, 16, v{vCP}
v_and_b32 v{vCD}, 0xffff, v{vCP}
v_mov_b32 v2, v1
s_mov_b32 s{sT}, {CS}
v_mad_u32_u24 v{vCD}, v{vL}, s{sT}, v{vCD}
s_lshl_b32 s{sT}, s{sW}, 10
s_mul_i32 s{sT + 12}, s{sW}, {9 * 1024}
""")
    scan_add(a, [2], n64=False)
    a(f"""v_sub_u32 v1, v2, v1
v_readlane_b32 s{sTOT}, v2, 31
v_sub_u32 v{vCD}, v{vCD}, v1
v_sub_u32_e64 v1, v1, s{sBASE} clamp
v_cmpx_gt_u32 vcc, {RB}, v1
v_lshl_add_u32 v1, v1, 2, s{sT}
ds_max_u32 v1, v{vCD} offset:{TARR}
s_mov_b64 exec, -1
v_add_u32 v1, s{sT}, v{vL4}
""")
    for k in range(4):
        a(f"ds_read_b32 v{MK + k}, v1 offset:{TARR + 256 * k}")
    a(f"s_sub_i32 s{sT + 1}, s{sTOT}, s{sBASE}")
    for k in range(4):
        a(f"v_cmp_gt_i32 s[{sEX + 2 * k}:{sEX + 2 * k + 1}], s{sT + 1}, v{vL}")
        if k < 3:
            a(f"s_sub_i32 s{sT + 1}, s{sT + 1}, 64")
    a(f"""s_lshl_b32 s{sT + 2}, s{sBASE}, 3
s_add_u32 s{sT + 2}, s{sT + 2}, s{sRO}
s_waitcnt lgkmcnt(0)
""")
    scan_add(a, [MK + k for k in range(4)], op="v_max_u32")
    for k in range(3):
        a(f"v_readlane_b32 s{sT + 4 + k}, v{MK + k}, 63")
    a(f"v_add_lshl_u32 v{MK}, v{MK}, v{vL}, 3")
    a(f"buffer_load_dwordx2 {vr(RQ, 2)}, v{MK}, s[12:15], s{sT + 2} offen")
    for k in range(1, 3):
        a(f"s_max_u32 s{sT + 4 + k}, s{sT + 4 + k}, s{sT + 3 + k}")
    for k in range(1, 4):
        a(f"v_max_u32 v{MK + k}, s{sT + 3 + k}, v{MK + k}")
        a(f"v_add_lshl_u32 v{MK + k}, v{MK + k}, v{vL}, 3")
        a(f"buffer_load_dwordx2 {vr(RQ + 2 * k, 2)}, v{MK + k}, s[12:15], s{sT + 2} offen offset:{512 * k}")
    stamp(3)
    a(f"""s_cmp_lg_u32 s{sBASE}, 0
s_cbranch_scc1 K2_SKIPGEMM
""")
    for j in range(3):
        a(pos_dma(j))
    a(f"""s_waitcnt vmcnt(15) lgkmcnt(0)
s_barrier
""")
    stamp(4)
    jobs = [(ks, rho) for ks in range(8) for rho in range(2)]
    DEP = 7

    def rdh(j):
        ks, rho = jobs[j]
        a(f"ds_read_b128 {vr(vD + 4 * (j % 8), 4)}, v{vP + ks} offset:{HST + 8192 * rho}")
    a(f"""v_lshlrev_b32 v1, 1, v{vL4}
v_and_b32 v2, 496, v5
ds_read_b32 v{vY}, v1 offset:{CONL}
ds_read_b32 v{vY + 4}, v1 offset:{CONL + 4}
ds_read_b128 {vr(vWX, 4)}, v2 offset:{CONL + 512}
""")
    for j in range(DEP):
        rdh(j)
    a("s_waitcnt vmcnt(7)")
    for j, (ks, rho) in enumerate(jobs):
        if j + DEP < 16:
            rdh(j + DEP)
        a(f"s_waitcnt lgkmcnt({min(DEP, 15 - j)})")
        c = "0" if ks == 0 else vr(vC + 16 * rho, 16)
        a(f"v_mfma_f32_32x32x16_bf16 {vr(vC + 16 * rho, 16)}, {vr(vD + 4 * (j % 8), 4)}, {vr(vG + 4 * ks, 4)}, {c}")
        if j % 2 == 1 and 3 + j // 2 < 9:
            a(pos_dma(3 + j // 2))
    stamp(5)
    a(f"""s_waitcnt vmcnt(9)
K2_RANK:
v_mov_b32 v0, 1
""")
    for k in range(4):
        a(f"v_and_b32 v{AD + k}, 0xff, v{RQ + 2 * k + 1}")
    for k in range(4):
        a(f"s_mov_b64 exec, s[{sEX + 2 * k}:{sEX + 2 * k + 1}]")
        a(f"ds_add_rtn_u32 v{RK + k}, v{AD + k}, v0 offset:{CNT}")
    a(f"""s_mov_b64 exec, -1
s_lshl_b32 s{sT}, s{sW}, 2
v_mov_b32 v1, s{sT}
v_mov_b32 v2, s{sTOT}
ds_write_b32 v1, v2 offset:{CNT + 224}
s_cmp_lg_u32 s{sBASE}, 0
s_cbranch_scc1 K2_NOY
""")
    pos_extra("A")
    a(f"""s_mov_b32 s{sT}, {f32(-LOG2E)}
s_mov_b32 s{sT + 1}, {f32(-LOG2E)}
""")
    for i in range(0, 28, 2):
        a(f"v_pk_mul_f32 {vr(vC + i, 2)}, {vr(vC + i, 2)}, s[{sT}:{sT + 1}]")
    a(f"""v_mov_b64 {vr(vC + 28, 2)}, 0
v_mov_b64 {vr(vC + 30, 2)}, 0
s_cmp_ge_u32 s{sW}, 4
s_cbranch_scc1 K2_HIY
v_lshrrev_b32 v1, 5, v{vL}
v_and_b32 v2, 124, v{vL4}
v_lshl_or_b32 v2, v1, 10, v2
s_lshl_b32 s{sT + 2}, s{sW}, 7
s_add_u32 s{sT + 2}, s{sT + 2}, {YTAB}
v_add_u32 v2, s{sT + 2}, v2
""")
    for i in range(0, 28, 2):
        rho, r = i // 16, i % 16
        pair = 16 * rho + 4 * (r >> 2) + ((r & 3) >> 1)
        a(f"v_cvt_pk_bf16_f32 v{vD + i // 2}, v{vC + i}, v{vC + i + 1}")
        a(f"ds_write_b32 v2, v{vD + i // 2} offset:{512 * pair}")
    a(f"""K2_NOY:
s_waitcnt lgkmcnt(0)
""")
    stamp(6)
    a(f"""s_barrier
ds_read_b32 v3, v{vL4} offset:{CNT}
v_cmp_gt_u32 vcc, {BN}, v{vL}
s_add_u32 s{sT + 8}, s{sBASE}, {RB}
v_bfrev_b32 v1, -2
s_waitcnt lgkmcnt(0)
v_max_u32 v4, 4, v3
v_cndmask_b32 v4, 0, v4, vcc
v_cmp_lt_u32 s[{sT + 6}:{sT + 7}], s{sT + 8}, v3
v_mov_b32 v2, v4
""")
    scan_add(a, [2])
    a(f"""v_sub_u32 v4, v2, v4
v_readlane_b32 s{sT}, v2, 63
""")
    for k in range(4):
        a(f"ds_bpermute_b32 v{MK + k}, v{AD + k}, v4")
    a(f"""v_cndmask_b32 v{vOFF}, v1, v4, vcc
s_lshr_b32 s{sMORE}, s{sT + 7}, 24
v_mov_b32 v0, 0xff00ffff
v_mov_b32 v1, 252
s_cmp_gt_u32 s{sW}, 4
s_cbranch_scc1 K2_NOPAD
s_cmp_eq_u32 s{sW}, 4
s_cbranch_scc1 K2_TAILPAD
v_add_lshl_u32 v4, v4, s{sW}, 3
s_mov_b64 exec, vcc
v_cmpx_ge_u32 vcc, s{sW}, v3
s_branch K2_DOPAD
K2_TAILPAD:
v_add_lshl_u32 v4, s{sT}, v{vL}, 3
K2_DOPAD:
ds_write_b64 v4, v[0:1] offset:{CREC}
s_mov_b64 exec, -1
K2_NOPAD:
s_add_u32 s{sT}, s{sT}, 15
s_lshr_b32 s{sT}, s{sT}, 4
s_lshr_b32 s{sT + 1}, s{sT}, 3
s_and_b32 s{sT + 2}, s{sT}, 7
s_mul_i32 s{sCUR}, s{sW}, s{sT + 1}
s_min_u32 s{sT + 3}, s{sW}, s{sT + 2}
s_add_u32 s{sCUR}, s{sCUR}, s{sT + 3}
s_add_u32 s{sEND}, s{sCUR}, s{sT + 1}
s_cmp_lt_u32 s{sW}, s{sT + 2}
s_addc_u32 s{sEND}, s{sEND}, 0
s_waitcnt lgkmcnt(0)
""")
    for k in range(4):
        a(f"v_add_lshl_u32 v{MK + k}, v{MK + k}, v{RK + k}, 3")
    for k in range(4):
        a(f"s_mov_b64 exec, s[{sEX + 2 * k}:{sEX + 2 * k + 1}]")
        a(f"ds_write_b64 v{MK + k}, {vr(RQ + 2 * k, 2)} offset:{CREC}")
    a("s_mov_b64 exec, -1")

    def window(first_step_sgpr):
        a(f"""s_lshl_b32 s{sT + 10}, s{first_step_sgpr}, 4
v_cmp_ge_u32 vcc, s{sT + 10}, v{vOFF}
s_bcnt1_i32_b64 s{sT + 9}, vcc
s_sub_u32 s{sT + 9}, s{sT + 9}, 1
s_lshr_b32 s{sP0}, s{sT + 9}, 1
s_lshl_b32 s{sT}, s{sP0}, 1
s_add_u32 s{sT}, s{sT}, 6
v_readlane_b32 s{sSW}, v{vOFF}, s{sT}
s_mul_i32 s{sT}, s{sP0}, 43
s_lshr_b32 s{sT}, s{sT}, 7
s_mul_i32 s{sT}, s{sT}, 3
s_lshr_b32 s{sSW}, s{sSW}, 4
""")

    def load_y():
        for i in range(3):
            a(f"""s_add_u32 s{sT + 4}, s{sT}, {i}
s_cmp_lt_u32 s{sT + 4}, s{sP0}
s_cselect_b32 s{sT + 1}, 3, 0
s_add_u32 s{sT + 4}, s{sT + 4}, s{sT + 1}
s_lshl_b32 s{sT + 4}, s{sT + 4}, 9
v_add_u32 v{1 + i}, s{sT + 4}, v{vL4}
ds_read_b32 v{vY + 1 + i}, v{1 + i} offset:{YTAB}
ds_read_b32 v{vY + 5 + i}, v{1 + i} offset:{YTAB + 256}
""")

    window(sCUR)
    a(f"""s_mov_b32 s{sPF}, s{sP0}
s_sub_u32 s{sRES}, s{sP0}, s{sT}
""")
    load_y()
    a(f"""v_readlane_b32 s{sT + 2}, v{vOFF}, s{sT + 9}
s_lshl_b32 s{sT + 11}, s{sEND}, 4
v_cmp_gt_u32 vcc, s{sT + 11}, v{vOFF}
s_bcnt1_i32_b64 s{sNL}, vcc
s_sub_u32 s{sNL}, s{sNL}, 1
s_mul_i32 s{sT + 3}, s{sP0}, {2 * RST}
s_and_b32 s{sT + 4}, s{sT + 9}, 1
s_add_u32 s{sT + 5}, s{sW}, 56
s_sub_u32 s{sT + 5}, s{sT + 5}, s{sT + 4}
s_mul_i32 s{sT + 5}, s{sT + 5}, {RST}
s_cmp_lt_u32 s{sT + 2}, s{sT + 10}
s_cselect_b32 s{sT + 5}, s{sT + 5}, s{sT + 3}
s_cmp_eq_u32 s{sT + 4}, 0
s_cselect_b32 s{sT + 6}, s{sT + 3}, s{sT + 5}
s_cselect_b32 s{sT + 5}, s{sT + 5}, 0x1000000
v_add_u32 v{vFA}, s{sT + 6}, v{vLR}
s_mov_b32 exec_hi, 0
v_add_u32 v{vFA}, s{sT + 5}, v{vLR}
s_mov_b32 exec_hi, -1
s_lshl_b32 s{sT + 2}, s{sT + 9}, 3
s_add_u32 s{sT + 3}, s{sT + 2}, s{sW}
s_lshl_b32 s{sT + 3}, s{sT + 3}, 1
s_lshl_b32 s{sT + 4}, s{sW}, 2
v_mov_b32 v0, s{sT + 3}
v_mov_b32 v4, 0x3f80
ds_write_b16 v0, v4 offset:{SEL2}
v_mov_b32 v0, s{sT + 4}
v_mov_b32 v4, s{sT + 2}
ds_write_b32 v0, v4 offset:{HEAD}
s_lshl_b32 s{sT + 8}, s{sCUR}, 7
v_lshl_add_u32 v0, v{vL}, 3, s{sT + 8}
s_add_u32 s{sT + 8}, s{sT + 8}, {CREC}
v_add_u32 v{vAX}, s{sT + 8}, v{vAX}
v_add_u32 v{vAS}, s{sT + 8}, v{vAS}
v_add_u32 v{vAT}, s{sT + 8}, v{vAT}
s_mov_b32 s{sFL}, -1
s_sub_u32 s{sEVT}, s{sSW}, 1
s_sub_i32 s{sPR}, s{sEND}, 2
s_max_i32 s{sPR}, s{sPR}, s{sCUR}
s_cmp_lt_u32 s{sW}, 4
s_cselect_b32 s{sPR}, s{sPR}, -1
s_min_u32 s{sEVT}, s{sEVT}, s{sPR}
s_sub_u32 s{sT + 11}, s{sT + 11}, s{sT + 10}
s_mov_b32 s{sT + 2}, {f32(KAPPA)}
s_mov_b32 s{sT + 3}, 0xffff0000
s_mov_b32 s{sT + 4}, {POS}
""")
    stamp(7)
    a(f"""s_waitcnt vmcnt(0) lgkmcnt(0)
s_barrier
""")
    stamp(8)
    R2, PP, RA, PA = vD, vD + 8, vD + 16, vE
    a(f"""ds_read_u16 v{vSRC}, v{vAS}
ds_read_u8 v{vX}, v{vAX} offset:2
ds_read_u8 v{vX + 4}, v{vAX} offset:{128 + 2}
ds_read2_b32 {vr(vT, 2)}, v{vAT} offset0:0 offset1:4
s_waitcnt lgkmcnt(3)
""")
    for u in range(4):
        a(f"buffer_load_dwordx4 {vr(vG + 4 * u, 4)}, {vr(vSRC, 2)}, s[16:19], 0 idxen offen offset:{64 * u}")
    a(f"""ds_read_u16 v{vSRC}, v{vAS} offset:128
K2_ST2:
""")
    for k in range(4):
        a(f"ds_read_b64 {vr(R2 + 2 * k, 2)}, v0 offset:{CREC + 512 * k}")
    for k in range(4):
        a(f"v_cmp_gt_i32 s[{sEX + 2 * k}:{sEX + 2 * k + 1}], s{sT + 11}, v{vL}")
        a(f"s_sub_i32 s{sT + 11}, s{sT + 11}, 64")
    a("s_waitcnt lgkmcnt(0)")
    for k in (3, 2, 1, 0):
        a(f"""s_mov_b64 exec, s[{sEX + 2 * k}:{sEX + 2 * k + 1}]
v_mad_u32_u16 v{PA + k}, v{R2 + 2 * k}, 6, s{sT + 4}
v_lshlrev_b32_sdwa v2, 2, v{R2 + 2 * k + 1} dst_sel:DWORD dst_unused:UNUSED_PAD src0_sel:DWORD src1_sel:BYTE_0
v_and_b32 v1, -4, v{PA + k}
ds_read_b128 {vr(RA + 4 * k, 4)}, v2 offset:{ROWA}
ds_read2_b32 {vr(PP + 2 * k, 2)}, v1 offset0:0 offset1:1
""")
    for k in (3, 2, 1, 0):
        p, ra, q = PP + 2 * k, RA + 4 * k, R2 + 2 * k
        a(f"s_mov_b64 exec, s[{sEX + 2 * k}:{sEX + 2 * k + 1}]")
        if k:
            a(f"s_cbranch_execz K2_SKIP{k}")
        a(f"""s_waitcnt lgkmcnt({2 * k})
v_alignbyte_b32 v2, v{p + 1}, v{p}, v{PA + k}
v_alignbyte_b32 v3, v{p + 1}, v{p + 1}, v{PA + k}
v_lshlrev_b32 v1, 16, v2
v_and_b32 v2, s{sT + 3}, v2
v_lshlrev_b32 v3, 16, v3
v_sub_f32 v1, v{ra}, v1
v_sub_f32 v2, v{ra + 1}, v2
v_sub_f32 v3, v{ra + 2}, v3
v_mul_f32 v4, v1, v1
v_cvt_pk_bf16_f32 v{p}, s{sT + 2}, v1
v_fmac_f32 v4, v2, v2
v_cvt_pk_bf16_f32 v{p + 1}, v2, v3
v_fmac_f32 v4, v3, v3
v_mul_f32 v4, {f32(-LOG2E)}, v4
v_cvt_pk_bf16_f32 v{q + 1}, v4, v{q + 1}
ds_write_b64 v0, {vr(p, 2)} offset:{TARR + 512 * k}
ds_write_b32 v0, v{q + 1} offset:{CREC + 512 * k + 4}
""")
        if k:
            a(f"K2_SKIP{k}:")
    a(f"""s_mov_b64 exec, -1
v_add_u32 v0, 2048, v0
s_cmp_gt_i32 s{sT + 11}, 0
s_cbranch_scc1 K2_ST2
""")
    for u in range(4):
        a(f"buffer_load_dwordx4 {vr(vG + 16 + 4 * u, 4)}, {vr(vSRC, 2)}, s[16:19], 0 idxen offen offset:{64 * u}")
    a(f"""ds_read_b128 {vr(vX, 4)}, v{vX} offset:{ROWB}
ds_read_b32 v{vX}, v{vAX} offset:4
ds_read_b128 {vr(vX + 4, 4)}, v{vX + 4} offset:{ROWB}
ds_read_b32 v{vX + 4}, v{vAX} offset:{128 + 4}
ds_read_u16 v{vSRC}, v{vAS} offset:256
s_mul_i32 s{sT}, s{sW}, {RST}
s_add_u32 s{sT}, s{sT}, {ROWS + 56 * RST}
v_lshl_add_u32 v1, v{vL}, 4, s{sT}
""")
    stamp(9)
    a(f"""s_barrier
s_mov_b32 exec_hi, 0xffff
ds_write_b128 v1, {vr(vSEL, 4)}
s_mov_b32 exec_hi, -1
s_setprio 1
s_cmp_lt_u32 s{sW}, 4
s_cbranch_scc0 K2_PRIO
s_setprio 2
K2_PRIO:
s_waitcnt vmcnt(4) lgkmcnt(0)
""")

    def pre(d, g, x, tau):
        return [
            f"v_mfma_f32_32x32x16_bf16 {vr(d, 16)}, {vr(g + 8 * tau, 4)}, {vr(vI, 4)}, 0",
            f"v_mfma_f32_32x32x16_bf16 {vr(d, 16)}, {vr(g + 8 * tau + 4, 4)}, {vr(vI + 4, 4)}, {vr(d, 16)}",
            f"v_mfma_f32_32x32x16_bf16 {vr(d, 16)}, {vr(x, 4)}, {vr(vY + 4 * tau, 4)}, {vr(d, 16)}",
        ]

    def seg(tau):
        return [f"v_smfmac_f32_32x32x32_bf16 {vr(vACC + 16 * (2 * tau + s), 16)}, {vr(vSEL, 4)}, {vr(vM + 8 * s, 8)}, v{vIDX}"
                for s in range(2)]

    for m in pre(vD, vG, vX, 0):
        a(m)

    def tile(d, mp, ms, mid, extra):
        for r in range(16):
            if r in (0, 3, 6):
                a(mp[r // 3])
            if r == 9:
                if mid:
                    a("s_waitcnt lgkmcnt(0)")
                a(ms[0])
                for x in mid:
                    a(x)
            wide = "_e64" if (r in (2, 5) or (r == 8 and not mid) or r == 15) else ""
            a(f"v_exp_f32{wide} v{vE + r}, v{d + r}")
        for g in range(0, 16, 2):
            a(f"v_pk_fma_f32 {vr(vE + g, 2)}, {vr(vE + g, 2)}, s[{sKP}:{sKP + 1}], s[{sKP}:{sKP + 1}] clamp")
        for g in range(4):
            a(f"v_pk_mul_f32 {vr(vP + 2 * g, 2)}, {vr(vE + 4 * g, 2)}, {vr(vE + 4 * g + 2, 2)}")
        for g in range(2):
            a(f"v_pk_mul_f32 {vr(vQ + 2 * g, 2)}, {vr(vP + 4 * g, 2)}, {vr(vP + 4 * g + 2, 2)}")
        for g in range(4):
            a(f"v_pk_mul_f32 {vr(vE + 4 * g + 2, 2)}, {vr(d + 4 * g, 2)}, {vr(vE + 4 * g + 2, 2)}")
            a(f"v_pk_mul_f32 {vr(vE + 4 * g, 2)}, {vr(vE + 4 * g, 2)}, {vr(d + 4 * g + 2, 2)}")
        a(ms[1])
        for r in range(4):
            a(f"v_rcp_f32 v{vQ + r}, v{vQ + r}")
        for x in extra:
            a(x)
        for g in range(4):
            a(f"v_pk_mul_f32 {vr(vP + 2 * g, 2)}, {vr(vP + 2 * g, 2)}, {vr(vQ + 2 * (g // 2), 2)}")
        for g in range(4):
            o = vP + 2 * (g ^ 1)
            a(f"v_pk_mul_f32 {vr(vM + 2 * g, 2)}, {vr(vE + 4 * g + 2, 2)}, {vr(o, 2)}")
            a(f"v_pk_mul_f32 {vr(vM + 8 + 2 * g, 2)}, {vr(vE + 4 * g, 2)}, {vr(o, 2)}")

    TOFF = TARR - CREC

    def step(par):
        g, x = vG + 16 * par, vX + 4 * par
        gn, xn = vG + 16 * (1 - par), vX + 4 * (1 - par)
        ex = [f"v_and_or_b32 v{vT + i}, v{vT + i}, v{vK}, v{vAT}" for i in range(2)]
        tile(vD, pre(vD + 16, g, x, 1), seg(1), [], ex)
        for u in range(4):
            a(f"buffer_load_dwordx4 {vr(g + 4 * u, 4)}, {vr(vSRC, 2)}, s[16:19], 0 idxen offen offset:{64 * u}")
        a(f"""ds_read_b64_tr_b16 {vr(vSEL, 2)}, v{vT} offset:{TOFF + 128 * par}
ds_read_b64_tr_b16 {vr(vSEL + 2, 2)}, v{vT + 1} offset:{TOFF + 128 * par + 16}
ds_read_u8 v{x}, v{vAX} offset:{256 + 128 * par + 2}
ds_read2_b32 {vr(vT, 2)}, v{vAT} offset0:{32 * par + 32} offset1:{32 * par + 36}
ds_read_u16 v{vSRC}, v{vAS} offset:{384 + 128 * par}
s_cmp_eq_u32 s{sCUR}, s{sEVT}
s_cbranch_scc1 K2_EVT{par}
K2_RET{par}:
s_add_u32 s{sCUR}, s{sCUR}, 1
s_waitcnt vmcnt(4) lgkmcnt(5)
""")
        mid = [f"ds_read_b128 {vr(x, 4)}, v{x} offset:{ROWB}", f"ds_read_b32 v{x}, v{vAX} offset:{256 + 128 * par + 4}"]
        ex = []
        if par == 1:
            ex = [f"v_add_u32 v{vAX}, s{sC}, v{vAX}", f"v_add_u32 v{vAS}, s{sC}, v{vAS}", f"v_add_u32_e64 v{vAT}, s{sC}, v{vAT}"]
        tile(vD + 16, pre(vD, gn, xn, 0), seg(0), mid, ex)
        a(f"s_cmp_lt_u32 s{sCUR}, s{sEND}")
        a("s_cbranch_scc0 K2_DONE" if par == 0 else "s_cbranch_scc1 K2_LOOP")

    stamp(10)
    a(f"""s_nop 11
.p2align 3
K2_LOOP:
""")
    step(0)
    step(1)
    a("K2_DONE:")
    stamp(11)
    for m in seg(1):
        a(m)
    a(f"""s_lshl_b32 s{sT + 8}, s{sW}, 13
s_add_u32 s{sT + 8}, s{sT + 8}, {WF_OFF + 32768}
s_add_u32 s{sT + 9}, s{sT + 8}, 4096
v_lshlrev_b32 v5, 4, v{vL}
s_mov_b32 s{sMODE}, 2
s_lshr_b32 s{sLF}, s{sNL}, 1
s_cmp_lt_u32 s{sW}, 4
s_cbranch_scc1 K2_FLUSH
""")
    for ks in range(8):
        a(f"buffer_load_dwordx4 {vr(vG + 4 * ks, 4)}, v5, s[12:15], s{sT + 8 + ks // 4} offen offset:{1024 * (ks % 4)}")
    a(f"""K2_FLUSH:
s_cmp_eq_u32 s{sRES}, 1
s_cbranch_scc1 K2_FL1
s_cmp_eq_u32 s{sRES}, 2
s_cbranch_scc1 K2_FL2
""")
    for i in range(3):
        r = lambda cb, c=0: vACC + 16 * cb + 4 * i + c
        a(f"""K2_FL{i}:
s_lshl_b32 s{sT}, s{sPF}, 1
s_cmp_eq_u32 s{sT}, s{sNL}
s_cselect_b32 exec_hi, 0, -1
s_add_u32 s{sPF}, s{sPF}, 1
s_mul_i32 s{sT}, s{sPF}, {2 * RST}
s_mov_b32 s{sRES}, {(i + 1) % 3}
v_pk_mul_f32 v[2:3], {vr(r(0), 2)}, {vr(vWX, 2)} op_sel:[0,0] op_sel_hi:[1,0]
v_pk_mul_f32 v[4:5], {vr(r(0, 2), 2)}, {vr(vWX, 2)} op_sel:[0,0] op_sel_hi:[1,0]
v_cvt_pk_bf16_f32 v0, v{r(0)}, v{r(1)}
""")
        for cb in range(1, 4):
            o = cb & 1
            for h in range(2):
                a(f"v_pk_fma_f32 v[{2 + 2 * h}:{3 + 2 * h}], {vr(r(cb, 2 * h), 2)}, {vr(vWX + (cb & 2), 2)}, v[{2 + 2 * h}:{3 + 2 * h}] "
                  f"op_sel:[0,{o},0] op_sel_hi:[1,{o},1]")
        a(f"""v_cvt_pk_bf16_f32 v1, v{r(2)}, v{r(3)}
ds_write2_b64 v{vFA}, v[2:3], v[4:5] offset0:32 offset1:64
ds_write_b64 v{vFA}, v[0:1]
v_add_u32 v{vFA}, s{sT}, v{vLR}
s_cmp_eq_u32 s{sMODE}, 2
s_cbranch_scc1 K2_FLZ{i}
""")
        for cb in range(4):
            for h in range(2):
                a(f"v_mov_b64 {vr(r(cb, 2 * h), 2)}, 0")
        a(f"""K2_FLZ{i}:
s_cmp_le_i32 s{sPF}, s{sLF}
""")
        a("s_cbranch_scc0 K2_FLEND" if i < 2 else "s_cbranch_scc1 K2_FL0")
    a(f"""K2_FLEND:
s_cmp_lg_u32 s{sMODE}, 2
s_cbranch_scc1 K2_EVA
s_mov_b32 exec_hi, -1
s_cmp_lt_u32 s{sW}, 4
s_cbranch_scc1 K2_POS
""")
    S2, TB = vE, vE + 8
    NP = 13
    hx = {0: vAX, 2: vAT, 8: vK, 10: vOFF}
    rows = []
    for p in range(NP):
        rho, r = (2 * p) // 16, (2 * p) % 16
        rows.append(32 * rho + 8 * (r >> 2) + (r & 3))
    a(f"""v_and_b32 v1, 31, v{vL}
v_lshrrev_b32 v2, 5, v{vL}
v_lshlrev_b32 v3, 4, v1
v_lshl_or_b32 v3, v2, 3, v3
ds_read_b64 {vr(S2, 2)}, v3 offset:{SEL2}
ds_read_b64 {vr(S2 + 4, 2)}, v3 offset:{SEL2 + 512}
v_mul_u32_u24 v1, {RST}, v1
v_lshl_add_u32 v1, v2, 4, v1
v_add_u32 v1, {ROWS}, v1
v_mov_b64 {vr(S2 + 2, 2)}, 0
v_mov_b64 {vr(S2 + 6, 2)}, 0
v_mov_b64 {vr(TB + 2, 2)}, 0
""")
    stamp(12)
    a(f"""s_waitcnt lgkmcnt(0)
s_barrier
""")
    stamp(13)
    jobs = [(rho, ks) for rho in (1, 0) for ks in range(8)]
    for j, (rho, ks) in enumerate(jobs[:15]):
        a(f"ds_read_b128 {vr(vACC + 4 * j, 4)}, v1 offset:{rho * 32 * RST + ks * 32}")
    a("s_waitcnt vmcnt(0)")

    def mm(j):
        rho, ks = jobs[j]
        if j == 0:
            a("s_waitcnt lgkmcnt(14)")
            a(f"ds_read_b128 {vr(vACC + 60, 4)}, v1 offset:{7 * 32}")
        else:
            a(f"s_waitcnt lgkmcnt({15 - j})")
        a(f"v_mfma_f32_32x32x16_bf16 {vr(vC + 16 * rho, 16)}, {vr(vACC + 4 * j, 4)}, {vr(vG + 4 * ks, 4)}, {vr(vC + 16 * rho, 16)}")
    for j in range(10):
        mm(j)
    a(f"""v_cvt_pk_bf16_f32 v{TB}, v{vC + 28}, v{vC + 29}
v_cvt_pk_bf16_f32 v{TB + 1}, v{vC + 30}, v{vC + 31}
""")
    mm(10)
    a(f"v_mfma_f32_32x32x16_bf16 {vr(vC + 16, 16)}, {vr(S2 + 4, 4)}, {vr(TB, 4)}, {vr(vC + 16, 16)}")
    for j in range(11, 16):
        mm(j)
    a(f"v_mfma_f32_32x32x16_bf16 {vr(vC, 16)}, {vr(S2, 4)}, {vr(TB, 4)}, {vr(vC, 16)}")
    a(f"""s_cmp_lg_u32 s{sMORE}, 0
s_cbranch_scc1 K2_MORE
s_mul_i32 s{sT}, s2, {BN * 256}
s_add_u32 s20, s20, s{sT}
s_addc_u32 s21, s21, 0
s_mov_b32 s22, s6
s_mov_b32 s23, {FMT}
s_sub_u32 s{sT + 1}, s{sW}, 4
s_lshl_b32 s{sT + 2}, s{sT + 1}, 6
s_lshl_b32 s{sT + 3}, s{sT + 1}, 2
v_bfe_u32 v3, v{vL}, 4, 1
v_lshl_or_b32 v3, v2, 2, v3
v_and_b32 v4, 15, v{vL}
v_lshlrev_b32 v5, 8, v3
v_lshl_or_b32 v{vAS}, v4, 2, v5
v_add_u32 v{vAS}, s{sT + 2}, v{vAS}
v_lshrrev_b32 v4, 2, v4
v_or_b32 v4, s{sT + 3}, v4
v_xor_b32 v4, v4, v3
v_lshl_or_b32 v5, v4, 4, v5
v_and_b32 v4, 3, v{vL}
v_lshl_or_b32 v{vAX}, v4, 2, v5
v_xor_b32 v{vAT}, 32, v{vAX}
v_xor_b32 v{vK}, 128, v{vAX}
v_xor_b32 v{vOFF}, 160, v{vAX}
""")
    stamp(14)
    for p in range(NP):
        a(f"ds_read_b32 v{vX + p}, v{hx[rows[p] & 15]} offset:{HST + rows[p] * 256}")
    a(f"""s_mov_b32 s{sT}, {f32(-LN2)}
s_mov_b32 s{sT + 1}, {f32(-LN2)}
s_mov_b32 s{sT + 2}, 0xffff0000
s_mov_b32 s{sT + 4}, 0
s_mov_b32 s{sT + 5}, 4096
s_mov_b32 s{sT + 6}, 8192
s_mov_b32 s{sT + 7}, 12288
""")
    first = True
    for ps in ([8, 9, 10, 11, 12], [0, 1, 2, 3], [4, 5, 6, 7]):
        for p in ps:
            a(f"v_permlane16_swap_b32 v{vC + 2 * p}, v{vC + 2 * p + 1}")
        for p in ps:
            for i in range(2):
                a(f"v_exp_f32 v{vD + 2 * p + i}, v{vC + 2 * p + i}")
        if first:
            a("s_waitcnt lgkmcnt(0)")
            first = False
        for p in ps:
            a(f"v_pk_add_f32 {vr(vD + 2 * p, 2)}, {vr(vD + 2 * p, 2)}, 1.0 op_sel_hi:[1,0]")
        for p in ps:
            for i in range(2):
                a(f"v_rcp_f32 v{vD + 2 * p + i}, v{vD + 2 * p + i}")
        for p in ps:
            a(f"v_lshlrev_b32 v{vG + 2 * p}, 16, v{vX + p}")
            a(f"v_and_b32 v{vG + 2 * p + 1}, s{sT + 2}, v{vX + p}")
        for p in ps:
            a(f"v_pk_mul_f32 {vr(vD + 2 * p, 2)}, {vr(vD + 2 * p, 2)}, {vr(vC + 2 * p, 2)}")
        for p in ps:
            a(f"v_pk_fma_f32 {vr(vD + 2 * p, 2)}, {vr(vD + 2 * p, 2)}, s[{sT}:{sT + 1}], {vr(vG + 2 * p, 2)}")
        for p in ps:
            a(f"v_cvt_pk_bf16_f32 v{vX + p}, v{vD + 2 * p}, v{vD + 2 * p + 1}")
        for p in ps:
            o = rows[p] * 256
            a(f"buffer_store_dword v{vX + p}, v{vAS}, s[20:23], s{sT + 4 + o // 4096} offen offset:{o % 4096}{SO}")
    dump()
    a("""K2_EXIT:
s_endpgm
""")
    a(f"""K2_POS:
s_lshl_b32 s{sT}, s{sW}, 8
s_add_u32 s{sT}, s{sT}, {ROWS + 256}
v_mul_u32_u24 v1, {RST}, v{vL}
v_add_u32 v1, s{sT}, v1
s_lshl_b32 s{sT + 1}, s{sW}, 9
v_lshl_add_u32 v2, v{vL}, 3, s{sT + 1}
ds_read_b32 v3, v{vL4} offset:{HEAD - 224}
""")
    stamp(12)
    a(f"""s_waitcnt lgkmcnt(0)
s_barrier
""")
    stamp(13)
    a(f"""s_cmp_ge_u32 s{sW}, 2
s_cbranch_scc1 K2_POSEND
""")
    for i in range(16):
        if i == 15:
            a("s_waitcnt lgkmcnt(14)")
        a(f"ds_read_b128 {vr(vACC + 4 * i, 4)}, v1 offset:{16 * i}")
    a(f"v_add_u32 v3, s{sT + 1}, v3")
    for i in range(8):
        a(f"s_waitcnt lgkmcnt({14 - 2 * i})")
        for h in range(2):
            a(f"v_pk_add_f32 {vr(vACC + 8 * i + 2 * h, 2)}, {vr(vACC + 8 * i + 2 * h, 2)}, {vr(vACC + 8 * i + 4 + 2 * h, 2)}")
    w = 32
    while w >= 8:
        for i in range(0, w, 8):
            for h in range(2):
                a(f"v_pk_add_f32 {vr(vACC + i + 2 * h, 2)}, {vr(vACC + i + 2 * h, 2)}, {vr(vACC + w + i + 2 * h, 2)}")
        w //= 2
    a(f"""v_pk_add_f32 {vr(vACC, 2)}, {vr(vACC, 2)}, {vr(vACC + 2, 2)}
v_pk_add_f32 {vr(vC + 28, 2)}, {vr(vC + 28, 2)}, {vr(vACC, 2)}
ds_write_b64 v2, {vr(vC + 28, 2)} offset:{PS}
s_mov_b32 exec_lo, 0
s_mov_b32 exec_hi, 0xff000000
ds_add_f32 v3, v{vACC} offset:{PS}
ds_add_f32 v3, v{vACC + 1} offset:{PS + 4}
s_mov_b64 exec, -1
ds_read_b64 {vr(vC + 28, 2)}, v2 offset:{PS}
v_lshlrev_b32 v4, 2, v{vL4}
s_lshl_b32 s{sT + 1}, s{sW}, 3
v_add_u32 v4, s{sT + 1}, v4
ds_read_b32 v0, v4 offset:{ROWA - 4}
ds_read_b32 v1, v4 offset:{ROWA}
s_cmp_lg_u32 s{sMORE}, 0
s_cbranch_scc1 K2_MORE
s_mul_i32 s{sT}, s2, {BN * 6}
s_sub_u32 s22, {N * 6}, s{sT}
s_min_u32 s22, s22, {BN * 6}
s_add_u32 s{sT}, s{sT}, {N * 256}
s_add_u32 s20, s20, s{sT}
s_addc_u32 s21, s21, 0
s_mov_b32 s23, {FMT}
v_mul_u32_u24 v5, 6, v{vL}
v_cmp_gt_u32 vcc, s22, v5
s_add_u32 s22, s22, 2
s_lshl_b32 s{sT + 1}, s{sW}, 2
s_waitcnt lgkmcnt(0)
v_pk_add_f32 v[0:1], v[0:1], {vr(vC + 28, 2)}
v_cvt_pk_bf16_f32 v4, v0, v1
s_mov_b64 exec, vcc
buffer_store_short_d16_hi v4, v5, s[20:23], s{sT + 1} offen
s_cmp_eq_u32 s{sW}, 0
s_cbranch_scc1 K2_EXIT2
buffer_store_short v4, v5, s[20:23], 0 offen offset:2
s_branch K2_EXIT2
K2_POSEND:
s_cmp_lg_u32 s{sMORE}, 0
s_cbranch_scc1 K2_MORE
K2_EXIT2:
""")
    dump()
    a("s_endpgm")
    a(f"""K2_JOB67:
s_cmp_eq_u32 s{sW}, 7
s_cbranch_scc1 K2_JOB7
s_mov_b32 m0, {CONL}
s_mov_b32 s{sT + 8}, {CON_OFF}
buffer_load_dwordx4 v5, s[12:15], s{sT + 8} offen lds
s_branch K2_JOBRET
K2_JOB7:
s_mul_i32 s{sT + 8}, s2, {BN * 6}
v_mul_u32_u24 v1, 6, v{vL}
v_mov_b64 {vr(vPD, 2)}, 0
s_mov_b32 exec_hi, {(1 << (BN - 32)) - 1}
buffer_load_dwordx2 {vr(vPD, 2)}, v1, s[8:11], s{sT + 8} offen
s_mov_b32 exec_hi, -1
s_branch K2_JOBRET
K2_HIY:
s_cmp_eq_u32 s{sW}, 7
s_cbranch_scc0 K2_NOY
v_lshlrev_b32 v2, 16, v{vPD}
v_and_b32 v3, 0xffff0000, v{vPD}
v_lshlrev_b32 v4, 16, v{vPD + 1}
ds_write_b96 v5, v[2:4] offset:{ROWA}
s_branch K2_NOY
K2_SKIPGEMM:
s_waitcnt vmcnt(0) lgkmcnt(0)
s_barrier
s_branch K2_RANK
""")
    a(f"""K2_MORE:
s_waitcnt vmcnt(0) lgkmcnt(0)
s_barrier
s_setprio 0
s_add_u32 s{sBASE}, s{sBASE}, {RB}
v_and_b32 v{vAS}, 0x7f, v{vAS}
v_and_b32 v{vAX}, 0x0100007f, v{vAX}
v_and_b32 v{vAT}, 0x7f, v{vAT}
v_mov_b64 {vr(vSEL, 2)}, 0
v_mov_b64 {vr(vSEL + 2, 2)}, 0
v_lshlrev_b32 v5, 4, v{vL}
s_cmp_lt_u32 s{sW}, 4
s_cbranch_scc1 K2_KEEP
v_mov_b64 {vr(vC + 28, 2)}, 0
v_mov_b64 {vr(vC + 30, 2)}, 0
K2_KEEP:
""")
    hop1_addr()
    hop1()
    a(f"s_mul_i32 s{sT + 12}, s{sW}, {9 * 1024}")
    for j in range(9):
        a(pos_dma(j))
    pos_extra("B")
    a(f"""s_lshl_b32 s{sT}, s{sW}, 10
v_add_u32 v1, s{sT}, v5
ds_write_b128 v1, {vr(vSEL, 4)} offset:{TARR}
ds_write_b128 v5, {vr(vSEL, 4)} offset:{SEL2}
ds_write_b32 v{vL4}, v{vSEL} offset:{CNT}
""")
    zero_acc(vSEL)
    a(f"""s_waitcnt vmcnt(0)
s_branch K2_BATCH
""")
    a(f"""K2_EVT0:
s_mov_b32 s{sMODE}, 0
s_branch K2_EVT
K2_EVT1:
s_mov_b32 s{sMODE}, 1
K2_EVT:
s_cmp_lg_u32 s{sPR}, s{sCUR}
s_cbranch_scc1 K2_EVP
s_setprio 0
s_mov_b32 s{sPR}, -1
K2_EVP:
s_cmp_lg_u32 s{sFL}, s{sCUR}
s_cbranch_scc1 K2_EVA
s_mov_b32 s{sFL}, -1
s_sub_u32 s{sLF}, s{sP0}, 1
s_branch K2_FLUSH
K2_EVA:
s_sub_u32 s{sEVT}, s{sSW}, 1
s_cmp_lg_u32 s{sEVT}, s{sCUR}
s_cbranch_scc1 K2_EVB
s_mov_b32 s{sFL}, s{sSW}
s_mov_b32 s{sEVT}, s{sSW}
""")
    window(sFL)
    load_y()
    a(f"""s_waitcnt lgkmcnt(0)
K2_EVB:
s_min_u32 s{sEVT}, s{sEVT}, s{sPR}
s_cmp_eq_u32 s{sMODE}, 0
s_cbranch_scc1 K2_RET0
s_branch K2_RET1
""")


def kd(name, vgpr, sgpr=96):
    return f""".amdhsa_kernel {name}
  .amdhsa_next_free_vgpr {vgpr}
  .amdhsa_next_free_sgpr {sgpr}
  .amdhsa_accum_offset {(vgpr + 3) // 4 * 4}
  .amdhsa_group_segment_fixed_size 0
  .amdhsa_kernarg_size 88
  .amdhsa_user_sgpr_count 2
  .amdhsa_user_sgpr_kernarg_segment_ptr 1
  .amdhsa_system_sgpr_workgroup_id_x 1
.end_amdhsa_kernel
"""


def build(opt=None, verbose=False):
    opt = opt or {}
    ref = open(f"cdna_kernels/{NAME}.s.ref").read().split("\n")
    head = [l for l in ref if l.startswith(";") and "@launch" not in l and "Override" not in l and "grid=ceil" not in l]
    e = ref.index('.amdgcn_target "amdgcn-amd-amdhsa--gfx950"')
    head = [l for l in ref[:e] if "@launch" not in l and "Override" not in l and "grid=ceil" not in l]
    head.append(f"; @launch kernel=k1_kernel grid=({NB + NCH},1,1) block=(512,1,1) lds={K1_LDS}")
    head.append(f"; @launch kernel={NAME}_kernel grid=({NB},1,1) block=(512,1,1) lds={K2_LDS}")
    if "empty" in opt:
        head.insert(len(head) - 2 + int(opt["empty"]), "; @launch kernel=e_kernel grid=(256,1,1) block=(64,1,1) lds=0")
    a1, a2 = Asm(), Asm()
    gen_k1(a1, opt)
    gen_k2(a2, opt)
    n1 = a1.fix_hazards(verbose)
    n2 = a2.fix_hazards(verbose)
    s = "\n".join(head) + '\n.amdgcn_target "amdgcn-amd-amdhsa--gfx950"\n.text\n'
    s += a1.text() + a2.text()
    if "empty" in opt:
        s += ".globl e_kernel\n.p2align 8\n.type e_kernel,@function\ne_kernel:\n    s_endpgm\n"
    s += '.section .rodata,"a"\n.p2align 6\n' + kd("k1_kernel", 104) + ".p2align 6\n" + kd(NAME + "_kernel", 256)
    if "empty" in opt:
        s += ".p2align 6\n" + kd("e_kernel", 8)
    return s


if __name__ == "__main__":
    out = sys.argv[1] if len(sys.argv) > 1 else f"cdna_kernels/{NAME}.s"
    opt = dict(kv.split("=") for kv in sys.argv[2:])
    open(out, "w").write(build(opt, verbose="v" in opt))
    print("written", out)
```

```python
import sys, struct, math
sys.path.insert(0, "work")
from asmlib import Asm, vr, sr

NAME = "standalone__cheap_equivariant_egnn__graph"
N, E = 12500, 400000
NB, BN = 256, 49
CH, NCH, CS = 1564, 256, 1568
WF_OFF = NCH * CS * 8
CON_OFF = WF_OFF + 98304
TAB_OFF = CON_OFF + 1024
WS1_SIZE = TAB_OFF + NCH * 1024 + 4096
BP_OFF = 4 << 20
DBG_OFF = 16 << 20
FMT = 0x00020000


def f32(x):
    return struct.unpack("<I", struct.pack("<f", x))[0]


LOG2E = 1.4426950408889634
LN2 = 0.6931471805599453
KAPPA = 2.0 ** -31
DELTA = 2.0 ** -8 * 0.70
K1_LDS = 49152

RB = 256
ROWB = 0
CNT = 256
HEAD = 512
ROWA = 1024
SEL2 = 2048
PS = 3072
CONL = 4096
CREC = 5120
TARR = CREC + 18432
HST = TARR + 18432
YTAB = HST + 14336
POS = YTAB + 14336
ROWS = POS
RST = 784
K2_LDS = POS + 74 * 1024


def scan_add(a, v, n64=True, op="v_add_u32"):
    for sh in (1, 2, 4, 8):
        for r in v:
            a(f"{op}_dpp v{r}, v{r}, v{r} row_shr:{sh} row_mask:0xf bank_mask:0xf bound_ctrl:1")
    for r in v:
        a(f"{op}_dpp v{r}, v{r}, v{r} row_bcast:15 row_mask:0xa bank_mask:0xf")
    if n64:
        for r in v:
            a(f"{op}_dpp v{r}, v{r}, v{r} row_bcast:31 row_mask:0xc bank_mask:0xf")


def diag_tools(a, opt, ws, lane, off, kern):
    diag = opt.get("diag")
    only = [int(x) for x in opt["st"].split(",")] if "st" in opt else None

    clk = "s_memrealtime" if "rt" in opt else "s_memtime"
    probe = opt["probe"].split(",") if "probe" in opt else None

    def entry():
        if diag:
            a(f"s_memrealtime s[86:87]\n{clk} s[70:71]")
        if probe and kern == "1":
            a("s_memrealtime s[86:87]")

    def stamp(i):
        if probe and kern == "1" and i == 1 and probe[0] == "2":
            a.nsave = getattr(a, "nsave", 0) + 1
            a(f"""s_cmp_eq_u32 s2, 0
s_cbranch_scc0 PSAVE{a.nsave}
v_mov_b32 v60, s86
v_mov_b32 v61, 0
s_mov_b32 s88, {WS1_SIZE - 4096}
buffer_store_dword v60, v61, s[16:19], s88 offen
PSAVE{a.nsave}:
""")
        if probe and probe[0] == kern and int(probe[1]) == i:
            a.nprobe = getattr(a, "nprobe", 0) + 1
            if kern == "2":
                a(f"""s_add_u32 s88, s12, {WS1_SIZE - 4096}
s_addc_u32 s89, s13, 0
s_load_dword s86, s[88:89], 0
""")
            a(f"""PROBE{kern}_{a.nprobe}:
s_memrealtime s[66:67]
s_waitcnt lgkmcnt(0)
s_sub_u32 s66, s66, s86
s_cmp_lt_u32 s66, {probe[2]}
s_cbranch_scc1 PROBE{kern}_{a.nprobe}
""")
        if diag and (only is None or i in only or i == 15):
            a(f"""{clk} s[66:67]
s_waitcnt lgkmcnt(0)
s_mov_b32 s{70 + i}, s66
""")
            if "both" in opt and i in (10, 11):
                a(f"""s_memrealtime s[66:67]
s_waitcnt lgkmcnt(0)
s_mov_b32 s{68 + i}, s66
""")

    def dump():
        stamp(15)
        if not diag:
            return
        a(f"""s_memrealtime s[66:67]
s_waitcnt lgkmcnt(0)
s_mov_b32 s87, s66
s_mov_b64 exec, -1
s_add_u32 s88, s{ws}, {off}
s_addc_u32 s89, s{ws + 1}, 0
s_mov_b32 s90, {1 << 20}
s_mov_b32 s91, {FMT}
s_lshl_b32 s66, s2, 3
s_add_u32 s66, s66, s3
s_lshl_b32 s66, s66, 7
v_mov_b32 v1, 0
""")
        for i in range(18):
            a(f"v_writelane_b32 v1, s{70 + i}, {i}")
        a(f"""v_lshlrev_b32 v2, 2, v{lane}
s_mov_b64 exec, 0x3ffff
buffer_store_dword v1, v2, s[88:91], s66 offen
""")
    return entry, stamp, dump


def gen_k1(a, opt):
    entry, stamp, dump = diag_tools(a, {k: v for k, v in opt.items() if k != "st"}, 16, 2, DBG_OFF + (1 << 20), "1")

    SC = " " + opt.get("sc", "sc1").replace("_", " ")

    def fin():
        if opt.get("diag"):
            stamp(5)
            a("s_waitcnt vmcnt(0)")
            dump()
    a(""".globl k1_kernel
.p2align 8
.type k1_kernel,@function
k1_kernel:
""")
    entry()
    a(f"""s_load_dwordx2 s[4:5], s[0:1], 32
s_load_dwordx2 s[8:9], s[0:1], 24
s_load_dwordx2 s[12:13], s[0:1], 16
s_load_dwordx2 s[16:17], s[0:1], 80
s_load_dwordx2 s[20:21], s[0:1], 0
s_load_dwordx2 s[24:25], s[0:1], 40
s_load_dwordx2 s[28:29], s[0:1], 56
s_cmp_ge_u32 s2, {NB + NCH}
s_cbranch_scc1 K1_EXIT
v_lshrrev_b32 v1, 6, v0
v_and_b32 v2, 63, v0
s_mov_b32 s18, {WS1_SIZE}
s_mov_b32 s19, {FMT}
v_readfirstlane_b32 s3, v1
""")
    if "nopf" not in opt:
        a(f"""; wave 7 touches every line of both kernels' code so that later instruction fetches hit the L2
s_cmp_lg_u32 s3, 7
s_cbranch_scc1 K1_NOPF
s_getpc_b64 s[56:57]
s_and_b32 s56, s56, 0xffffff00
v_lshlrev_b32 v50, 7, v2
v_mov_b32 v51, s57
v_add_co_u32 v50, vcc, s56, v50
v_addc_co_u32 v51, vcc, 0, v51, vcc
global_load_dword v52, v[50:51], off
v_add_co_u32 v50, vcc, 0x2000, v50
v_addc_co_u32 v51, vcc, 0, v51, vcc
v_cmp_gt_u32 vcc, (K2_END-k1_kernel-8192+127)/128, v2
s_mov_b64 exec, vcc
global_load_dword v53, v[50:51], off
s_mov_b64 exec, -1
K1_NOPF:
""")
    a(f"""s_cmp_lt_u32 s2, {NB}
s_cbranch_scc1 K1_GEMM
""")
    DST, SRC, EA, AD, RK, HI, T0 = 4, 8, 12, 16, 20, 24, 28
    a(f"""; sort role: one chunk of {CH} edges is grouped by destination bin
s_sub_u32 s40, s2, {NB}
s_mov_b32 s6, {E * 4}
s_mov_b32 s7, {FMT}
s_mov_b32 s10, {E * 4}
s_mov_b32 s11, {FMT}
s_mov_b32 s14, {E * 2}
s_mov_b32 s15, {FMT}
s_mul_i32 s41, s40, {CH * 4}
s_mul_i32 s42, s40, {CH * 2}
v_lshlrev_b32 v3, 4, v0
v_lshlrev_b32 v14, 3, v0
v_lshlrev_b32 v15, 2, v0
v_mov_b32 v40, 0
s_mov_b32 s43, {CH // 4}
s_cmp_eq_u32 s40, {NCH - 1}
s_cselect_b32 s43, {(E - (NCH - 1) * CH) // 4}, s43
v_cmp_gt_u32 vcc, s43, v0
ds_write_b32 v15, v40
s_mov_b64 s[44:45], vcc
s_waitcnt lgkmcnt(0)
s_mov_b64 exec, s[44:45]
buffer_load_dwordx4 {vr(DST, 4)}, v3, s[4:7], s41 offen
buffer_load_dwordx2 {vr(EA, 2)}, v14, s[12:15], s42 offen
buffer_load_dwordx4 {vr(SRC, 4)}, v3, s[8:11], s41 offen
s_mov_b32 s46, -49
s_mov_b32 s47, 0xff100000
s_mov_b32 s54, 0x01000000
s_mov_b32 s48, {f32(-LOG2E)}
s_mov_b32 s49, {f32(-LOG2E)}
s_mov_b32 s50, 0xffff0000
s_mul_i32 s51, s40, {CS * 8}
s_lshl_b32 s52, s40, 10
s_add_u32 s52, s52, {TAB_OFF}
s_add_u32 s53, s51, 8192
v_mov_b32 v41, 1
""")
    stamp(1)
    a("s_barrier\ns_waitcnt vmcnt(2)")
    stamp(2)
    for i in range(4):
        a(f"v_mul_u32_u24 v{T0 + i}, 21400, v{DST + i}")
    for i in range(4):
        a(f"v_lshrrev_b32 v{T0 + i}, 20, v{T0 + i}")
    for i in range(4):
        a(f"v_lshlrev_b32 v{AD + i}, 2, v{T0 + i}")
    for i in range(4):
        a(f"ds_add_rtn_u32 v{RK + i}, v{AD + i}, v41")
    for i in range(4):
        a(f"v_mad_i32_i24 v{DST + i}, v{T0 + i}, s46, v{DST + i}")
    for i in range(4):
        a(f"v_mul_u32_u24 v{T0 + i}, 43, v{DST + i}")
    for i in range(4):
        a(f"v_lshrrev_b32 v{T0 + i}, 8, v{T0 + i}")
    for i in range(4):
        a(f"v_lshlrev_b32 v{HI + i}, 2, v{DST + i}")
    for i in range(4):
        a(f"v_mad_i32_i24 v{DST + i}, v{T0 + i}, -6, v{DST + i}")
    a("s_waitcnt vmcnt(1)")
    for j in range(2):
        a(f"v_lshlrev_b32 v{T0 + 2 * j}, 16, v{EA + j}")
        a(f"v_and_b32 v{T0 + 2 * j + 1}, s50, v{EA + j}")
    for j in range(2):
        a(f"v_pk_mul_f32 {vr(T0 + 2 * j, 2)}, {vr(T0 + 2 * j, 2)}, s[48:49]")
    for j in range(2):
        a(f"v_cvt_pk_bf16_f32 v{EA + j}, v{T0 + 2 * j}, v{T0 + 2 * j + 1}")
    for j in range(2):
        a(f"v_lshl_or_b32 v{HI + 2 * j}, v{EA + j}, 16, v{HI + 2 * j}")
        a(f"v_and_or_b32 v{HI + 2 * j + 1}, v{EA + j}, s50, v{HI + 2 * j + 1}")
    for i in range(4):
        a(f"v_lshlrev_b32 v{T0 + i}, v{DST + i}, s54")
    a("s_waitcnt vmcnt(0)")
    for i in range(4):
        a(f"v_lshl_add_u32 v{SRC + i}, v{DST + i}, 20, v{SRC + i}")
    for i in range(4):
        a(f"v_xad_u32 v{SRC + i}, v{T0 + i}, s47, v{SRC + i}")
    C0, O0 = 32, 36
    a(f"""s_mov_b64 exec, -1
v_lshlrev_b32 v42, 4, v2
s_waitcnt lgkmcnt(0)
s_barrier
""")
    stamp(3)
    a(f"""ds_read_b128 {vr(C0, 4)}, v42
s_waitcnt lgkmcnt(0)
v_add_u32 v43, v{C0}, v{C0 + 1}
v_add3_u32 v43, v43, v{C0 + 2}, v{C0 + 3}
v_mov_b32 v44, v43
""")
    scan_add(a, [44])
    a(f"""v_sub_u32 v{O0}, v44, v43
v_add_u32 v{O0 + 1}, v{O0}, v{C0}
v_add_u32 v{O0 + 2}, v{O0 + 1}, v{C0 + 1}
v_add_u32 v{O0 + 3}, v{O0 + 2}, v{C0 + 2}
ds_write_b128 v42, {vr(O0, 4)} offset:1024
s_cmp_lg_u32 s3, 7
s_cbranch_scc1 K1_NOTAB
""")
    for i in range(4):
        a(f"v_lshl_or_b32 v{C0 + i}, v{C0 + i}, 16, v{O0 + i}")
    a(f"""buffer_store_dwordx4 {vr(C0, 4)}, v42, s[16:19], s52 offen{SC}
s_branch K1_SCAT_DONE
K1_NOTAB:
s_mov_b64 exec, s[44:45]
""")
    for i in range(4):
        a(f"ds_read_b32 v{AD + i}, v{AD + i} offset:1024")
    for i in range(4):
        a(f"s_waitcnt lgkmcnt({3 - i})")
        a(f"v_add_lshl_u32 v{AD + i}, v{AD + i}, v{RK + i}, 3")
    for i in range(4):
        a(f"v_add_u32 v{AD + i}, 2048, v{AD + i}")
        a(f"ds_write2_b32 v{AD + i}, v{SRC + i}, v{HI + i} offset0:0 offset1:1")
    a(f"""s_mov_b64 exec, -1
K1_SCAT_DONE:
v_cmp_gt_u32 vcc, {(CH * 8 - 8192) // 16}, v0
s_waitcnt lgkmcnt(0)
s_barrier
""")
    stamp(4)
    a(f"""ds_read_b128 v[4:7], v3 offset:2048
ds_read_b128 v[8:11], v3 offset:{2048 + 8192}
s_waitcnt lgkmcnt(1)
buffer_store_dwordx4 v[4:7], v3, s[16:19], s51 offen{SC}
s_mov_b64 exec, vcc
s_waitcnt lgkmcnt(0)
buffer_store_dwordx4 v[8:11], v3, s[16:19], s53 offen{SC}
""")
    fin()
    a("K1_EXIT:\ns_endpgm")
    a(f"""K1_GEMM:
; GEMM role: B' rows of one bin, weight fragment repack, small constants
s_mul_i32 s40, s2, {BN * 256}
s_sub_u32 s22, {N * 256}, s40
s_min_u32 s22, s22, {BN * 256}
s_mov_b32 s23, {FMT}
s_mov_b32 s26, {258 * 256}
s_mov_b32 s27, {FMT}
v_lshrrev_b32 v3, 4, v2
v_and_b32 v4, 15, v2
v_lshlrev_b32 v5, 1, v3
v_xor_b32 v5, v5, v4
v_lshlrev_b32 v5, 4, v5
v_lshl_or_b32 v5, v3, 8, v5
v_xor_b32 v6, 128, v5
s_and_b32 s41, s3, 3
s_lshl_b32 s41, s41, 2
v_or_b32 v7, s41, v3
v_xor_b32 v7, v7, v4
v_lshlrev_b32 v7, 4, v7
v_lshl_or_b32 v7, v3, 8, v7
s_lshl_b32 s42, s3, 12
s_add_u32 s43, s42, 32768
s_lshl_b32 s44, s3, 10
s_add_u32 s45, s44, 8192
s_mov_b32 m0, s42
s_waitcnt lgkmcnt(0)
s_add_u32 s20, s20, s40
s_addc_u32 s21, s21, 0
buffer_load_dwordx4 v5, s[24:27], s43 offen lds
buffer_load_dwordx4 v5, s[24:27], s43 offen offset:1024 lds
buffer_load_dwordx4 v6, s[24:27], s43 offen offset:2048 lds
buffer_load_dwordx4 v6, s[24:27], s43 offen offset:3072 lds
s_add_u32 m0, s44, 32768
buffer_load_dwordx4 v7, s[20:23], s44 offen lds
s_add_u32 m0, s45, 32768
buffer_load_dwordx4 v7, s[20:23], s45 offen lds
s_cmp_ge_u32 s3, 4
s_cbranch_scc1 K1_REPACK
""")
    TA, HA, AF, BF, AC = 8, 16, 20, 36, 68
    a(f"""v_bfe_u32 v5, v2, 2, 2
v_and_b32 v6, 1, v3
v_lshl_or_b32 v6, v6, 2, v5
v_lshl_or_b32 v5, v3, 3, v5
v_lshlrev_b32 v5, 8, v5
v_lshl_or_b32 v5, v6, 5, v5
v_and_b32 v6, 3, v2
v_lshl_or_b32 v{TA}, v6, 3, v5
""")
    for t in range(1, 8):
        a(f"v_xor_b32 v{TA + t}, {t << 5}, v{TA}")
    a(f"""v_xor_b32 v5, v3, v4
v_lshlrev_b32 v5, 4, v5
v_lshl_or_b32 v5, v4, 8, v5
v_add_u32 v{HA}, s42, v5
""")
    for ks in range(1, 4):
        a(f"v_xor_b32 v{HA + ks}, {ks << 6}, v{HA}")
    a(f"""s_add_u32 s36, s16, {BP_OFF}
s_addc_u32 s37, s17, 0
s_add_u32 s36, s36, s40
s_addc_u32 s37, s37, 0
s_mov_b32 s38, {BN * 256}
s_mov_b32 s39, {FMT}
s_mov_b32 s48, {f32(-LOG2E)}
s_mov_b32 s49, {f32(-LOG2E)}
v_lshlrev_b32 v5, 10, v3
v_lshl_or_b32 v5, v4, 4, v5
""")
    stamp(1)
    a("s_waitcnt vmcnt(0)\ns_barrier")
    stamp(2)
    for ks in range(4):
        a(f"ds_read_b128 {vr(AF + 4 * ks, 4)}, v{HA + ks} offset:32768")
    DEPTH = 4
    jobs = [(ks, t) for ks in range(4) for t in range(8)]

    def rd(j):
        ks, t = jobs[j]
        d = BF + 4 * (j % 8)
        a(f"ds_read_b64_tr_b16 {vr(d, 2)}, v{TA + t} offset:{ks * 8192}")
        a(f"ds_read_b64_tr_b16 {vr(d + 2, 2)}, v{TA + t} offset:{ks * 8192 + 1024}")
    for j in range(DEPTH):
        rd(j)
    for j, (ks, t) in enumerate(jobs):
        if j + DEPTH < 32:
            rd(j + DEPTH)
        left = min(DEPTH, 31 - j)
        a(f"s_waitcnt lgkmcnt({2 * left})")
        c = "0" if ks == 0 else vr(AC + 4 * t, 4)
        a(f"v_mfma_f32_16x16x32_bf16 {vr(AC + 4 * t, 4)}, {vr(AF + 4 * ks, 4)}, {vr(BF + 4 * (j % 8), 4)}, {c}")
    stamp(3)
    for t in range(8):
        for hh in range(2):
            a(f"v_pk_mul_f32 {vr(AC + 4 * t + 2 * hh, 2)}, {vr(AC + 4 * t + 2 * hh, 2)}, s[48:49]")
    for r in range(4):
        for u in range(4):
            a(f"v_cvt_pk_bf16_f32 v{BF + 4 * r + u}, v{AC + 8 * u + r}, v{AC + 8 * u + 4 + r}")
        a(f"buffer_store_dwordx4 {vr(BF + 4 * r, 4)}, v5, s[36:39], s42 offen offset:{256 * r}{SC}")
    fin()
    a("s_endpgm")
    a(f"""K1_REPACK:
s_mov_b32 s30, 65536
s_mov_b32 s31, {FMT}
s_cmp_eq_u32 s3, 7
s_cbranch_scc1 K1_CONST
s_mul_i32 s46, s2, 3
s_add_u32 s46, s46, s3
s_sub_u32 s46, s46, 4
s_bfe_u32 s47, s46, 0x20006
s_bfe_u32 s48, s46, 0x30003
s_bfe_u32 s49, s46, 0x10002
s_bfe_u32 s50, s46, 0x10001
s_and_b32 s51, s46, 1
v_and_b32 v3, 7, v2
v_lshrrev_b32 v4, 3, v2
s_lshl_b32 s52, s48, 1
s_add_u32 s52, s52, s49
s_lshl_b32 s52, s52, 10
s_lshl_b32 s55, s46, 7
s_add_u32 s55, s55, {WF_OFF}
v_lshlrev_b32 v7, 1, v2
s_cmp_ge_u32 s46, 256
s_cbranch_scc1 K1_RP_H
s_lshr_b32 s53, s47, 1
s_lshl_b32 s53, s53, 3
s_and_b32 s54, s47, 1
s_add_u32 s53, s53, s54
s_lshl_b32 s54, s50, 2
s_add_u32 s53, s53, s54
s_lshl_b32 s54, s51, 1
s_add_u32 s53, s53, s54
s_add_u32 s52, s52, s53
s_lshl_b32 s52, s52, 1
v_lshlrev_b32 v5, 8, v3
v_lshl_or_b32 v5, v4, 5, v5
buffer_load_ushort v6, v5, s[24:27], s52 offen
s_branch K1_RP_ST
K1_RP_H:
s_lshl_b32 s53, s47, 5
s_lshl_b32 s54, s51, 4
s_add_u32 s53, s53, s54
s_add_u32 s53, s53, s50
v_lshlrev_b32 v5, 8, v3
s_cmp_ge_u32 s46, 512
s_cbranch_scc0 K1_RP_H1
s_lshr_b32 s52, s48, 2
s_lshl_b32 s52, s52, 2
s_and_b32 s54, s48, 1
s_lshl_b32 s54, s54, 6
s_add_u32 s52, s52, s54
s_lshl_b32 s54, s49, 5
s_add_u32 s52, s52, s54
s_and_b32 s54, s48, 2
s_add_u32 s52, s52, s54
s_add_u32 s52, s52, 128
s_lshl_b32 s52, s52, 7
v_lshrrev_b32 v5, 1, v3
v_lshlrev_b32 v5, 11, v5
v_and_b32 v6, 1, v3
v_lshl_or_b32 v5, v6, 8, v5
K1_RP_H1:
s_add_u32 s52, s52, s53
s_lshl_b32 s52, s52, 1
v_lshl_or_b32 v5, v4, 2, v5
buffer_load_ushort v6, v5, s[28:31], s52 offen
K1_RP_ST:
s_waitcnt vmcnt(0)
s_barrier
buffer_store_short v6, v7, s[16:19], s55 offen{SC}
""")
    fin()
    a(f"""s_endpgm
K1_CONST:
s_load_dwordx2 s[32:33], s[0:1], 48
s_waitcnt vmcnt(0) lgkmcnt(0)
s_barrier
s_cmp_lg_u32 s2, 0
s_cbranch_scc1 K1_EXIT2
s_mov_b32 s34, 256
s_mov_b32 s35, {FMT}
s_mov_b32 s46, 65536
s_mov_b32 s47, {CON_OFF}
v_and_b32 v3, 7, v2
v_lshlrev_b32 v3, 5, v3
v_bfe_u32 v4, v2, 4, 1
v_lshl_or_b32 v3, v4, 3, v3
v_bfe_u32 v4, v2, 3, 1
v_lshl_or_b32 v3, v4, 2, v3
v_lshrrev_b32 v4, 5, v2
v_lshl_or_b32 v4, v4, 1, v3
buffer_load_ushort v8, v4, s[24:27], s46 offen
buffer_load_ushort v9, v4, s[24:27], s46 offen offset:16
buffer_load_ushort v10, v4, s[24:27], s46 offen offset:256
buffer_load_ushort v11, v4, s[24:27], s46 offen offset:272
buffer_load_ushort v12, v3, s[32:35], 0 offen
buffer_load_ushort v13, v3, s[32:35], 0 offen offset:2
buffer_load_ushort v14, v3, s[32:35], 0 offen offset:16
buffer_load_ushort v15, v3, s[32:35], 0 offen offset:18
v_lshlrev_b32 v5, 3, v2
v_and_b32 v6, 31, v2
v_lshlrev_b32 v6, 4, v6
s_waitcnt vmcnt(0)
v_lshl_or_b32 v8, v10, 16, v8
v_lshl_or_b32 v9, v11, 16, v9
""")
    for i in range(4):
        a(f"v_lshlrev_b32 v{12 + i}, 16, v{12 + i}")
        a(f"v_mul_f32 v{12 + i}, {f32(-LN2 * KAPPA)}, v{12 + i}")
    a(f"""buffer_store_dwordx2 v[8:9], v5, s[16:19], s47 offen{SC}
buffer_store_dwordx4 v[12:15], v6, s[16:19], s47 offen offset:512{SC}
K1_EXIT2:
""")
    fin()
    a("s_endpgm")


vACC, vC, vD, vG, vE, vM = 192, 160, 128, 96, 80, 64
vP, vX, vY, vI, vSEL, vWX = 56, 48, 40, 32, 28, 24
vQ = 20
vT, vSRC = 18, 16
vAX, vAS, vAT, vK, vOFF, vL4, vIDX, vLR, vFA = 15, 14, 13, 12, 11, 10, 9, 8, 7
vL = 6


def gen_k2(a, opt):
    sW = 3
    sKP = 24
    sEX = 26
    sMORE, sMODE, sTOT, sBASE, sPR, sRO = 34, 35, 36, 37, 38, 39
    sCUR, sEND, sEVT, sSW, sFL, sP0, sPF, sRES = 40, 41, 42, 43, 44, 45, 46, 47
    sT = 48
    sLF, sC, sNL = 63, 64, 65
    diag = opt.get("diag")
    SO = " " + opt.get("so", "").replace("_", " ") if opt.get("so") else ""
    vCP, vCD = vT, vT + 1
    vPD = vQ

    entry, stamp, dump = diag_tools(a, opt, 12, vL, DBG_OFF, "2")

    def hop1_addr():
        a(f"""v_lshlrev_b32 v1, 10, v{vL}
s_lshl_b32 s{sT}, s{sW}, 15
s_lshl_b32 s{sT + 1}, s2, 2
s_add_u32 s{sT}, s{sT}, s{sT + 1}
s_add_u32 s{sT}, s{sT}, {TAB_OFF}
""")

    def hop1():
        a(f"""s_mov_b32 exec_hi, 0
buffer_load_dword v{vCP}, v1, s[12:15], s{sT} offen
s_mov_b32 exec_hi, -1
""")

    def zero_acc(z):
        for cb in range(4):
            a(f"v_mfma_f32_32x32x16_bf16 {vr(vACC + 16 * cb, 16)}, {vr(z, 4)}, {vr(z, 4)}, 0")

    def pos_dma(j):
        out = []
        if j % 4 == 0:
            out.append(f"s_add_u32 s{sT + 13}, s{sT + 12}, {1024 * j}")
            out.append(f"s_add_u32 m0, s{sT + 13}, {POS}")
        out.append(f"buffer_load_dwordx4 v5, s[8:11], s{sT + 13} offen offset:{1024 * (j % 4)} lds")
        return "\n".join(out)

    def pos_extra(tag):
        a(f"""s_cmp_ge_u32 s{sW}, 2
s_cbranch_scc1 K2_NOEXTRA{tag}
s_lshl_b32 s{sT + 13}, s{sW}, 10
s_add_u32 s{sT + 13}, s{sT + 13}, {72 * 1024}
s_add_u32 m0, s{sT + 13}, {POS}
buffer_load_dwordx4 v5, s[8:11], s{sT + 13} offen lds
K2_NOEXTRA{tag}:
""")

    a(f""".globl {NAME}_kernel
.p2align 8
.type {NAME}_kernel,@function
{NAME}_kernel:
""")
    entry()
    a(f"""s_load_dwordx2 s[12:13], s[0:1], 80
s_load_dwordx2 s[4:5], s[0:1], 0
s_load_dwordx2 s[8:9], s[0:1], 8
s_load_dwordx2 s[20:21], s[0:1], 64
s_setprio 3
s_cmp_ge_u32 s2, {NB}
s_cbranch_scc1 K2_EXIT
v_lshrrev_b32 v1, 6, v0
v_and_b32 v{vL}, 63, v0
s_mov_b32 s14, {WS1_SIZE}
s_mov_b32 s15, {FMT}
v_readfirstlane_b32 s{sW}, v1
""")
    hop1_addr()
    a(f"""s_mul_i32 s{sT + 2}, s2, {BN * 256}
s_sub_u32 s6, {N * 256}, s{sT + 2}
s_min_u32 s6, s6, {BN * 256}
s_mov_b32 s7, {FMT}
v_lshrrev_b32 v3, 4, v{vL}
v_and_b32 v4, 15, v{vL}
s_and_b32 s{sT + 3}, s{sW}, 3
s_lshl_b32 s{sT + 3}, s{sT + 3}, 2
v_or_b32 v2, s{sT + 3}, v3
v_xor_b32 v2, v2, v4
v_lshlrev_b32 v2, 4, v2
v_lshl_or_b32 v2, v3, 8, v2
s_lshl_b32 s{sT + 4}, s{sW}, 10
s_add_u32 s{sT + 5}, s{sT + 4}, 8192
s_lshl_b32 s{sT + 6}, s{sW}, 13
s_add_u32 s{sT + 6}, s{sT + 6}, {WF_OFF}
s_add_u32 s{sT + 7}, s{sT + 6}, 4096
v_lshlrev_b32 v5, 4, v{vL}
s_mov_b32 s10, {N * 6 + 8}
s_mov_b32 s11, {FMT}
s_add_u32 m0, s{sT + 4}, {HST}
s_waitcnt lgkmcnt(0)
""")
    if "probe" in opt:
        stamp(0)
    hop1()
    a(f"""s_setprio 0
s_add_u32 s4, s4, s{sT + 2}
s_addc_u32 s5, s5, 0
buffer_load_dwordx4 v2, s[4:7], s{sT + 4} offen lds
s_cmp_ge_u32 s{sW}, 6
s_cbranch_scc1 K2_JOB67
s_add_u32 m0, s{sT + 5}, {HST}
buffer_load_dwordx4 v2, s[4:7], s{sT + 5} offen lds
K2_JOBRET:
""")
    for ks in range(8):
        a(f"buffer_load_dwordx4 {vr(vG + 4 * ks, 4)}, v5, s[12:15], s{sT + 6 + ks // 4} offen offset:{1024 * (ks % 4)}")
    a(f"""s_add_u32 s16, s12, {BP_OFF}
s_addc_u32 s17, s13, 0
s_or_b32 s17, s17, {256 << 16}
s_mov_b32 s18, {N}
s_mov_b32 s19, {FMT}
s_mov_b32 s{sKP}, {f32(KAPPA / (1 + DELTA))}
s_mov_b32 s{sKP + 1}, {f32(KAPPA / (1 + DELTA))}
s_mov_b32 s{sBASE}, 0
s_mul_i32 s{sRO}, s{sW}, {32 * CS * 8}
s_mov_b32 s{sC}, 256
v_mov_b64 {vr(vSEL, 2)}, 0
v_mov_b64 {vr(vSEL + 2, 2)}, 0
v_add_u32 v1, s{sT + 4}, v5
v_lshlrev_b32 v{vL4}, 2, v{vL}
ds_write_b128 v1, {vr(vSEL, 4)} offset:{TARR}
""")
    zero_acc(vSEL)
    a(f"""v_lshrrev_b32 v1, 5, v{vL}
v_bfe_u32 v2, v{vL}, 1, 1
v_lshlrev_b32 v{vSRC + 1}, 5, v1
v_lshl_or_b32 v{vSRC + 1}, v2, 4, v{vSRC + 1}
v_bfe_u32 v3, v{vL}, 2, 3
v_and_b32 v4, 1, v{vL}
v_lshl_or_b32 v3, v3, 1, v4
v_lshlrev_b32 v{vAS}, 3, v3
v_xor_b32 v2, v2, v1
v_lshl_or_b32 v{vAX}, v2, 24, v{vAS}
v_bfe_u32 v2, v{vL}, 3, 1
v_bfe_u32 v3, v{vL}, 2, 1
v_lshl_or_b32 v3, v2, 2, v3
v_lshl_or_b32 v3, v1, 3, v3
v_lshlrev_b32 v{vAT}, 3, v3
v_bfe_u32 v2, v{vL}, 4, 1
v_and_b32 v3, 3, v{vL}
v_lshl_or_b32 v3, v2, 2, v3
v_add_u32 v3, 24, v3
v_lshlrev_b32 v{vK}, v3, 1
v_mov_b32 v{vIDX}, 0xdddddddd
v_and_b32 v2, 31, v{vL}
v_mul_u32_u24 v3, {RST}, v1
v_lshl_add_u32 v3, v2, 3, v3
v_add_u32 v{vLR}, {ROWS}, v3
v_lshlrev_b32 v3, 3, v1
v_sub_u32 v2, v2, v3
v_lshlrev_b32 v4, 4, v2
v_mov_b32 v0, 0x3f80
v_lshlrev_b32 v4, v4, v0
v_ashrrev_i32 v2, 1, v2
""")
    for u in range(2):
        for q in range(4):
            a(f"v_cmp_eq_u32 s[{sT + 2 * q}:{sT + 2 * q + 1}], {8 * u + q}, v2")
        for q in range(4):
            a(f"v_cndmask_b32 v{vI + 4 * u + q}, 0, v4, s[{sT + 2 * q}:{sT + 2 * q + 1}]")
    for i in range(0, 16, 2):
        a(f"v_mov_b64 {vr(vM + i, 2)}, 0")
    a(f"""v_and_b32 v3, 31, v{vL}
v_and_b32 v4, 15, v{vL}
v_xor_b32 v2, v1, v4
v_lshlrev_b32 v2, 4, v2
v_lshl_or_b32 v{vP}, v3, 8, v2
""")
    for ks in range(1, 8):
        a(f"v_xor_b32 v{vP + ks}, {ks << 5}, v{vP}")
    a(f"""s_cmp_eq_u32 s{sW}, 1
s_cbranch_scc0 K2_NOSEL2
ds_write_b128 v5, {vr(vSEL, 4)} offset:{SEL2}
K2_NOSEL2:
s_cmp_eq_u32 s{sW}, 0
s_cbranch_scc0 K2_NOROWB
v_add_u32 v1, -1, v{vL}
v_lshlrev_b32 v4, 4, v1
v_lshlrev_b32 v4, v4, v0
v_ashrrev_i32 v2, 1, v1
v_mov_b32 v{vE}, 0
""")
    for q in range(3):
        a(f"v_cmp_eq_u32 s[{sT + 2 * q}:{sT + 2 * q + 1}], {q}, v2")
    for q in range(3):
        a(f"v_cndmask_b32 v{vE + 1 + q}, 0, v4, s[{sT + 2 * q}:{sT + 2 * q + 1}]")
    a(f"""ds_write_b128 v5, {vr(vE, 4)} offset:{ROWB}
K2_NOROWB:
""")
    stamp(1)
    a("s_waitcnt vmcnt(10)")
    stamp(2)
    MK = vX
    RQ = vE
    RK = vE + 8
    AD = vE + 12
    a(f"""K2_BATCH:
s_mov_b32 exec_hi, 0
v_lshrrev_b32 v1, 16, v{vCP}
v_and_b32 v{vCD}, 0xffff, v{vCP}
v_mov_b32 v2, v1
s_mov_b32 s{sT}, {CS}
v_mad_u32_u24 v{vCD}, v{vL}, s{sT}, v{vCD}
s_lshl_b32 s{sT}, s{sW}, 10
s_mul_i32 s{sT + 12}, s{sW}, {9 * 1024}
""")
    scan_add(a, [2], n64=False)
    a(f"""v_sub_u32 v1, v2, v1
v_readlane_b32 s{sTOT}, v2, 31
v_sub_u32 v{vCD}, v{vCD}, v1
v_sub_u32_e64 v1, v1, s{sBASE} clamp
v_cmpx_gt_u32 vcc, {RB}, v1
v_lshl_add_u32 v1, v1, 2, s{sT}
ds_max_u32 v1, v{vCD} offset:{TARR}
s_mov_b64 exec, -1
v_add_u32 v1, s{sT}, v{vL4}
""")
    for k in range(4):
        a(f"ds_read_b32 v{MK + k}, v1 offset:{TARR + 256 * k}")
    a(f"s_sub_i32 s{sT + 1}, s{sTOT}, s{sBASE}")
    for k in range(4):
        a(f"v_cmp_gt_i32 s[{sEX + 2 * k}:{sEX + 2 * k + 1}], s{sT + 1}, v{vL}")
        if k < 3:
            a(f"s_sub_i32 s{sT + 1}, s{sT + 1}, 64")
    a(f"""s_lshl_b32 s{sT + 2}, s{sBASE}, 3
s_add_u32 s{sT + 2}, s{sT + 2}, s{sRO}
s_waitcnt lgkmcnt(0)
""")
    scan_add(a, [MK + k for k in range(4)], op="v_max_u32")
    for k in range(3):
        a(f"v_readlane_b32 s{sT + 4 + k}, v{MK + k}, 63")
    a(f"v_add_lshl_u32 v{MK}, v{MK}, v{vL}, 3")
    a(f"buffer_load_dwordx2 {vr(RQ, 2)}, v{MK}, s[12:15], s{sT + 2} offen")
    for k in range(1, 3):
        a(f"s_max_u32 s{sT + 4 + k}, s{sT + 4 + k}, s{sT + 3 + k}")
    for k in range(1, 4):
        a(f"v_max_u32 v{MK + k}, s{sT + 3 + k}, v{MK + k}")
        a(f"v_add_lshl_u32 v{MK + k}, v{MK + k}, v{vL}, 3")
        a(f"buffer_load_dwordx2 {vr(RQ + 2 * k, 2)}, v{MK + k}, s[12:15], s{sT + 2} offen offset:{512 * k}")
    stamp(3)
    a(f"""s_cmp_lg_u32 s{sBASE}, 0
s_cbranch_scc1 K2_SKIPGEMM
""")
    for j in range(3):
        a(pos_dma(j))
    a(f"""s_waitcnt vmcnt(15) lgkmcnt(0)
s_barrier
""")
    stamp(4)
    jobs = [(ks, rho) for ks in range(8) for rho in range(2)]
    DEP = 7

    def rdh(j):
        ks, rho = jobs[j]
        a(f"ds_read_b128 {vr(vD + 4 * (j % 8), 4)}, v{vP + ks} offset:{HST + 8192 * rho}")
    a(f"""v_lshlrev_b32 v1, 1, v{vL4}
v_and_b32 v2, 496, v5
ds_read_b32 v{vY}, v1 offset:{CONL}
ds_read_b32 v{vY + 4}, v1 offset:{CONL + 4}
ds_read_b128 {vr(vWX, 4)}, v2 offset:{CONL + 512}
""")
    for j in range(DEP):
        rdh(j)
    a("s_waitcnt vmcnt(7)")
    for j, (ks, rho) in enumerate(jobs):
        if j + DEP < 16:
            rdh(j + DEP)
        a(f"s_waitcnt lgkmcnt({min(DEP, 15 - j)})")
        c = "0" if ks == 0 else vr(vC + 16 * rho, 16)
        a(f"v_mfma_f32_32x32x16_bf16 {vr(vC + 16 * rho, 16)}, {vr(vD + 4 * (j % 8), 4)}, {vr(vG + 4 * ks, 4)}, {c}")
        if j % 2 == 1 and 3 + j // 2 < 9:
            a(pos_dma(3 + j // 2))
    stamp(5)
    a(f"""s_waitcnt vmcnt(9)
K2_RANK:
v_mov_b32 v0, 1
""")
    for k in range(4):
        a(f"v_and_b32 v{AD + k}, 0xff, v{RQ + 2 * k + 1}")
    for k in range(4):
        a(f"s_mov_b64 exec, s[{sEX + 2 * k}:{sEX + 2 * k + 1}]")
        a(f"ds_add_rtn_u32 v{RK + k}, v{AD + k}, v0 offset:{CNT}")
    a(f"""s_mov_b64 exec, -1
s_lshl_b32 s{sT}, s{sW}, 2
v_mov_b32 v1, s{sT}
v_mov_b32 v2, s{sTOT}
ds_write_b32 v1, v2 offset:{CNT + 224}
s_cmp_lg_u32 s{sBASE}, 0
s_cbranch_scc1 K2_NOY
""")
    pos_extra("A")
    a(f"""s_mov_b32 s{sT}, {f32(-LOG2E)}
s_mov_b32 s{sT + 1}, {f32(-LOG2E)}
""")
    for i in range(0, 28, 2):
        a(f"v_pk_mul_f32 {vr(vC + i, 2)}, {vr(vC + i, 2)}, s[{sT}:{sT + 1}]")
    a(f"""v_mov_b64 {vr(vC + 28, 2)}, 0
v_mov_b64 {vr(vC + 30, 2)}, 0
s_cmp_ge_u32 s{sW}, 4
s_cbranch_scc1 K2_HIY
v_lshrrev_b32 v1, 5, v{vL}
v_and_b32 v2, 124, v{vL4}
v_lshl_or_b32 v2, v1, 10, v2
s_lshl_b32 s{sT + 2}, s{sW}, 7
s_add_u32 s{sT + 2}, s{sT + 2}, {YTAB}
v_add_u32 v2, s{sT + 2}, v2
""")
    for i in range(0, 28, 2):
        rho, r = i // 16, i % 16
        pair = 16 * rho + 4 * (r >> 2) + ((r & 3) >> 1)
        a(f"v_cvt_pk_bf16_f32 v{vD + i // 2}, v{vC + i}, v{vC + i + 1}")
        a(f"ds_write_b32 v2, v{vD + i // 2} offset:{512 * pair}")
    a(f"""K2_NOY:
s_waitcnt lgkmcnt(0)
""")
    stamp(6)
    a(f"""s_barrier
ds_read_b32 v3, v{vL4} offset:{CNT}
v_cmp_gt_u32 vcc, {BN}, v{vL}
s_add_u32 s{sT + 8}, s{sBASE}, {RB}
v_bfrev_b32 v1, -2
s_waitcnt lgkmcnt(0)
v_max_u32 v4, 4, v3
v_cndmask_b32 v4, 0, v4, vcc
v_cmp_lt_u32 s[{sT + 6}:{sT + 7}], s{sT + 8}, v3
v_mov_b32 v2, v4
""")
    scan_add(a, [2])
    a(f"""v_sub_u32 v4, v2, v4
v_readlane_b32 s{sT}, v2, 63
""")
    for k in range(4):
        a(f"ds_bpermute_b32 v{MK + k}, v{AD + k}, v4")
    a(f"""v_cndmask_b32 v{vOFF}, v1, v4, vcc
s_lshr_b32 s{sMORE}, s{sT + 7}, 24
v_mov_b32 v0, 0xff00ffff
v_mov_b32 v1, 252
s_cmp_gt_u32 s{sW}, 4
s_cbranch_scc1 K2_NOPAD
s_cmp_eq_u32 s{sW}, 4
s_cbranch_scc1 K2_TAILPAD
v_add_lshl_u32 v4, v4, s{sW}, 3
s_mov_b64 exec, vcc
v_cmpx_ge_u32 vcc, s{sW}, v3
s_branch K2_DOPAD
K2_TAILPAD:
v_add_lshl_u32 v4, s{sT}, v{vL}, 3
K2_DOPAD:
ds_write_b64 v4, v[0:1] offset:{CREC}
s_mov_b64 exec, -1
K2_NOPAD:
s_add_u32 s{sT}, s{sT}, 15
s_lshr_b32 s{sT}, s{sT}, 4
s_lshr_b32 s{sT + 1}, s{sT}, 3
s_and_b32 s{sT + 2}, s{sT}, 7
s_mul_i32 s{sCUR}, s{sW}, s{sT + 1}
s_min_u32 s{sT + 3}, s{sW}, s{sT + 2}
s_add_u32 s{sCUR}, s{sCUR}, s{sT + 3}
s_add_u32 s{sEND}, s{sCUR}, s{sT + 1}
s_cmp_lt_u32 s{sW}, s{sT + 2}
s_addc_u32 s{sEND}, s{sEND}, 0
s_waitcnt lgkmcnt(0)
""")
    for k in range(4):
        a(f"v_add_lshl_u32 v{MK + k}, v{MK + k}, v{RK + k}, 3")
    for k in range(4):
        a(f"s_mov_b64 exec, s[{sEX + 2 * k}:{sEX + 2 * k + 1}]")
        a(f"ds_write_b64 v{MK + k}, {vr(RQ + 2 * k, 2)} offset:{CREC}")
    a("s_mov_b64 exec, -1")

    def window(first_step_sgpr):
        a(f"""s_lshl_b32 s{sT + 10}, s{first_step_sgpr}, 4
v_cmp_ge_u32 vcc, s{sT + 10}, v{vOFF}
s_bcnt1_i32_b64 s{sT + 9}, vcc
s_sub_u32 s{sT + 9}, s{sT + 9}, 1
s_lshr_b32 s{sP0}, s{sT + 9}, 1
s_lshl_b32 s{sT}, s{sP0}, 1
s_add_u32 s{sT}, s{sT}, 6
v_readlane_b32 s{sSW}, v{vOFF}, s{sT}
s_mul_i32 s{sT}, s{sP0}, 43
s_lshr_b32 s{sT}, s{sT}, 7
s_mul_i32 s{sT}, s{sT}, 3
s_lshr_b32 s{sSW}, s{sSW}, 4
""")

    def load_y():
        for i in range(3):
            a(f"""s_add_u32 s{sT + 4}, s{sT}, {i}
s_cmp_lt_u32 s{sT + 4}, s{sP0}
s_cselect_b32 s{sT + 1}, 3, 0
s_add_u32 s{sT + 4}, s{sT + 4}, s{sT + 1}
s_lshl_b32 s{sT + 4}, s{sT + 4}, 9
v_add_u32 v{1 + i}, s{sT + 4}, v{vL4}
ds_read_b32 v{vY + 1 + i}, v{1 + i} offset:{YTAB}
ds_read_b32 v{vY + 5 + i}, v{1 + i} offset:{YTAB + 256}
""")

    window(sCUR)
    a(f"""s_mov_b32 s{sPF}, s{sP0}
s_sub_u32 s{sRES}, s{sP0}, s{sT}
""")
    load_y()
    a(f"""v_readlane_b32 s{sT + 2}, v{vOFF}, s{sT + 9}
s_lshl_b32 s{sT + 11}, s{sEND}, 4
v_cmp_gt_u32 vcc, s{sT + 11}, v{vOFF}
s_bcnt1_i32_b64 s{sNL}, vcc
s_sub_u32 s{sNL}, s{sNL}, 1
s_mul_i32 s{sT + 3}, s{sP0}, {2 * RST}
s_and_b32 s{sT + 4}, s{sT + 9}, 1
s_add_u32 s{sT + 5}, s{sW}, 56
s_sub_u32 s{sT + 5}, s{sT + 5}, s{sT + 4}
s_mul_i32 s{sT + 5}, s{sT + 5}, {RST}
s_cmp_lt_u32 s{sT + 2}, s{sT + 10}
s_cselect_b32 s{sT + 5}, s{sT + 5}, s{sT + 3}
s_cmp_eq_u32 s{sT + 4}, 0
s_cselect_b32 s{sT + 6}, s{sT + 3}, s{sT + 5}
s_cselect_b32 s{sT + 5}, s{sT + 5}, 0x1000000
v_add_u32 v{vFA}, s{sT + 6}, v{vLR}
s_mov_b32 exec_hi, 0
v_add_u32 v{vFA}, s{sT + 5}, v{vLR}
s_mov_b32 exec_hi, -1
s_lshl_b32 s{sT + 2}, s{sT + 9}, 3
s_add_u32 s{sT + 3}, s{sT + 2}, s{sW}
s_lshl_b32 s{sT + 3}, s{sT + 3}, 1
s_lshl_b32 s{sT + 4}, s{sW}, 2
v_mov_b32 v0, s{sT + 3}
v_mov_b32 v4, 0x3f80
ds_write_b16 v0, v4 offset:{SEL2}
v_mov_b32 v0, s{sT + 4}
v_mov_b32 v4, s{sT + 2}
ds_write_b32 v0, v4 offset:{HEAD}
s_lshl_b32 s{sT + 8}, s{sCUR}, 7
v_lshl_add_u32 v0, v{vL}, 3, s{sT + 8}
s_add_u32 s{sT + 8}, s{sT + 8}, {CREC}
v_add_u32 v{vAX}, s{sT + 8}, v{vAX}
v_add_u32 v{vAS}, s{sT + 8}, v{vAS}
v_add_u32 v{vAT}, s{sT + 8}, v{vAT}
s_mov_b32 s{sFL}, -1
s_sub_u32 s{sEVT}, s{sSW}, 1
s_sub_i32 s{sPR}, s{sEND}, {opt.get('pr', 3)}
s_max_i32 s{sPR}, s{sPR}, s{sCUR}
s_cmp_lt_u32 s{sW}, 4
s_cselect_b32 s{sPR}, s{sPR}, -1
s_min_u32 s{sEVT}, s{sEVT}, s{sPR}
s_sub_u32 s{sT + 11}, s{sT + 11}, s{sT + 10}
s_mov_b32 s{sT + 2}, {f32(KAPPA)}
s_mov_b32 s{sT + 3}, 0xffff0000
s_mov_b32 s{sT + 4}, {POS}
""")
    stamp(7)
    a(f"""s_waitcnt vmcnt(0) lgkmcnt(0)
s_barrier
""")
    stamp(8)
    R2, PP, RA, PA = vD, vD + 8, vD + 16, vE
    a(f"""ds_read_u16 v{vSRC}, v{vAS}
ds_read_u8 v{vX}, v{vAX} offset:2
ds_read_u8 v{vX + 4}, v{vAX} offset:{128 + 2}
ds_read2_b32 {vr(vT, 2)}, v{vAT} offset0:0 offset1:4
s_waitcnt lgkmcnt(3)
""")
    for u in range(4):
        a(f"buffer_load_dwordx4 {vr(vG + 4 * u, 4)}, {vr(vSRC, 2)}, s[16:19], 0 idxen offen offset:{64 * u}")
    a(f"""ds_read_u16 v{vSRC}, v{vAS} offset:128
K2_ST2:
""")
    for k in range(4):
        a(f"ds_read_b64 {vr(R2 + 2 * k, 2)}, v0 offset:{CREC + 512 * k}")
    for k in range(4):
        a(f"v_cmp_gt_i32 s[{sEX + 2 * k}:{sEX + 2 * k + 1}], s{sT + 11}, v{vL}")
        a(f"s_sub_i32 s{sT + 11}, s{sT + 11}, 64")
    a("s_waitcnt lgkmcnt(0)")
    for k in (3, 2, 1, 0):
        a(f"""s_mov_b64 exec, s[{sEX + 2 * k}:{sEX + 2 * k + 1}]
v_mad_u32_u16 v{PA + k}, v{R2 + 2 * k}, 6, s{sT + 4}
v_lshlrev_b32_sdwa v2, 2, v{R2 + 2 * k + 1} dst_sel:DWORD dst_unused:UNUSED_PAD src0_sel:DWORD src1_sel:BYTE_0
v_and_b32 v1, -4, v{PA + k}
ds_read_b128 {vr(RA + 4 * k, 4)}, v2 offset:{ROWA}
ds_read2_b32 {vr(PP + 2 * k, 2)}, v1 offset0:0 offset1:1
""")
    for k in (3, 2, 1, 0):
        p, ra, q = PP + 2 * k, RA + 4 * k, R2 + 2 * k
        a(f"s_mov_b64 exec, s[{sEX + 2 * k}:{sEX + 2 * k + 1}]")
        if k:
            a(f"s_cbranch_execz K2_SKIP{k}")
        a(f"""s_waitcnt lgkmcnt({2 * k})
v_alignbyte_b32 v2, v{p + 1}, v{p}, v{PA + k}
v_alignbyte_b32 v3, v{p + 1}, v{p + 1}, v{PA + k}
v_lshlrev_b32 v1, 16, v2
v_and_b32 v2, s{sT + 3}, v2
v_lshlrev_b32 v3, 16, v3
v_sub_f32 v1, v{ra}, v1
v_sub_f32 v2, v{ra + 1}, v2
v_sub_f32 v3, v{ra + 2}, v3
v_mul_f32 v4, v1, v1
v_cvt_pk_bf16_f32 v{p}, s{sT + 2}, v1
v_fmac_f32 v4, v2, v2
v_cvt_pk_bf16_f32 v{p + 1}, v2, v3
v_fmac_f32 v4, v3, v3
v_mul_f32 v4, {f32(-LOG2E)}, v4
v_cvt_pk_bf16_f32 v{q + 1}, v4, v{q + 1}
ds_write_b64 v0, {vr(p, 2)} offset:{TARR + 512 * k}
ds_write_b32 v0, v{q + 1} offset:{CREC + 512 * k + 4}
""")
        if k:
            a(f"K2_SKIP{k}:")
    a(f"""s_mov_b64 exec, -1
v_add_u32 v0, 2048, v0
s_cmp_gt_i32 s{sT + 11}, 0
s_cbranch_scc1 K2_ST2
""")
    for u in range(4):
        a(f"buffer_load_dwordx4 {vr(vG + 16 + 4 * u, 4)}, {vr(vSRC, 2)}, s[16:19], 0 idxen offen offset:{64 * u}")
    a(f"""ds_read_b128 {vr(vX, 4)}, v{vX} offset:{ROWB}
ds_read_b32 v{vX}, v{vAX} offset:4
ds_read_b128 {vr(vX + 4, 4)}, v{vX + 4} offset:{ROWB}
ds_read_b32 v{vX + 4}, v{vAX} offset:{128 + 4}
ds_read_u16 v{vSRC}, v{vAS} offset:256
s_mul_i32 s{sT}, s{sW}, {RST}
s_add_u32 s{sT}, s{sT}, {ROWS + 56 * RST}
v_lshl_add_u32 v1, v{vL}, 4, s{sT}
""")
    stamp(9)
    a(f"""s_barrier
s_mov_b32 exec_hi, 0xffff
ds_write_b128 v1, {vr(vSEL, 4)}
s_mov_b32 exec_hi, -1
s_setprio {0 if "np" in opt else 1}
s_cmp_lt_u32 s{sW}, 4
s_cbranch_scc0 K2_PRIO
s_setprio {0 if "np" in opt else 2}
K2_PRIO:
s_waitcnt vmcnt(4) lgkmcnt(0)
""")

    def pre(d, g, x, tau):
        return [
            f"v_mfma_f32_32x32x16_bf16 {vr(d, 16)}, {vr(g + 8 * tau, 4)}, {vr(vI, 4)}, 0",
            f"v_mfma_f32_32x32x16_bf16 {vr(d, 16)}, {vr(g + 8 * tau + 4, 4)}, {vr(vI + 4, 4)}, {vr(d, 16)}",
            f"v_mfma_f32_32x32x16_bf16 {vr(d, 16)}, {vr(x, 4)}, {vr(vY + 4 * tau, 4)}, {vr(d, 16)}",
        ]

    def seg(tau):
        return [f"v_smfmac_f32_32x32x32_bf16 {vr(vACC + 16 * (2 * tau + s), 16)}, {vr(vSEL, 4)}, {vr(vM + 8 * s, 8)}, v{vIDX}"
                for s in range(2)]

    for m in pre(vD, vG, vX, 0):
        a(m)

    ab = opt.get("ab", "")

    def tile(d, mp, ms, mid, extra):
        if "p" in ab:
            mp = ["s_nop 0\ns_nop 0"] * 3
        if "i" in ab:
            mp = ["s_nop 0\ns_nop 0"] * 2 + [mp[2].rsplit(",", 1)[0] + ", 0"]
        if "s" in ab:
            ms = ["s_nop 0\ns_nop 0"] * 2
        for r in range(16):
            if r in (0, 3, 6):
                a(mp[r // 3])
            if r == 9:
                if mid:
                    a("s_waitcnt lgkmcnt(0)")
                a(ms[0])
                for x in mid:
                    a(x)
            wide = "_e64" if (r in (2, 5) or (r == 8 and not mid) or r == 15) else ""
            a(f"v_exp_f32{wide} v{vE + r}, v{d + r}")
        for g in range(0, 16, 2):
            a(f"v_pk_fma_f32 {vr(vE + g, 2)}, {vr(vE + g, 2)}, s[{sKP}:{sKP + 1}], s[{sKP}:{sKP + 1}] clamp")
        for g in range(4):
            a(f"v_pk_mul_f32 {vr(vP + 2 * g, 2)}, {vr(vE + 4 * g, 2)}, {vr(vE + 4 * g + 2, 2)}")
        for g in range(2):
            a(f"v_pk_mul_f32 {vr(vQ + 2 * g, 2)}, {vr(vP + 4 * g, 2)}, {vr(vP + 4 * g + 2, 2)}")
        for g in range(4):
            a(f"v_pk_mul_f32 {vr(vE + 4 * g + 2, 2)}, {vr(d + 4 * g, 2)}, {vr(vE + 4 * g + 2, 2)}")
            a(f"v_pk_mul_f32 {vr(vE + 4 * g, 2)}, {vr(vE + 4 * g, 2)}, {vr(d + 4 * g + 2, 2)}")
        a(ms[1])
        for r in range(4):
            a(f"v_rcp_f32 v{vQ + r}, v{vQ + r}")
        for x in extra:
            a(x)
        for g in range(4):
            a(f"v_pk_mul_f32 {vr(vP + 2 * g, 2)}, {vr(vP + 2 * g, 2)}, {vr(vQ + 2 * (g // 2), 2)}")
        for g in range(4):
            o = vP + 2 * (g ^ 1)
            a(f"v_pk_mul_f32 {vr(vM + 2 * g, 2)}, {vr(vE + 4 * g + 2, 2)}, {vr(o, 2)}")
            a(f"v_pk_mul_f32 {vr(vM + 8 + 2 * g, 2)}, {vr(vE + 4 * g, 2)}, {vr(o, 2)}")

    TOFF = TARR - CREC

    def step(par):
        g, x = vG + 16 * par, vX + 4 * par
        gn, xn = vG + 16 * (1 - par), vX + 4 * (1 - par)
        ex = [f"v_and_or_b32 v{vT + i}, v{vT + i}, v{vK}, v{vAT}" for i in range(2)]
        tile(vD, pre(vD + 16, g, x, 1), seg(1), [], ex)
        for u in range(0 if "g" in ab else 4):
            a(f"buffer_load_dwordx4 {vr(g + 4 * u, 4)}, {vr(vSRC, 2)}, s[16:19], 0 idxen offen offset:{64 * u}")
        a(f"""ds_read_b64_tr_b16 {vr(vSEL, 2)}, v{vT} offset:{TOFF + 128 * par}
ds_read_b64_tr_b16 {vr(vSEL + 2, 2)}, v{vT + 1} offset:{TOFF + 128 * par + 16}
ds_read_u8 v{x}, v{vAX} offset:{256 + 128 * par + 2}
ds_read2_b32 {vr(vT, 2)}, v{vAT} offset0:{32 * par + 32} offset1:{32 * par + 36}
ds_read_u16 v{vSRC}, v{vAS} offset:{384 + 128 * par}
s_cmp_eq_u32 s{sCUR}, s{sEVT}
s_cbranch_scc1 K2_EVT{par}
K2_RET{par}:
s_add_u32 s{sCUR}, s{sCUR}, 1
s_waitcnt vmcnt(4) lgkmcnt(5)
""")
        mid = [f"ds_read_b128 {vr(x, 4)}, v{x} offset:{ROWB}", f"ds_read_b32 v{x}, v{vAX} offset:{256 + 128 * par + 4}"]
        if "tl" in opt:
            a(f"s_memtime s[66:67]\ns_sub_u32 m0, s{sEND}, s{sCUR}\ns_nop 0")
            mid.append(f"v_writelane_b32 v{vC + 27}, s66, m0")
        ex = []
        if par == 1:
            ex = [f"v_add_u32 v{vAX}, s{sC}, v{vAX}", f"v_add_u32 v{vAS}, s{sC}, v{vAS}", f"v_add_u32_e64 v{vAT}, s{sC}, v{vAT}"]
        tile(vD + 16, pre(vD, gn, xn, 0), seg(0), mid, ex)
        a(f"s_cmp_lt_u32 s{sCUR}, s{sEND}")
        a("s_cbranch_scc0 K2_DONE" if par == 0 else "s_cbranch_scc1 K2_LOOP")

    stamp(10)
    if "tl" in opt:
        a(f"v_mov_b32 v{vC + 27}, 0")
    a(f"""s_nop 11
.p2align 3
K2_LOOP:
""")
    step(0)
    step(1)
    a("K2_DONE:")
    stamp(11)
    if "tl" in opt:
        a(f"""s_add_u32 s88, s12, {DBG_OFF + (2 << 20)}
s_addc_u32 s89, s13, 0
s_mov_b32 s90, {1 << 20}
s_mov_b32 s91, {FMT}
s_lshl_b32 s66, s2, 3
s_add_u32 s66, s66, s3
s_lshl_b32 s66, s66, 8
buffer_store_dword v{vC + 27}, v{vL4}, s[88:91], s66 offen
""")
    for m in seg(1):
        a(m)
    a(f"""s_lshl_b32 s{sT + 8}, s{sW}, 13
s_add_u32 s{sT + 8}, s{sT + 8}, {WF_OFF + 32768}
s_add_u32 s{sT + 9}, s{sT + 8}, 4096
v_lshlrev_b32 v5, 4, v{vL}
s_mov_b32 s{sMODE}, 2
s_lshr_b32 s{sLF}, s{sNL}, 1
s_cmp_lt_u32 s{sW}, 4
s_cbranch_scc1 K2_FLUSH
""")
    for ks in range(8):
        a(f"buffer_load_dwordx4 {vr(vG + 4 * ks, 4)}, v5, s[12:15], s{sT + 8 + ks // 4} offen offset:{1024 * (ks % 4)}")
    a(f"""K2_FLUSH:
s_cmp_eq_u32 s{sRES}, 1
s_cbranch_scc1 K2_FL1
s_cmp_eq_u32 s{sRES}, 2
s_cbranch_scc1 K2_FL2
""")
    for i in range(3):
        r = lambda cb, c=0: vACC + 16 * cb + 4 * i + c
        a(f"""K2_FL{i}:
s_lshl_b32 s{sT}, s{sPF}, 1
s_cmp_eq_u32 s{sT}, s{sNL}
s_cselect_b32 exec_hi, 0, -1
s_add_u32 s{sPF}, s{sPF}, 1
s_mul_i32 s{sT}, s{sPF}, {2 * RST}
s_mov_b32 s{sRES}, {(i + 1) % 3}
v_pk_mul_f32 v[2:3], {vr(r(0), 2)}, {vr(vWX, 2)} op_sel:[0,0] op_sel_hi:[1,0]
v_pk_mul_f32 v[4:5], {vr(r(0, 2), 2)}, {vr(vWX, 2)} op_sel:[0,0] op_sel_hi:[1,0]
v_cvt_pk_bf16_f32 v0, v{r(0)}, v{r(1)}
""")
        for cb in range(1, 4):
            o = cb & 1
            for h in range(2):
                a(f"v_pk_fma_f32 v[{2 + 2 * h}:{3 + 2 * h}], {vr(r(cb, 2 * h), 2)}, {vr(vWX + (cb & 2), 2)}, v[{2 + 2 * h}:{3 + 2 * h}] "
                  f"op_sel:[0,{o},0] op_sel_hi:[1,{o},1]")
        a(f"""v_cvt_pk_bf16_f32 v1, v{r(2)}, v{r(3)}
ds_write2_b64 v{vFA}, v[2:3], v[4:5] offset0:32 offset1:64
ds_write_b64 v{vFA}, v[0:1]
v_add_u32 v{vFA}, s{sT}, v{vLR}
s_cmp_eq_u32 s{sMODE}, 2
s_cbranch_scc1 K2_FLZ{i}
""")
        for cb in range(4):
            for h in range(2):
                a(f"v_mov_b64 {vr(r(cb, 2 * h), 2)}, 0")
        a(f"""K2_FLZ{i}:
s_cmp_le_i32 s{sPF}, s{sLF}
""")
        a("s_cbranch_scc0 K2_FLEND" if i < 2 else "s_cbranch_scc1 K2_FL0")
    a(f"""K2_FLEND:
s_cmp_lg_u32 s{sMODE}, 2
s_cbranch_scc1 K2_EVA
s_mov_b32 exec_hi, -1
s_cmp_lt_u32 s{sW}, 4
s_cbranch_scc1 K2_POS
""")
    S2, TB = vE, vE + 8
    NP = 13
    hx = {0: vAX, 2: vAT, 8: vK, 10: vOFF}
    rows = []
    for p in range(NP):
        rho, r = (2 * p) // 16, (2 * p) % 16
        rows.append(32 * rho + 8 * (r >> 2) + (r & 3))
    a(f"""v_and_b32 v1, 31, v{vL}
v_lshrrev_b32 v2, 5, v{vL}
v_lshlrev_b32 v3, 4, v1
v_lshl_or_b32 v3, v2, 3, v3
ds_read_b64 {vr(S2, 2)}, v3 offset:{SEL2}
ds_read_b64 {vr(S2 + 4, 2)}, v3 offset:{SEL2 + 512}
v_mul_u32_u24 v1, {RST}, v1
v_lshl_add_u32 v1, v2, 4, v1
v_add_u32 v1, {ROWS}, v1
v_mov_b64 {vr(S2 + 2, 2)}, 0
v_mov_b64 {vr(S2 + 6, 2)}, 0
v_mov_b64 {vr(TB + 2, 2)}, 0
""")
    stamp(12)
    a(f"""s_waitcnt lgkmcnt(0)
s_barrier
""")
    stamp(13)
    jobs = [(rho, ks) for rho in (1, 0) for ks in range(8)]
    for j, (rho, ks) in enumerate(jobs[:15]):
        a(f"ds_read_b128 {vr(vACC + 4 * j, 4)}, v1 offset:{rho * 32 * RST + ks * 32}")
    a("s_waitcnt vmcnt(0)")

    def mm(j):
        rho, ks = jobs[j]
        if j == 0:
            a("s_waitcnt lgkmcnt(14)")
            a(f"ds_read_b128 {vr(vACC + 60, 4)}, v1 offset:{7 * 32}")
        else:
            a(f"s_waitcnt lgkmcnt({15 - j})")
        a(f"v_mfma_f32_32x32x16_bf16 {vr(vC + 16 * rho, 16)}, {vr(vACC + 4 * j, 4)}, {vr(vG + 4 * ks, 4)}, {vr(vC + 16 * rho, 16)}")
    for j in range(10):
        mm(j)
    a(f"""v_cvt_pk_bf16_f32 v{TB}, v{vC + 28}, v{vC + 29}
v_cvt_pk_bf16_f32 v{TB + 1}, v{vC + 30}, v{vC + 31}
""")
    mm(10)
    a(f"v_mfma_f32_32x32x16_bf16 {vr(vC + 16, 16)}, {vr(S2 + 4, 4)}, {vr(TB, 4)}, {vr(vC + 16, 16)}")
    for j in range(11, 16):
        mm(j)
    a(f"v_mfma_f32_32x32x16_bf16 {vr(vC, 16)}, {vr(S2, 4)}, {vr(TB, 4)}, {vr(vC, 16)}")
    a(f"""s_cmp_lg_u32 s{sMORE}, 0
s_cbranch_scc1 K2_MORE
s_mul_i32 s{sT}, s2, {BN * 256}
s_add_u32 s20, s20, s{sT}
s_addc_u32 s21, s21, 0
s_mov_b32 s22, s6
s_mov_b32 s23, {FMT}
s_sub_u32 s{sT + 1}, s{sW}, 4
s_lshl_b32 s{sT + 2}, s{sT + 1}, 6
s_lshl_b32 s{sT + 3}, s{sT + 1}, 2
v_bfe_u32 v3, v{vL}, 4, 1
v_lshl_or_b32 v3, v2, 2, v3
v_and_b32 v4, 15, v{vL}
v_lshlrev_b32 v5, 8, v3
v_lshl_or_b32 v{vAS}, v4, 2, v5
v_add_u32 v{vAS}, s{sT + 2}, v{vAS}
v_lshrrev_b32 v4, 2, v4
v_or_b32 v4, s{sT + 3}, v4
v_xor_b32 v4, v4, v3
v_lshl_or_b32 v5, v4, 4, v5
v_and_b32 v4, 3, v{vL}
v_lshl_or_b32 v{vAX}, v4, 2, v5
v_xor_b32 v{vAT}, 32, v{vAX}
v_xor_b32 v{vK}, 128, v{vAX}
v_xor_b32 v{vOFF}, 160, v{vAX}
""")
    stamp(14)
    for p in range(NP):
        a(f"ds_read_b32 v{vX + p}, v{hx[rows[p] & 15]} offset:{HST + rows[p] * 256}")
    a(f"""s_mov_b32 s{sT}, {f32(-LN2)}
s_mov_b32 s{sT + 1}, {f32(-LN2)}
s_mov_b32 s{sT + 2}, 0xffff0000
s_mov_b32 s{sT + 4}, 0
s_mov_b32 s{sT + 5}, 4096
s_mov_b32 s{sT + 6}, 8192
s_mov_b32 s{sT + 7}, 12288
""")
    first = True
    for ps in ([8, 9, 10, 11, 12], [0, 1, 2, 3], [4, 5, 6, 7]):
        for p in ps:
            a(f"v_permlane16_swap_b32 v{vC + 2 * p}, v{vC + 2 * p + 1}")
        for p in ps:
            for i in range(2):
                a(f"v_exp_f32 v{vD + 2 * p + i}, v{vC + 2 * p + i}")
        if first:
            a("s_waitcnt lgkmcnt(0)")
            first = False
        for p in ps:
            a(f"v_pk_add_f32 {vr(vD + 2 * p, 2)}, {vr(vD + 2 * p, 2)}, 1.0 op_sel_hi:[1,0]")
        for p in ps:
            for i in range(2):
                a(f"v_rcp_f32 v{vD + 2 * p + i}, v{vD + 2 * p + i}")
        for p in ps:
            a(f"v_lshlrev_b32 v{vG + 2 * p}, 16, v{vX + p}")
            a(f"v_and_b32 v{vG + 2 * p + 1}, s{sT + 2}, v{vX + p}")
        for p in ps:
            a(f"v_pk_mul_f32 {vr(vD + 2 * p, 2)}, {vr(vD + 2 * p, 2)}, {vr(vC + 2 * p, 2)}")
        for p in ps:
            a(f"v_pk_fma_f32 {vr(vD + 2 * p, 2)}, {vr(vD + 2 * p, 2)}, s[{sT}:{sT + 1}], {vr(vG + 2 * p, 2)}")
        for p in ps:
            a(f"v_cvt_pk_bf16_f32 v{vX + p}, v{vD + 2 * p}, v{vD + 2 * p + 1}")
        for p in ps:
            o = rows[p] * 256
            a(f"buffer_store_dword v{vX + p}, v{vAS}, s[20:23], s{sT + 4 + o // 4096} offen offset:{o % 4096}{SO}")
    dump()
    a("""K2_EXIT:
s_endpgm
""")
    a(f"""K2_POS:
s_lshl_b32 s{sT}, s{sW}, 8
s_add_u32 s{sT}, s{sT}, {ROWS + 256}
v_mul_u32_u24 v1, {RST}, v{vL}
v_add_u32 v1, s{sT}, v1
s_lshl_b32 s{sT + 1}, s{sW}, 9
v_lshl_add_u32 v2, v{vL}, 3, s{sT + 1}
ds_read_b32 v3, v{vL4} offset:{HEAD - 224}
""")
    stamp(12)
    a(f"""s_waitcnt lgkmcnt(0)
s_barrier
""")
    stamp(13)
    a(f"""s_cmp_ge_u32 s{sW}, 2
s_cbranch_scc1 K2_POSEND
""")
    for i in range(16):
        if i == 15:
            a("s_waitcnt lgkmcnt(14)")
        a(f"ds_read_b128 {vr(vACC + 4 * i, 4)}, v1 offset:{16 * i}")
    a(f"v_add_u32 v3, s{sT + 1}, v3")
    for i in range(8):
        a(f"s_waitcnt lgkmcnt({14 - 2 * i})")
        for h in range(2):
            a(f"v_pk_add_f32 {vr(vACC + 8 * i + 2 * h, 2)}, {vr(vACC + 8 * i + 2 * h, 2)}, {vr(vACC + 8 * i + 4 + 2 * h, 2)}")
    w = 32
    while w >= 8:
        for i in range(0, w, 8):
            for h in range(2):
                a(f"v_pk_add_f32 {vr(vACC + i + 2 * h, 2)}, {vr(vACC + i + 2 * h, 2)}, {vr(vACC + w + i + 2 * h, 2)}")
        w //= 2
    a(f"""v_pk_add_f32 {vr(vACC, 2)}, {vr(vACC, 2)}, {vr(vACC + 2, 2)}
v_pk_add_f32 {vr(vC + 28, 2)}, {vr(vC + 28, 2)}, {vr(vACC, 2)}
ds_write_b64 v2, {vr(vC + 28, 2)} offset:{PS}
s_mov_b32 exec_lo, 0
s_mov_b32 exec_hi, 0xff000000
ds_add_f32 v3, v{vACC} offset:{PS}
ds_add_f32 v3, v{vACC + 1} offset:{PS + 4}
s_mov_b64 exec, -1
ds_read_b64 {vr(vC + 28, 2)}, v2 offset:{PS}
v_lshlrev_b32 v4, 2, v{vL4}
s_lshl_b32 s{sT + 1}, s{sW}, 3
v_add_u32 v4, s{sT + 1}, v4
ds_read_b32 v0, v4 offset:{ROWA - 4}
ds_read_b32 v1, v4 offset:{ROWA}
s_cmp_lg_u32 s{sMORE}, 0
s_cbranch_scc1 K2_MORE
s_mul_i32 s{sT}, s2, {BN * 6}
s_sub_u32 s22, {N * 6}, s{sT}
s_min_u32 s22, s22, {BN * 6}
s_add_u32 s{sT}, s{sT}, {N * 256}
s_add_u32 s20, s20, s{sT}
s_addc_u32 s21, s21, 0
s_mov_b32 s23, {FMT}
v_mul_u32_u24 v5, 6, v{vL}
v_cmp_gt_u32 vcc, s22, v5
s_add_u32 s22, s22, 2
s_lshl_b32 s{sT + 1}, s{sW}, 2
s_waitcnt lgkmcnt(0)
v_pk_add_f32 v[0:1], v[0:1], {vr(vC + 28, 2)}
v_cvt_pk_bf16_f32 v4, v0, v1
s_mov_b64 exec, vcc
buffer_store_short_d16_hi v4, v5, s[20:23], s{sT + 1} offen
s_cmp_eq_u32 s{sW}, 0
s_cbranch_scc1 K2_EXIT2
buffer_store_short v4, v5, s[20:23], 0 offen offset:2
s_branch K2_EXIT2
K2_POSEND:
s_cmp_lg_u32 s{sMORE}, 0
s_cbranch_scc1 K2_MORE
K2_EXIT2:
""")
    dump()
    a("s_endpgm")
    a(f"""K2_JOB67:
s_cmp_eq_u32 s{sW}, 7
s_cbranch_scc1 K2_JOB7
s_mov_b32 m0, {CONL}
s_mov_b32 s{sT + 8}, {CON_OFF}
buffer_load_dwordx4 v5, s[12:15], s{sT + 8} offen lds
s_branch K2_JOBRET
K2_JOB7:
s_mul_i32 s{sT + 8}, s2, {BN * 6}
v_mul_u32_u24 v1, 6, v{vL}
v_mov_b64 {vr(vPD, 2)}, 0
s_mov_b32 exec_hi, {(1 << (BN - 32)) - 1}
buffer_load_dwordx2 {vr(vPD, 2)}, v1, s[8:11], s{sT + 8} offen
s_mov_b32 exec_hi, -1
s_branch K2_JOBRET
K2_HIY:
s_cmp_eq_u32 s{sW}, 7
s_cbranch_scc0 K2_NOY
v_lshlrev_b32 v2, 16, v{vPD}
v_and_b32 v3, 0xffff0000, v{vPD}
v_lshlrev_b32 v4, 16, v{vPD + 1}
ds_write_b96 v5, v[2:4] offset:{ROWA}
s_branch K2_NOY
K2_SKIPGEMM:
s_waitcnt vmcnt(0) lgkmcnt(0)
s_barrier
s_branch K2_RANK
""")
    a(f"""K2_MORE:
s_waitcnt vmcnt(0) lgkmcnt(0)
s_barrier
s_setprio 0
s_add_u32 s{sBASE}, s{sBASE}, {RB}
v_and_b32 v{vAS}, 0x7f, v{vAS}
v_and_b32 v{vAX}, 0x0100007f, v{vAX}
v_and_b32 v{vAT}, 0x7f, v{vAT}
v_mov_b64 {vr(vSEL, 2)}, 0
v_mov_b64 {vr(vSEL + 2, 2)}, 0
v_lshlrev_b32 v5, 4, v{vL}
s_cmp_lt_u32 s{sW}, 4
s_cbranch_scc1 K2_KEEP
v_mov_b64 {vr(vC + 28, 2)}, 0
v_mov_b64 {vr(vC + 30, 2)}, 0
K2_KEEP:
""")
    hop1_addr()
    hop1()
    a(f"s_mul_i32 s{sT + 12}, s{sW}, {9 * 1024}")
    for j in range(9):
        a(pos_dma(j))
    pos_extra("B")
    a(f"""s_lshl_b32 s{sT}, s{sW}, 10
v_add_u32 v1, s{sT}, v5
ds_write_b128 v1, {vr(vSEL, 4)} offset:{TARR}
ds_write_b128 v5, {vr(vSEL, 4)} offset:{SEL2}
ds_write_b32 v{vL4}, v{vSEL} offset:{CNT}
""")
    zero_acc(vSEL)
    a(f"""s_waitcnt vmcnt(0)
s_branch K2_BATCH
""")
    a(f"""K2_EVT0:
s_mov_b32 s{sMODE}, 0
s_branch K2_EVT
K2_EVT1:
s_mov_b32 s{sMODE}, 1
K2_EVT:
s_cmp_lg_u32 s{sPR}, s{sCUR}
s_cbranch_scc1 K2_EVP
s_setprio 0
s_mov_b32 s{sPR}, -1
K2_EVP:
s_cmp_lg_u32 s{sFL}, s{sCUR}
s_cbranch_scc1 K2_EVA
s_mov_b32 s{sFL}, -1
s_sub_u32 s{sLF}, s{sP0}, 1
s_branch K2_FLUSH
K2_EVA:
s_sub_u32 s{sEVT}, s{sSW}, 1
s_cmp_lg_u32 s{sEVT}, s{sCUR}
s_cbranch_scc1 K2_EVB
s_mov_b32 s{sFL}, s{sSW}
s_mov_b32 s{sEVT}, s{sSW}
""")
    window(sFL)
    load_y()
    a(f"""s_waitcnt lgkmcnt(0)
K2_EVB:
s_min_u32 s{sEVT}, s{sEVT}, s{sPR}
s_cmp_eq_u32 s{sMODE}, 0
s_cbranch_scc1 K2_RET0
s_branch K2_RET1
K2_END:
""")


def kd(name, vgpr, sgpr=96):
    return f""".amdhsa_kernel {name}
  .amdhsa_next_free_vgpr {vgpr}
  .amdhsa_next_free_sgpr {sgpr}
  .amdhsa_accum_offset {(vgpr + 3) // 4 * 4}
  .amdhsa_group_segment_fixed_size 0
  .amdhsa_kernarg_size 88
  .amdhsa_user_sgpr_count 2
  .amdhsa_user_sgpr_kernarg_segment_ptr 1
  .amdhsa_system_sgpr_workgroup_id_x 1
.end_amdhsa_kernel
"""


def build(opt=None, verbose=False):
    opt = opt or {}
    ref = open(f"cdna_kernels/{NAME}.s.ref").read().split("\n")
    head = [l for l in ref if l.startswith(";") and "@launch" not in l and "Override" not in l and "grid=ceil" not in l]
    e = ref.index('.amdgcn_target "amdgcn-amd-amdhsa--gfx950"')
    head = [l for l in ref[:e] if "@launch" not in l and "Override" not in l and "grid=ceil" not in l]
    head.append(f"; @launch kernel=k1_kernel grid=({NB + NCH},1,1) block=(512,1,1) lds={K1_LDS}")
    head.append(f"; @launch kernel={NAME}_kernel grid=({NB},1,1) block=(512,1,1) lds={K2_LDS}")
    if "empty" in opt:
        head.insert(len(head) - 2 + int(opt["empty"]), "; @launch kernel=e_kernel grid=(256,1,1) block=(64,1,1) lds=0")
    a1, a2 = Asm(), Asm()
    gen_k1(a1, opt)
    gen_k2(a2, opt)
    n1 = a1.fix_hazards(verbose)
    n2 = a2.fix_hazards(verbose)
    s = "\n".join(head) + '\n.amdgcn_target "amdgcn-amd-amdhsa--gfx950"\n.text\n'
    s += a1.text() + a2.text()
    if "empty" in opt:
        s += ".globl e_kernel\n.p2align 8\n.type e_kernel,@function\ne_kernel:\n    s_endpgm\n"
    s += '.section .rodata,"a"\n.p2align 6\n' + kd("k1_kernel", 104) + ".p2align 6\n" + kd(NAME + "_kernel", 256)
    if "empty" in opt:
        s += ".p2align 6\n" + kd("e_kernel", 8)
    return s


if __name__ == "__main__":
    out = sys.argv[1] if len(sys.argv) > 1 else f"cdna_kernels/{NAME}.s"
    opt = dict(kv.split("=") for kv in sys.argv[2:])
    open(out, "w").write(build(opt, verbose="v" in opt))
    print("written", out)
```

```python
import sys, struct, math
sys.path.insert(0, "work")
from asmlib import Asm, vr, sr

NAME = "standalone__cheap_equivariant_egnn__graph"
N, E = 12500, 400000
NB, BN = 256, 49
CH, NCH, CS = 1564, 256, 1568
WF_OFF = NCH * CS * 8
CON_OFF = WF_OFF + 98304
TAB_OFF = CON_OFF + 1024
WS1_SIZE = TAB_OFF + NCH * 1024 + 4096
BP_OFF = 4 << 20
DBG_OFF = 16 << 20
FMT = 0x00020000


def f32(x):
    return struct.unpack("<I", struct.pack("<f", x))[0]


LOG2E = 1.4426950408889634
LN2 = 0.6931471805599453
KAPPA = 2.0 ** -31
DELTA = 2.0 ** -8 * 0.70
K1_LDS = 49152

RB = 256
ROWB = 0
CNT = 256
HEAD = 512
ROWA = 1024
SEL2 = 2048
PS = 3072
CONL = 4096
CREC = 5120
TARR = CREC + 18432
HST = TARR + 18432
YTAB = HST + 14336
POS = YTAB + 14336
ROWS = POS
RST = 784
K2_LDS = POS + 74 * 1024


def scan_add(a, v, n64=True, op="v_add_u32"):
    for sh in (1, 2, 4, 8):
        for r in v:
            a(f"{op}_dpp v{r}, v{r}, v{r} row_shr:{sh} row_mask:0xf bank_mask:0xf bound_ctrl:1")
    for r in v:
        a(f"{op}_dpp v{r}, v{r}, v{r} row_bcast:15 row_mask:0xa bank_mask:0xf")
    if n64:
        for r in v:
            a(f"{op}_dpp v{r}, v{r}, v{r} row_bcast:31 row_mask:0xc bank_mask:0xf")


def diag_tools(a, opt, ws, lane, off, kern):
    diag = opt.get("diag")
    only = [int(x) for x in opt["st"].split(",")] if "st" in opt else None

    clk = "s_memrealtime" if "rt" in opt else "s_memtime"
    probe = opt["probe"].split(",") if "probe" in opt else None

    def entry():
        if diag:
            a(f"s_memrealtime s[86:87]\n{clk} s[70:71]")
        if probe and kern == "1":
            a("s_memrealtime s[86:87]")

    def stamp(i):
        if probe and kern == "1" and i == 1 and probe[0] == "2":
            a.nsave = getattr(a, "nsave", 0) + 1
            a(f"""s_cmp_eq_u32 s2, 0
s_cbranch_scc0 PSAVE{a.nsave}
v_mov_b32 v60, s86
v_mov_b32 v61, 0
s_mov_b32 s88, {WS1_SIZE - 4096}
buffer_store_dword v60, v61, s[16:19], s88 offen
PSAVE{a.nsave}:
""")
        if probe and probe[0] == kern and int(probe[1]) == i:
            a.nprobe = getattr(a, "nprobe", 0) + 1
            if kern == "2":
                a(f"""s_add_u32 s88, s12, {WS1_SIZE - 4096}
s_addc_u32 s89, s13, 0
s_load_dword s86, s[88:89], 0
""")
            a(f"""PROBE{kern}_{a.nprobe}:
s_memrealtime s[66:67]
s_waitcnt lgkmcnt(0)
s_sub_u32 s66, s66, s86
s_cmp_lt_u32 s66, {probe[2]}
s_cbranch_scc1 PROBE{kern}_{a.nprobe}
""")
        if diag and (only is None or i in only or i == 15):
            a(f"""{clk} s[66:67]
s_waitcnt lgkmcnt(0)
s_mov_b32 s{70 + i}, s66
""")
            if "both" in opt and i in (10, 11):
                a(f"""s_memrealtime s[66:67]
s_waitcnt lgkmcnt(0)
s_mov_b32 s{68 + i}, s66
""")

    def dump():
        stamp(15)
        if not diag:
            return
        a(f"""s_memrealtime s[66:67]
s_waitcnt lgkmcnt(0)
s_mov_b32 s87, s66
s_mov_b64 exec, -1
s_add_u32 s88, s{ws}, {off}
s_addc_u32 s89, s{ws + 1}, 0
s_mov_b32 s90, {1 << 20}
s_mov_b32 s91, {FMT}
s_lshl_b32 s66, s2, 3
s_add_u32 s66, s66, s3
s_lshl_b32 s66, s66, 7
v_mov_b32 v1, 0
""")
        for i in range(18):
            a(f"v_writelane_b32 v1, s{70 + i}, {i}")
        a(f"""v_lshlrev_b32 v2, 2, v{lane}
s_mov_b64 exec, 0x3ffff
buffer_store_dword v1, v2, s[88:91], s66 offen
""")
    return entry, stamp, dump


def gen_k1(a, opt):
    entry, stamp, dump = diag_tools(a, {k: v for k, v in opt.items() if k != "st"}, 16, 2, DBG_OFF + (1 << 20), "1")

    SC = " " + opt.get("sc", "sc1").replace("_", " ")

    def fin():
        if opt.get("diag"):
            stamp(5)
            a("s_waitcnt vmcnt(0)")
            dump()
    a(""".globl k1_kernel
.p2align 8
.type k1_kernel,@function
k1_kernel:
""")
    entry()
    a(f"""s_load_dwordx2 s[4:5], s[0:1], 32
s_load_dwordx2 s[8:9], s[0:1], 24
s_load_dwordx2 s[12:13], s[0:1], 16
s_load_dwordx2 s[16:17], s[0:1], 80
s_load_dwordx2 s[20:21], s[0:1], 0
s_load_dwordx2 s[24:25], s[0:1], 40
s_load_dwordx2 s[28:29], s[0:1], 56
s_cmp_ge_u32 s2, {NB + NCH}
s_cbranch_scc1 K1_EXIT
v_lshrrev_b32 v1, 6, v0
v_and_b32 v2, 63, v0
s_mov_b32 s18, {WS1_SIZE}
s_mov_b32 s19, {FMT}
v_readfirstlane_b32 s3, v1
""")
    a(f"""s_cmp_lt_u32 s2, {NB}
s_cbranch_scc1 K1_GEMM
""")
    DST, SRC, EA, AD, RK, HI, T0 = 4, 8, 12, 16, 20, 24, 28
    a(f"""; sort role: one chunk of {CH} edges is grouped by destination bin
s_sub_u32 s40, s2, {NB}
s_mov_b32 s6, {E * 4}
s_mov_b32 s7, {FMT}
s_mov_b32 s10, {E * 4}
s_mov_b32 s11, {FMT}
s_mov_b32 s14, {E * 2}
s_mov_b32 s15, {FMT}
s_mul_i32 s41, s40, {CH * 4}
s_mul_i32 s42, s40, {CH * 2}
v_lshlrev_b32 v3, 4, v0
v_lshlrev_b32 v14, 3, v0
v_lshlrev_b32 v15, 2, v0
v_mov_b32 v40, 0
s_mov_b32 s43, {CH // 4}
s_cmp_eq_u32 s40, {NCH - 1}
s_cselect_b32 s43, {(E - (NCH - 1) * CH) // 4}, s43
v_cmp_gt_u32 vcc, s43, v0
ds_write_b32 v15, v40
s_mov_b64 s[44:45], vcc
s_waitcnt lgkmcnt(0)
s_mov_b64 exec, s[44:45]
buffer_load_dwordx4 {vr(DST, 4)}, v3, s[4:7], s41 offen
buffer_load_dwordx2 {vr(EA, 2)}, v14, s[12:15], s42 offen
buffer_load_dwordx4 {vr(SRC, 4)}, v3, s[8:11], s41 offen
s_mov_b32 s46, -49
s_mov_b32 s47, 0xff100000
s_mov_b32 s54, 0x01000000
s_mov_b32 s48, {f32(-LOG2E)}
s_mov_b32 s49, {f32(-LOG2E)}
s_mov_b32 s50, 0xffff0000
s_mul_i32 s51, s40, {CS * 8}
s_lshl_b32 s52, s40, 10
s_add_u32 s52, s52, {TAB_OFF}
s_add_u32 s53, s51, 8192
v_mov_b32 v41, 1
""")
    stamp(1)
    a("s_barrier\ns_waitcnt vmcnt(2)")
    stamp(2)
    for i in range(4):
        a(f"v_mul_u32_u24 v{T0 + i}, 21400, v{DST + i}")
    for i in range(4):
        a(f"v_lshrrev_b32 v{T0 + i}, 20, v{T0 + i}")
    for i in range(4):
        a(f"v_lshlrev_b32 v{AD + i}, 2, v{T0 + i}")
    for i in range(4):
        a(f"ds_add_rtn_u32 v{RK + i}, v{AD + i}, v41")
    for i in range(4):
        a(f"v_mad_i32_i24 v{DST + i}, v{T0 + i}, s46, v{DST + i}")
    for i in range(4):
        a(f"v_mul_u32_u24 v{T0 + i}, 43, v{DST + i}")
    for i in range(4):
        a(f"v_lshrrev_b32 v{T0 + i}, 8, v{T0 + i}")
    for i in range(4):
        a(f"v_lshlrev_b32 v{HI + i}, 2, v{DST + i}")
    for i in range(4):
        a(f"v_mad_i32_i24 v{DST + i}, v{T0 + i}, -6, v{DST + i}")
    a("s_waitcnt vmcnt(1)")
    for j in range(2):
        a(f"v_lshlrev_b32 v{T0 + 2 * j}, 16, v{EA + j}")
        a(f"v_and_b32 v{T0 + 2 * j + 1}, s50, v{EA + j}")
    for j in range(2):
        a(f"v_pk_mul_f32 {vr(T0 + 2 * j, 2)}, {vr(T0 + 2 * j, 2)}, s[48:49]")
    for j in range(2):
        a(f"v_cvt_pk_bf16_f32 v{EA + j}, v{T0 + 2 * j}, v{T0 + 2 * j + 1}")
    for j in range(2):
        a(f"v_lshl_or_b32 v{HI + 2 * j}, v{EA + j}, 16, v{HI + 2 * j}")
        a(f"v_and_or_b32 v{HI + 2 * j + 1}, v{EA + j}, s50, v{HI + 2 * j + 1}")
    for i in range(4):
        a(f"v_lshlrev_b32 v{T0 + i}, v{DST + i}, s54")
    a("s_waitcnt vmcnt(0)")
    for i in range(4):
        a(f"v_lshl_add_u32 v{SRC + i}, v{DST + i}, 20, v{SRC + i}")
    for i in range(4):
        a(f"v_xad_u32 v{SRC + i}, v{T0 + i}, s47, v{SRC + i}")
    C0, O0 = 32, 36
    a(f"""s_mov_b64 exec, -1
v_lshlrev_b32 v42, 4, v2
s_waitcnt lgkmcnt(0)
s_barrier
""")
    stamp(3)
    a(f"""ds_read_b128 {vr(C0, 4)}, v42
s_waitcnt lgkmcnt(0)
v_add_u32 v43, v{C0}, v{C0 + 1}
v_add3_u32 v43, v43, v{C0 + 2}, v{C0 + 3}
v_mov_b32 v44, v43
""")
    scan_add(a, [44])
    a(f"""v_sub_u32 v{O0}, v44, v43
v_add_u32 v{O0 + 1}, v{O0}, v{C0}
v_add_u32 v{O0 + 2}, v{O0 + 1}, v{C0 + 1}
v_add_u32 v{O0 + 3}, v{O0 + 2}, v{C0 + 2}
ds_write_b128 v42, {vr(O0, 4)} offset:1024
s_cmp_lg_u32 s3, 7
s_cbranch_scc1 K1_NOTAB
""")
    for i in range(4):
        a(f"v_lshl_or_b32 v{C0 + i}, v{C0 + i}, 16, v{O0 + i}")
    a(f"""buffer_store_dwordx4 {vr(C0, 4)}, v42, s[16:19], s52 offen{SC}
s_branch K1_SCAT_DONE
K1_NOTAB:
s_mov_b64 exec, s[44:45]
""")
    for i in range(4):
        a(f"ds_read_b32 v{AD + i}, v{AD + i} offset:1024")
    for i in range(4):
        a(f"s_waitcnt lgkmcnt({3 - i})")
        a(f"v_add_lshl_u32 v{AD + i}, v{AD + i}, v{RK + i}, 3")
    for i in range(4):
        a(f"v_add_u32 v{AD + i}, 2048, v{AD + i}")
        a(f"ds_write2_b32 v{AD + i}, v{SRC + i}, v{HI + i} offset0:0 offset1:1")
    a(f"""s_mov_b64 exec, -1
K1_SCAT_DONE:
v_cmp_gt_u32 vcc, {(CH * 8 - 8192) // 16}, v0
s_waitcnt lgkmcnt(0)
s_barrier
""")
    stamp(4)
    a(f"""ds_read_b128 v[4:7], v3 offset:2048
ds_read_b128 v[8:11], v3 offset:{2048 + 8192}
s_waitcnt lgkmcnt(1)
buffer_store_dwordx4 v[4:7], v3, s[16:19], s51 offen{SC}
s_mov_b64 exec, vcc
s_waitcnt lgkmcnt(0)
buffer_store_dwordx4 v[8:11], v3, s[16:19], s53 offen{SC}
""")
    fin()
    a("K1_EXIT:\ns_endpgm")
    a(f"""K1_GEMM:
; GEMM role: B' rows of one bin, weight fragment repack, small constants
s_and_b32 s40, s2, 7
s_lshl_b32 s40, s40, 5
s_lshr_b32 s41, s2, 3
s_add_u32 s40, s40, s41
s_mul_i32 s40, s40, {BN * 256}
s_sub_u32 s22, {N * 256}, s40
s_min_u32 s22, s22, {BN * 256}
s_mov_b32 s23, {FMT}
s_mov_b32 s26, {258 * 256}
s_mov_b32 s27, {FMT}
v_lshrrev_b32 v3, 4, v2
v_and_b32 v4, 15, v2
v_lshlrev_b32 v5, 1, v3
v_xor_b32 v5, v5, v4
v_lshlrev_b32 v5, 4, v5
v_lshl_or_b32 v5, v3, 8, v5
v_xor_b32 v6, 128, v5
s_and_b32 s47, s3, 3
s_lshl_b32 s47, s47, 2
v_or_b32 v7, s47, v3
v_xor_b32 v7, v7, v4
v_lshlrev_b32 v7, 4, v7
v_lshl_or_b32 v7, v3, 8, v7
s_lshl_b32 s42, s3, 12
s_add_u32 s43, s42, 32768
s_lshl_b32 s44, s3, 10
s_add_u32 s45, s44, 8192
s_mov_b32 m0, s42
s_waitcnt lgkmcnt(0)
s_add_u32 s20, s20, s40
s_addc_u32 s21, s21, 0
buffer_load_dwordx4 v5, s[24:27], s43 offen lds
buffer_load_dwordx4 v5, s[24:27], s43 offen offset:1024 lds
buffer_load_dwordx4 v6, s[24:27], s43 offen offset:2048 lds
buffer_load_dwordx4 v6, s[24:27], s43 offen offset:3072 lds
s_add_u32 m0, s44, 32768
buffer_load_dwordx4 v7, s[20:23], s44 offen lds
s_add_u32 m0, s45, 32768
buffer_load_dwordx4 v7, s[20:23], s45 offen lds
s_cmp_ge_u32 s3, 4
s_cbranch_scc1 K1_REPACK
""")
    TA, HA, AF, BF, AC = 8, 16, 20, 36, 68
    a(f"""v_bfe_u32 v5, v2, 2, 2
v_and_b32 v6, 1, v3
v_lshl_or_b32 v6, v6, 2, v5
v_lshl_or_b32 v5, v3, 3, v5
v_lshlrev_b32 v5, 8, v5
v_lshl_or_b32 v5, v6, 5, v5
v_and_b32 v6, 3, v2
v_lshl_or_b32 v{TA}, v6, 3, v5
""")
    for t in range(1, 8):
        a(f"v_xor_b32 v{TA + t}, {t << 5}, v{TA}")
    a(f"""v_xor_b32 v5, v3, v4
v_lshlrev_b32 v5, 4, v5
v_lshl_or_b32 v5, v4, 8, v5
v_add_u32 v{HA}, s42, v5
""")
    for ks in range(1, 4):
        a(f"v_xor_b32 v{HA + ks}, {ks << 6}, v{HA}")
    a(f"""s_add_u32 s36, s16, {BP_OFF}
s_addc_u32 s37, s17, 0
s_add_u32 s36, s36, s40
s_addc_u32 s37, s37, 0
s_mov_b32 s38, {BN * 256}
s_mov_b32 s39, {FMT}
s_mov_b32 s48, {f32(-LOG2E)}
s_mov_b32 s49, {f32(-LOG2E)}
v_lshlrev_b32 v5, 10, v3
v_lshl_or_b32 v5, v4, 4, v5
""")
    stamp(1)
    a("s_waitcnt vmcnt(0)\ns_barrier")
    stamp(2)
    for ks in range(4):
        a(f"ds_read_b128 {vr(AF + 4 * ks, 4)}, v{HA + ks} offset:32768")
    DEPTH = 4
    jobs = [(ks, t) for ks in range(4) for t in range(8)]

    def rd(j):
        ks, t = jobs[j]
        d = BF + 4 * (j % 8)
        a(f"ds_read_b64_tr_b16 {vr(d, 2)}, v{TA + t} offset:{ks * 8192}")
        a(f"ds_read_b64_tr_b16 {vr(d + 2, 2)}, v{TA + t} offset:{ks * 8192 + 1024}")
    for j in range(DEPTH):
        rd(j)
    for j, (ks, t) in enumerate(jobs):
        if j + DEPTH < 32:
            rd(j + DEPTH)
        left = min(DEPTH, 31 - j)
        a(f"s_waitcnt lgkmcnt({2 * left})")
        c = "0" if ks == 0 else vr(AC + 4 * t, 4)
        a(f"v_mfma_f32_16x16x32_bf16 {vr(AC + 4 * t, 4)}, {vr(AF + 4 * ks, 4)}, {vr(BF + 4 * (j % 8), 4)}, {c}")
    stamp(3)
    for t in range(8):
        for hh in range(2):
            a(f"v_pk_mul_f32 {vr(AC + 4 * t + 2 * hh, 2)}, {vr(AC + 4 * t + 2 * hh, 2)}, s[48:49]")
    for r in range(4):
        for u in range(4):
            a(f"v_cvt_pk_bf16_f32 v{BF + 4 * r + u}, v{AC + 8 * u + r}, v{AC + 8 * u + 4 + r}")
        a(f"buffer_store_dwordx4 {vr(BF + 4 * r, 4)}, v5, s[36:39], s42 offen offset:{256 * r}{SC}")
    fin()
    a("s_endpgm")
    a(f"""K1_REPACK:
s_mov_b32 s30, 65536
s_mov_b32 s31, {FMT}
s_cmp_eq_u32 s3, 7
s_cbranch_scc1 K1_CONST
s_mul_i32 s46, s2, 3
s_add_u32 s46, s46, s3
s_sub_u32 s46, s46, 4
s_bfe_u32 s47, s46, 0x20006
s_bfe_u32 s48, s46, 0x30003
s_bfe_u32 s49, s46, 0x10002
s_bfe_u32 s50, s46, 0x10001
s_and_b32 s51, s46, 1
v_and_b32 v3, 7, v2
v_lshrrev_b32 v4, 3, v2
s_lshl_b32 s52, s48, 1
s_add_u32 s52, s52, s49
s_lshl_b32 s52, s52, 10
s_lshl_b32 s55, s46, 7
s_add_u32 s55, s55, {WF_OFF}
v_lshlrev_b32 v7, 1, v2
s_cmp_ge_u32 s46, 256
s_cbranch_scc1 K1_RP_H
s_lshr_b32 s53, s47, 1
s_lshl_b32 s53, s53, 3
s_and_b32 s54, s47, 1
s_add_u32 s53, s53, s54
s_lshl_b32 s54, s50, 2
s_add_u32 s53, s53, s54
s_lshl_b32 s54, s51, 1
s_add_u32 s53, s53, s54
s_add_u32 s52, s52, s53
s_lshl_b32 s52, s52, 1
v_lshlrev_b32 v5, 8, v3
v_lshl_or_b32 v5, v4, 5, v5
buffer_load_ushort v6, v5, s[24:27], s52 offen
s_branch K1_RP_ST
K1_RP_H:
s_lshl_b32 s53, s47, 5
s_lshl_b32 s54, s51, 4
s_add_u32 s53, s53, s54
s_add_u32 s53, s53, s50
v_lshlrev_b32 v5, 8, v3
s_cmp_ge_u32 s46, 512
s_cbranch_scc0 K1_RP_H1
s_lshr_b32 s52, s48, 2
s_lshl_b32 s52, s52, 2
s_and_b32 s54, s48, 1
s_lshl_b32 s54, s54, 6
s_add_u32 s52, s52, s54
s_lshl_b32 s54, s49, 5
s_add_u32 s52, s52, s54
s_and_b32 s54, s48, 2
s_add_u32 s52, s52, s54
s_add_u32 s52, s52, 128
s_lshl_b32 s52, s52, 7
v_lshrrev_b32 v5, 1, v3
v_lshlrev_b32 v5, 11, v5
v_and_b32 v6, 1, v3
v_lshl_or_b32 v5, v6, 8, v5
K1_RP_H1:
s_add_u32 s52, s52, s53
s_lshl_b32 s52, s52, 1
v_lshl_or_b32 v5, v4, 2, v5
buffer_load_ushort v6, v5, s[28:31], s52 offen
K1_RP_ST:
s_waitcnt vmcnt(0)
s_barrier
buffer_store_short v6, v7, s[16:19], s55 offen{SC}
""")
    fin()
    a(f"""s_endpgm
K1_CONST:
s_load_dwordx2 s[32:33], s[0:1], 48
s_load_dwordx2 s[56:57], s[0:1], 8
s_mov_b32 s58, {N * 6}
s_mov_b32 s59, {FMT}
s_mul_i32 s46, s41, {19 * 128}
v_lshlrev_b32 v3, 7, v2
s_waitcnt lgkmcnt(0)
s_mov_b64 exec, {(1 << 19) - 1}
{"" if "nopp" in opt else "buffer_load_dword v8, v3, s[56:59], s46 offen"}
s_mov_b64 exec, -1
s_waitcnt vmcnt(0)
s_barrier
s_cmp_lg_u32 s2, 0
s_cbranch_scc1 K1_EXIT2
s_mov_b32 s34, 256
s_mov_b32 s35, {FMT}
s_mov_b32 s46, 65536
s_mov_b32 s47, {CON_OFF}
v_and_b32 v3, 7, v2
v_lshlrev_b32 v3, 5, v3
v_bfe_u32 v4, v2, 4, 1
v_lshl_or_b32 v3, v4, 3, v3
v_bfe_u32 v4, v2, 3, 1
v_lshl_or_b32 v3, v4, 2, v3
v_lshrrev_b32 v4, 5, v2
v_lshl_or_b32 v4, v4, 1, v3
buffer_load_ushort v8, v4, s[24:27], s46 offen
buffer_load_ushort v9, v4, s[24:27], s46 offen offset:16
buffer_load_ushort v10, v4, s[24:27], s46 offen offset:256
buffer_load_ushort v11, v4, s[24:27], s46 offen offset:272
buffer_load_ushort v12, v3, s[32:35], 0 offen
buffer_load_ushort v13, v3, s[32:35], 0 offen offset:2
buffer_load_ushort v14, v3, s[32:35], 0 offen offset:16
buffer_load_ushort v15, v3, s[32:35], 0 offen offset:18
v_lshlrev_b32 v5, 3, v2
v_and_b32 v6, 31, v2
v_lshlrev_b32 v6, 4, v6
s_waitcnt vmcnt(0)
v_lshl_or_b32 v8, v10, 16, v8
v_lshl_or_b32 v9, v11, 16, v9
""")
    for i in range(4):
        a(f"v_lshlrev_b32 v{12 + i}, 16, v{12 + i}")
        a(f"v_mul_f32 v{12 + i}, {f32(-LN2 * KAPPA)}, v{12 + i}")
    a(f"""buffer_store_dwordx2 v[8:9], v5, s[16:19], s47 offen{SC}
buffer_store_dwordx4 v[12:15], v6, s[16:19], s47 offen offset:512{SC}
K1_EXIT2:
""")
    fin()
    a("s_endpgm")


vACC, vC, vD, vG, vE, vM = 192, 160, 128, 96, 80, 64
vP, vX, vY, vI, vSEL, vWX = 56, 48, 40, 32, 28, 24
vQ = 20
vT, vSRC = 18, 16
vAX, vAS, vAT, vK, vOFF, vL4, vIDX, vLR, vFA = 15, 14, 13, 12, 11, 10, 9, 8, 7
vL = 6


def gen_k2(a, opt):
    sW = 3
    sKP = 24
    sEX = 26
    sMORE, sMODE, sTOT, sBASE, sPR, sRO = 34, 35, 36, 37, 38, 39
    sCUR, sEND, sEVT, sSW, sFL, sP0, sPF, sRES = 40, 41, 42, 43, 44, 45, 46, 47
    sT = 48
    sLF, sC, sNL = 63, 64, 65
    diag = opt.get("diag")
    SO = " " + opt.get("so", "").replace("_", " ") if opt.get("so") else ""
    vCP, vCD = vT, vT + 1
    vPD = vQ

    entry, stamp, dump = diag_tools(a, opt, 12, vL, DBG_OFF, "2")

    def hop1_addr():
        a(f"""v_lshlrev_b32 v1, 10, v{vL}
s_lshl_b32 s{sT}, s{sW}, 15
s_lshl_b32 s{sT + 1}, s2, 2
s_add_u32 s{sT}, s{sT}, s{sT + 1}
s_add_u32 s{sT}, s{sT}, {TAB_OFF}
""")

    def hop1():
        a(f"""s_mov_b32 exec_hi, 0
buffer_load_dword v{vCP}, v1, s[12:15], s{sT} offen
s_mov_b32 exec_hi, -1
""")

    def zero_acc(z):
        for cb in range(4):
            a(f"v_mfma_f32_32x32x16_bf16 {vr(vACC + 16 * cb, 16)}, {vr(z, 4)}, {vr(z, 4)}, 0")

    def pos_dma(j):
        out = []
        if j % 4 == 0:
            out.append(f"s_add_u32 s{sT + 13}, s{sT + 12}, {1024 * j}")
            out.append(f"s_add_u32 m0, s{sT + 13}, {POS}")
        out.append(f"buffer_load_dwordx4 v5, s[8:11], s{sT + 13} offen offset:{1024 * (j % 4)} lds")
        return "\n".join(out)

    def pos_extra(tag):
        a(f"""s_cmp_ge_u32 s{sW}, 2
s_cbranch_scc1 K2_NOEXTRA{tag}
s_lshl_b32 s{sT + 13}, s{sW}, 10
s_add_u32 s{sT + 13}, s{sT + 13}, {72 * 1024}
s_add_u32 m0, s{sT + 13}, {POS}
buffer_load_dwordx4 v5, s[8:11], s{sT + 13} offen lds
K2_NOEXTRA{tag}:
""")

    a(f""".globl {NAME}_kernel
.p2align 8
.type {NAME}_kernel,@function
{NAME}_kernel:
""")
    entry()
    a(f"""s_load_dwordx2 s[12:13], s[0:1], 80
s_load_dwordx2 s[4:5], s[0:1], 0
s_load_dwordx2 s[8:9], s[0:1], 8
s_load_dwordx2 s[20:21], s[0:1], 64
s_setprio 3
s_cmp_ge_u32 s2, {NB}
s_cbranch_scc1 K2_EXIT
v_lshrrev_b32 v1, 6, v0
v_and_b32 v{vL}, 63, v0
s_and_b32 s{sT}, s2, 7
s_lshr_b32 s{sT + 14}, s2, 3
s_lshl_b32 s{sT}, s{sT}, 5
s_add_u32 s2, s{sT}, s{sT + 14}
s_mov_b32 s14, {WS1_SIZE}
s_mov_b32 s15, {FMT}
v_readfirstlane_b32 s{sW}, v1
""")
    hop1_addr()
    if "nowp" not in opt:
        a(f"""v_add_u32 v1, s{sT}, v1
s_lshl_b32 s{sT + 14}, s{sT + 14}, 3
s_add_u32 s{sT + 14}, s{sT + 14}, s{sW}
s_mul_i32 s{sT + 14}, s{sT + 14}, 384
s_add_u32 s{sT + 14}, s{sT + 14}, {WF_OFF - 4096}
s_mov_b32 exec_lo, 0
v_lshl_add_u32 v1, v{vL}, 7, s{sT + 14}
s_mov_b32 exec_lo, -1
""")
    a(f"""s_mul_i32 s{sT + 2}, s2, {BN * 256}
s_sub_u32 s6, {N * 256}, s{sT + 2}
s_min_u32 s6, s6, {BN * 256}
s_mov_b32 s7, {FMT}
v_lshrrev_b32 v3, 4, v{vL}
v_and_b32 v4, 15, v{vL}
s_and_b32 s{sT + 3}, s{sW}, 3
s_lshl_b32 s{sT + 3}, s{sT + 3}, 2
v_or_b32 v2, s{sT + 3}, v3
v_xor_b32 v2, v2, v4
v_lshlrev_b32 v2, 4, v2
v_lshl_or_b32 v2, v3, 8, v2
s_lshl_b32 s{sT + 4}, s{sW}, 10
s_add_u32 s{sT + 5}, s{sT + 4}, 8192
s_lshl_b32 s{sT + 6}, s{sW}, 13
s_add_u32 s{sT + 6}, s{sT + 6}, {WF_OFF}
s_add_u32 s{sT + 7}, s{sT + 6}, 4096
v_lshlrev_b32 v5, 4, v{vL}
s_mov_b32 s10, {N * 6 + 8}
s_mov_b32 s11, {FMT}
s_add_u32 m0, s{sT + 4}, {HST}
s_waitcnt lgkmcnt(0)
""")
    if "probe" in opt:
        stamp(0)
    if "nowp" in opt:
        hop1()
    else:
        a(f"""s_mov_b32 exec_hi, 7
buffer_load_dword v{vCP}, v1, s[12:15], 0 offen
s_mov_b32 exec_hi, -1
""")
    a(f"""s_setprio 0
s_add_u32 s4, s4, s{sT + 2}
s_addc_u32 s5, s5, 0
buffer_load_dwordx4 v2, s[4:7], s{sT + 4} offen lds
s_cmp_ge_u32 s{sW}, 6
s_cbranch_scc1 K2_JOB67
s_add_u32 m0, s{sT + 5}, {HST}
buffer_load_dwordx4 v2, s[4:7], s{sT + 5} offen lds
K2_JOBRET:
""")
    for ks in range(8):
        a(f"buffer_load_dwordx4 {vr(vG + 4 * ks, 4)}, v5, s[12:15], s{sT + 6 + ks // 4} offen offset:{1024 * (ks % 4)}")
    a(f"""s_add_u32 s16, s12, {BP_OFF}
s_addc_u32 s17, s13, 0
s_or_b32 s17, s17, {256 << 16}
s_mov_b32 s18, {N}
s_mov_b32 s19, {FMT}
s_mov_b32 s{sKP}, {f32(KAPPA / (1 + DELTA))}
s_mov_b32 s{sKP + 1}, {f32(KAPPA / (1 + DELTA))}
s_mov_b32 s{sBASE}, 0
s_mul_i32 s{sRO}, s{sW}, {32 * CS * 8}
s_mov_b32 s{sC}, 256
v_mov_b64 {vr(vSEL, 2)}, 0
v_mov_b64 {vr(vSEL + 2, 2)}, 0
v_add_u32 v1, s{sT + 4}, v5
v_lshlrev_b32 v{vL4}, 2, v{vL}
ds_write_b128 v1, {vr(vSEL, 4)} offset:{TARR}
""")
    zero_acc(vSEL)
    a(f"""v_lshrrev_b32 v1, 5, v{vL}
v_bfe_u32 v2, v{vL}, 1, 1
v_lshlrev_b32 v{vSRC + 1}, 5, v1
v_lshl_or_b32 v{vSRC + 1}, v2, 4, v{vSRC + 1}
v_bfe_u32 v3, v{vL}, 2, 3
v_and_b32 v4, 1, v{vL}
v_lshl_or_b32 v3, v3, 1, v4
v_lshlrev_b32 v{vAS}, 3, v3
v_xor_b32 v2, v2, v1
v_lshl_or_b32 v{vAX}, v2, 24, v{vAS}
v_bfe_u32 v2, v{vL}, 3, 1
v_bfe_u32 v3, v{vL}, 2, 1
v_lshl_or_b32 v3, v2, 2, v3
v_lshl_or_b32 v3, v1, 3, v3
v_lshlrev_b32 v{vAT}, 3, v3
v_bfe_u32 v2, v{vL}, 4, 1
v_and_b32 v3, 3, v{vL}
v_lshl_or_b32 v3, v2, 2, v3
v_add_u32 v3, 24, v3
v_lshlrev_b32 v{vK}, v3, 1
v_mov_b32 v{vIDX}, 0xdddddddd
v_and_b32 v2, 31, v{vL}
v_mul_u32_u24 v3, {RST}, v1
v_lshl_add_u32 v3, v2, 3, v3
v_add_u32 v{vLR}, {ROWS}, v3
v_lshlrev_b32 v3, 3, v1
v_sub_u32 v2, v2, v3
v_lshlrev_b32 v4, 4, v2
v_mov_b32 v0, 0x3f80
v_lshlrev_b32 v4, v4, v0
v_ashrrev_i32 v2, 1, v2
""")
    for u in range(2):
        for q in range(4):
            a(f"v_cmp_eq_u32 s[{sT + 2 * q}:{sT + 2 * q + 1}], {8 * u + q}, v2")
        for q in range(4):
            a(f"v_cndmask_b32 v{vI + 4 * u + q}, 0, v4, s[{sT + 2 * q}:{sT + 2 * q + 1}]")
    for i in range(0, 16, 2):
        a(f"v_mov_b64 {vr(vM + i, 2)}, 0")
    a(f"""v_and_b32 v3, 31, v{vL}
v_and_b32 v4, 15, v{vL}
v_xor_b32 v2, v1, v4
v_lshlrev_b32 v2, 4, v2
v_lshl_or_b32 v{vP}, v3, 8, v2
""")
    for ks in range(1, 8):
        a(f"v_xor_b32 v{vP + ks}, {ks << 5}, v{vP}")
    a(f"""s_cmp_eq_u32 s{sW}, 1
s_cbranch_scc0 K2_NOSEL2
ds_write_b128 v5, {vr(vSEL, 4)} offset:{SEL2}
K2_NOSEL2:
s_cmp_eq_u32 s{sW}, 0
s_cbranch_scc0 K2_NOROWB
v_add_u32 v1, -1, v{vL}
v_lshlrev_b32 v4, 4, v1
v_lshlrev_b32 v4, v4, v0
v_ashrrev_i32 v2, 1, v1
v_mov_b32 v{vE}, 0
""")
    for q in range(3):
        a(f"v_cmp_eq_u32 s[{sT + 2 * q}:{sT + 2 * q + 1}], {q}, v2")
    for q in range(3):
        a(f"v_cndmask_b32 v{vE + 1 + q}, 0, v4, s[{sT + 2 * q}:{sT + 2 * q + 1}]")
    a(f"""ds_write_b128 v5, {vr(vE, 4)} offset:{ROWB}
K2_NOROWB:
""")
    stamp(1)
    a("s_waitcnt vmcnt(10)")
    stamp(2)
    MK = vX
    RQ = vE
    RK = vE + 8
    AD = vE + 12
    a(f"""K2_BATCH:
s_mov_b32 exec_hi, 0
v_lshrrev_b32 v1, 16, v{vCP}
v_and_b32 v{vCD}, 0xffff, v{vCP}
v_mov_b32 v2, v1
s_mov_b32 s{sT}, {CS}
v_mad_u32_u24 v{vCD}, v{vL}, s{sT}, v{vCD}
s_lshl_b32 s{sT}, s{sW}, 10
s_mul_i32 s{sT + 12}, s{sW}, {9 * 1024}
""")
    scan_add(a, [2], n64=False)
    a(f"""v_sub_u32 v1, v2, v1
v_readlane_b32 s{sTOT}, v2, 31
v_sub_u32 v{vCD}, v{vCD}, v1
v_sub_u32_e64 v1, v1, s{sBASE} clamp
v_cmpx_gt_u32 vcc, {RB}, v1
v_lshl_add_u32 v1, v1, 2, s{sT}
ds_max_u32 v1, v{vCD} offset:{TARR}
s_mov_b64 exec, -1
v_add_u32 v1, s{sT}, v{vL4}
""")
    for k in range(4):
        a(f"ds_read_b32 v{MK + k}, v1 offset:{TARR + 256 * k}")
    a(f"s_sub_i32 s{sT + 1}, s{sTOT}, s{sBASE}")
    for k in range(4):
        a(f"v_cmp_gt_i32 s[{sEX + 2 * k}:{sEX + 2 * k + 1}], s{sT + 1}, v{vL}")
        if k < 3:
            a(f"s_sub_i32 s{sT + 1}, s{sT + 1}, 64")
    a(f"""s_lshl_b32 s{sT + 2}, s{sBASE}, 3
s_add_u32 s{sT + 2}, s{sT + 2}, s{sRO}
s_waitcnt lgkmcnt(0)
""")
    scan_add(a, [MK + k for k in range(4)], op="v_max_u32")
    for k in range(3):
        a(f"v_readlane_b32 s{sT + 4 + k}, v{MK + k}, 63")
    a(f"v_add_lshl_u32 v{MK}, v{MK}, v{vL}, 3")
    a(f"buffer_load_dwordx2 {vr(RQ, 2)}, v{MK}, s[12:15], s{sT + 2} offen")
    for k in range(1, 3):
        a(f"s_max_u32 s{sT + 4 + k}, s{sT + 4 + k}, s{sT + 3 + k}")
    for k in range(1, 4):
        a(f"v_max_u32 v{MK + k}, s{sT + 3 + k}, v{MK + k}")
        a(f"v_add_lshl_u32 v{MK + k}, v{MK + k}, v{vL}, 3")
        a(f"buffer_load_dwordx2 {vr(RQ + 2 * k, 2)}, v{MK + k}, s[12:15], s{sT + 2} offen offset:{512 * k}")
    stamp(3)
    a(f"""s_cmp_lg_u32 s{sBASE}, 0
s_cbranch_scc1 K2_SKIPGEMM
""")
    for j in range(3):
        a(pos_dma(j))
    a(f"""s_waitcnt vmcnt(15) lgkmcnt(0)
s_barrier
""")
    stamp(4)
    jobs = [(ks, rho) for ks in range(8) for rho in range(2)]
    DEP = 7

    def rdh(j):
        ks, rho = jobs[j]
        a(f"ds_read_b128 {vr(vD + 4 * (j % 8), 4)}, v{vP + ks} offset:{HST + 8192 * rho}")
    a(f"""v_lshlrev_b32 v1, 1, v{vL4}
v_and_b32 v2, 496, v5
ds_read_b32 v{vY}, v1 offset:{CONL}
ds_read_b32 v{vY + 4}, v1 offset:{CONL + 4}
ds_read_b128 {vr(vWX, 4)}, v2 offset:{CONL + 512}
""")
    for j in range(DEP):
        rdh(j)
    a("s_waitcnt vmcnt(7)")
    for j, (ks, rho) in enumerate(jobs):
        if j + DEP < 16:
            rdh(j + DEP)
        a(f"s_waitcnt lgkmcnt({min(DEP, 15 - j)})")
        c = "0" if ks == 0 else vr(vC + 16 * rho, 16)
        a(f"v_mfma_f32_32x32x16_bf16 {vr(vC + 16 * rho, 16)}, {vr(vD + 4 * (j % 8), 4)}, {vr(vG + 4 * ks, 4)}, {c}")
        if j % 2 == 1 and 3 + j // 2 < 9:
            a(pos_dma(3 + j // 2))
    stamp(5)
    a(f"""s_waitcnt vmcnt(9)
K2_RANK:
v_mov_b32 v0, 1
""")
    for k in range(4):
        a(f"v_and_b32 v{AD + k}, 0xff, v{RQ + 2 * k + 1}")
    for k in range(4):
        a(f"s_mov_b64 exec, s[{sEX + 2 * k}:{sEX + 2 * k + 1}]")
        a(f"ds_add_rtn_u32 v{RK + k}, v{AD + k}, v0 offset:{CNT}")
    a(f"""s_mov_b64 exec, -1
s_lshl_b32 s{sT}, s{sW}, 2
v_mov_b32 v1, s{sT}
v_mov_b32 v2, s{sTOT}
ds_write_b32 v1, v2 offset:{CNT + 224}
s_cmp_lg_u32 s{sBASE}, 0
s_cbranch_scc1 K2_NOY
""")
    pos_extra("A")
    a(f"""s_mov_b32 s{sT}, {f32(-LOG2E)}
s_mov_b32 s{sT + 1}, {f32(-LOG2E)}
""")
    for i in range(0, 28, 2):
        a(f"v_pk_mul_f32 {vr(vC + i, 2)}, {vr(vC + i, 2)}, s[{sT}:{sT + 1}]")
    a(f"""v_mov_b64 {vr(vC + 28, 2)}, 0
v_mov_b64 {vr(vC + 30, 2)}, 0
s_cmp_ge_u32 s{sW}, 4
s_cbranch_scc1 K2_HIY
v_lshrrev_b32 v1, 5, v{vL}
v_and_b32 v2, 124, v{vL4}
v_lshl_or_b32 v2, v1, 10, v2
s_lshl_b32 s{sT + 2}, s{sW}, 7
s_add_u32 s{sT + 2}, s{sT + 2}, {YTAB}
v_add_u32 v2, s{sT + 2}, v2
""")
    for i in range(0, 28, 2):
        rho, r = i // 16, i % 16
        pair = 16 * rho + 4 * (r >> 2) + ((r & 3) >> 1)
        a(f"v_cvt_pk_bf16_f32 v{vD + i // 2}, v{vC + i}, v{vC + i + 1}")
        a(f"ds_write_b32 v2, v{vD + i // 2} offset:{512 * pair}")
    a(f"""K2_NOY:
s_waitcnt lgkmcnt(0)
""")
    stamp(6)
    a(f"""s_barrier
ds_read_b32 v3, v{vL4} offset:{CNT}
v_cmp_gt_u32 vcc, {BN}, v{vL}
s_add_u32 s{sT + 8}, s{sBASE}, {RB}
v_bfrev_b32 v1, -2
s_waitcnt lgkmcnt(0)
v_max_u32 v4, 4, v3
v_cndmask_b32 v4, 0, v4, vcc
v_cmp_lt_u32 s[{sT + 6}:{sT + 7}], s{sT + 8}, v3
v_mov_b32 v2, v4
""")
    scan_add(a, [2])
    a(f"""v_sub_u32 v4, v2, v4
v_readlane_b32 s{sT}, v2, 63
""")
    for k in range(4):
        a(f"ds_bpermute_b32 v{MK + k}, v{AD + k}, v4")
    a(f"""v_cndmask_b32 v{vOFF}, v1, v4, vcc
s_lshr_b32 s{sMORE}, s{sT + 7}, 24
v_mov_b32 v0, 0xff00ffff
v_mov_b32 v1, 252
s_cmp_gt_u32 s{sW}, 4
s_cbranch_scc1 K2_NOPAD
s_cmp_eq_u32 s{sW}, 4
s_cbranch_scc1 K2_TAILPAD
v_add_lshl_u32 v4, v4, s{sW}, 3
s_mov_b64 exec, vcc
v_cmpx_ge_u32 vcc, s{sW}, v3
s_branch K2_DOPAD
K2_TAILPAD:
v_add_lshl_u32 v4, s{sT}, v{vL}, 3
K2_DOPAD:
ds_write_b64 v4, v[0:1] offset:{CREC}
s_mov_b64 exec, -1
K2_NOPAD:
s_add_u32 s{sT}, s{sT}, 15
s_lshr_b32 s{sT}, s{sT}, 4
s_lshr_b32 s{sT + 1}, s{sT}, 3
s_and_b32 s{sT + 2}, s{sT}, 7
s_mul_i32 s{sCUR}, s{sW}, s{sT + 1}
s_min_u32 s{sT + 3}, s{sW}, s{sT + 2}
s_add_u32 s{sCUR}, s{sCUR}, s{sT + 3}
s_add_u32 s{sEND}, s{sCUR}, s{sT + 1}
s_cmp_lt_u32 s{sW}, s{sT + 2}
s_addc_u32 s{sEND}, s{sEND}, 0
s_waitcnt lgkmcnt(0)
""")
    for k in range(4):
        a(f"v_add_lshl_u32 v{MK + k}, v{MK + k}, v{RK + k}, 3")
    for k in range(4):
        a(f"s_mov_b64 exec, s[{sEX + 2 * k}:{sEX + 2 * k + 1}]")
        a(f"ds_write_b64 v{MK + k}, {vr(RQ + 2 * k, 2)} offset:{CREC}")
    a("s_mov_b64 exec, -1")

    def window(first_step_sgpr):
        a(f"""s_lshl_b32 s{sT + 10}, s{first_step_sgpr}, 4
v_cmp_ge_u32 vcc, s{sT + 10}, v{vOFF}
s_bcnt1_i32_b64 s{sT + 9}, vcc
s_sub_u32 s{sT + 9}, s{sT + 9}, 1
s_lshr_b32 s{sP0}, s{sT + 9}, 1
s_lshl_b32 s{sT}, s{sP0}, 1
s_add_u32 s{sT}, s{sT}, 6
v_readlane_b32 s{sSW}, v{vOFF}, s{sT}
s_mul_i32 s{sT}, s{sP0}, 43
s_lshr_b32 s{sT}, s{sT}, 7
s_mul_i32 s{sT}, s{sT}, 3
s_lshr_b32 s{sSW}, s{sSW}, 4
""")

    def load_y():
        for i in range(3):
            a(f"""s_add_u32 s{sT + 4}, s{sT}, {i}
s_cmp_lt_u32 s{sT + 4}, s{sP0}
s_cselect_b32 s{sT + 1}, 3, 0
s_add_u32 s{sT + 4}, s{sT + 4}, s{sT + 1}
s_lshl_b32 s{sT + 4}, s{sT + 4}, 9
v_add_u32 v{1 + i}, s{sT + 4}, v{vL4}
ds_read_b32 v{vY + 1 + i}, v{1 + i} offset:{YTAB}
ds_read_b32 v{vY + 5 + i}, v{1 + i} offset:{YTAB + 256}
""")

    window(sCUR)
    a(f"""s_mov_b32 s{sPF}, s{sP0}
s_sub_u32 s{sRES}, s{sP0}, s{sT}
""")
    load_y()
    a(f"""v_readlane_b32 s{sT + 2}, v{vOFF}, s{sT + 9}
s_lshl_b32 s{sT + 11}, s{sEND}, 4
v_cmp_gt_u32 vcc, s{sT + 11}, v{vOFF}
s_bcnt1_i32_b64 s{sNL}, vcc
s_sub_u32 s{sNL}, s{sNL}, 1
s_mul_i32 s{sT + 3}, s{sP0}, {2 * RST}
s_and_b32 s{sT + 4}, s{sT + 9}, 1
s_add_u32 s{sT + 5}, s{sW}, 56
s_sub_u32 s{sT + 5}, s{sT + 5}, s{sT + 4}
s_mul_i32 s{sT + 5}, s{sT + 5}, {RST}
s_cmp_lt_u32 s{sT + 2}, s{sT + 10}
s_cselect_b32 s{sT + 5}, s{sT + 5}, s{sT + 3}
s_cmp_eq_u32 s{sT + 4}, 0
s_cselect_b32 s{sT + 6}, s{sT + 3}, s{sT + 5}
s_cselect_b32 s{sT + 5}, s{sT + 5}, 0x1000000
v_add_u32 v{vFA}, s{sT + 6}, v{vLR}
s_mov_b32 exec_hi, 0
v_add_u32 v{vFA}, s{sT + 5}, v{vLR}
s_mov_b32 exec_hi, -1
s_lshl_b32 s{sT + 2}, s{sT + 9}, 3
s_add_u32 s{sT + 3}, s{sT + 2}, s{sW}
s_lshl_b32 s{sT + 3}, s{sT + 3}, 1
s_lshl_b32 s{sT + 4}, s{sW}, 2
v_mov_b32 v0, s{sT + 3}
v_mov_b32 v4, 0x3f80
ds_write_b16 v0, v4 offset:{SEL2}
v_mov_b32 v0, s{sT + 4}
v_mov_b32 v4, s{sT + 2}
ds_write_b32 v0, v4 offset:{HEAD}
s_lshl_b32 s{sT + 8}, s{sCUR}, 7
v_lshl_add_u32 v0, v{vL}, 3, s{sT + 8}
s_add_u32 s{sT + 8}, s{sT + 8}, {CREC}
v_add_u32 v{vAX}, s{sT + 8}, v{vAX}
v_add_u32 v{vAS}, s{sT + 8}, v{vAS}
v_add_u32 v{vAT}, s{sT + 8}, v{vAT}
s_mov_b32 s{sFL}, -1
s_sub_u32 s{sEVT}, s{sSW}, 1
s_sub_i32 s{sPR}, s{sEND}, {opt.get('pr', 3)}
s_max_i32 s{sPR}, s{sPR}, s{sCUR}
s_cmp_lt_u32 s{sW}, 4
s_cselect_b32 s{sPR}, s{sPR}, -1
s_min_u32 s{sEVT}, s{sEVT}, s{sPR}
s_sub_u32 s{sT + 11}, s{sT + 11}, s{sT + 10}
s_mov_b32 s{sT + 2}, {f32(KAPPA)}
s_mov_b32 s{sT + 3}, 0xffff0000
s_mov_b32 s{sT + 4}, {POS}
""")
    stamp(7)
    a(f"""s_waitcnt vmcnt(0) lgkmcnt(0)
s_barrier
""")
    stamp(8)
    R2, PP, RA, PA = vD, vD + 8, vD + 16, vE
    a(f"""ds_read_u16 v{vSRC}, v{vAS}
ds_read_u8 v{vX}, v{vAX} offset:2
ds_read_u8 v{vX + 4}, v{vAX} offset:{128 + 2}
ds_read2_b32 {vr(vT, 2)}, v{vAT} offset0:0 offset1:4
s_waitcnt lgkmcnt(3)
""")
    for u in range(4):
        a(f"buffer_load_dwordx4 {vr(vG + 4 * u, 4)}, {vr(vSRC, 2)}, s[16:19], 0 idxen offen offset:{64 * u}")
    a(f"""ds_read_u16 v{vSRC}, v{vAS} offset:128
K2_ST2:
""")
    for k in range(4):
        a(f"ds_read_b64 {vr(R2 + 2 * k, 2)}, v0 offset:{CREC + 512 * k}")
    for k in range(4):
        a(f"v_cmp_gt_i32 s[{sEX + 2 * k}:{sEX + 2 * k + 1}], s{sT + 11}, v{vL}")
        a(f"s_sub_i32 s{sT + 11}, s{sT + 11}, 64")
    a("s_waitcnt lgkmcnt(0)")
    for k in (3, 2, 1, 0):
        a(f"""s_mov_b64 exec, s[{sEX + 2 * k}:{sEX + 2 * k + 1}]
v_mad_u32_u16 v{PA + k}, v{R2 + 2 * k}, 6, s{sT + 4}
v_lshlrev_b32_sdwa v2, 2, v{R2 + 2 * k + 1} dst_sel:DWORD dst_unused:UNUSED_PAD src0_sel:DWORD src1_sel:BYTE_0
v_and_b32 v1, -4, v{PA + k}
ds_read_b128 {vr(RA + 4 * k, 4)}, v2 offset:{ROWA}
ds_read2_b32 {vr(PP + 2 * k, 2)}, v1 offset0:0 offset1:1
""")
    for k in (3, 2, 1, 0):
        p, ra, q = PP + 2 * k, RA + 4 * k, R2 + 2 * k
        a(f"s_mov_b64 exec, s[{sEX + 2 * k}:{sEX + 2 * k + 1}]")
        if k:
            a(f"s_cbranch_execz K2_SKIP{k}")
        a(f"""s_waitcnt lgkmcnt({2 * k})
v_alignbyte_b32 v2, v{p + 1}, v{p}, v{PA + k}
v_alignbyte_b32 v3, v{p + 1}, v{p + 1}, v{PA + k}
v_lshlrev_b32 v1, 16, v2
v_and_b32 v2, s{sT + 3}, v2
v_lshlrev_b32 v3, 16, v3
v_sub_f32 v1, v{ra}, v1
v_sub_f32 v2, v{ra + 1}, v2
v_sub_f32 v3, v{ra + 2}, v3
v_mul_f32 v4, v1, v1
v_cvt_pk_bf16_f32 v{p}, s{sT + 2}, v1
v_fmac_f32 v4, v2, v2
v_cvt_pk_bf16_f32 v{p + 1}, v2, v3
v_fmac_f32 v4, v3, v3
v_mul_f32 v4, {f32(-LOG2E)}, v4
v_cvt_pk_bf16_f32 v{q + 1}, v4, v{q + 1}
ds_write_b64 v0, {vr(p, 2)} offset:{TARR + 512 * k}
ds_write_b32 v0, v{q + 1} offset:{CREC + 512 * k + 4}
""")
        if k:
            a(f"K2_SKIP{k}:")
    a(f"""s_mov_b64 exec, -1
v_add_u32 v0, 2048, v0
s_cmp_gt_i32 s{sT + 11}, 0
s_cbranch_scc1 K2_ST2
""")
    for u in range(4):
        a(f"buffer_load_dwordx4 {vr(vG + 16 + 4 * u, 4)}, {vr(vSRC, 2)}, s[16:19], 0 idxen offen offset:{64 * u}")
    a(f"""ds_read_b128 {vr(vX, 4)}, v{vX} offset:{ROWB}
ds_read_b32 v{vX}, v{vAX} offset:4
ds_read_b128 {vr(vX + 4, 4)}, v{vX + 4} offset:{ROWB}
ds_read_b32 v{vX + 4}, v{vAX} offset:{128 + 4}
ds_read_u16 v{vSRC}, v{vAS} offset:256
s_mul_i32 s{sT}, s{sW}, {RST}
s_add_u32 s{sT}, s{sT}, {ROWS + 56 * RST}
v_lshl_add_u32 v1, v{vL}, 4, s{sT}
""")
    stamp(9)
    a(f"""s_barrier
s_mov_b32 exec_hi, 0xffff
ds_write_b128 v1, {vr(vSEL, 4)}
s_mov_b32 exec_hi, -1
s_setprio {0 if "np" in opt else 1}
s_cmp_lt_u32 s{sW}, 4
s_cbranch_scc0 K2_PRIO
s_setprio {0 if "np" in opt else 2}
K2_PRIO:
s_waitcnt vmcnt(4) lgkmcnt(0)
""")

    def pre(d, g, x, tau):
        return [
            f"v_mfma_f32_32x32x16_bf16 {vr(d, 16)}, {vr(g + 8 * tau, 4)}, {vr(vI, 4)}, 0",
            f"v_mfma_f32_32x32x16_bf16 {vr(d, 16)}, {vr(g + 8 * tau + 4, 4)}, {vr(vI + 4, 4)}, {vr(d, 16)}",
            f"v_mfma_f32_32x32x16_bf16 {vr(d, 16)}, {vr(x, 4)}, {vr(vY + 4 * tau, 4)}, {vr(d, 16)}",
        ]

    def seg(tau):
        return [f"v_smfmac_f32_32x32x32_bf16 {vr(vACC + 16 * (2 * tau + s), 16)}, {vr(vSEL, 4)}, {vr(vM + 8 * s, 8)}, v{vIDX}"
                for s in range(2)]

    for m in pre(vD, vG, vX, 0):
        a(m)

    ab = opt.get("ab", "")

    def tile(d, mp, ms, mid, extra):
        if "p" in ab:
            mp = ["s_nop 0\ns_nop 0"] * 3
        if "i" in ab:
            mp = ["s_nop 0\ns_nop 0"] * 2 + [mp[2].rsplit(",", 1)[0] + ", 0"]
        if "s" in ab:
            ms = ["s_nop 0\ns_nop 0"] * 2
        for r in range(16):
            if r in (0, 3, 6):
                a(mp[r // 3])
            if r == 9:
                if mid:
                    a("s_waitcnt lgkmcnt(0)")
                a(ms[0])
                for x in mid:
                    a(x)
            wide = "_e64" if (r in (2, 5) or (r == 8 and not mid) or r == 15) else ""
            a(f"v_exp_f32{wide} v{vE + r}, v{d + r}")
        for g in range(0, 16, 2):
            a(f"v_pk_fma_f32 {vr(vE + g, 2)}, {vr(vE + g, 2)}, s[{sKP}:{sKP + 1}], s[{sKP}:{sKP + 1}] clamp")
        for g in range(4):
            a(f"v_pk_mul_f32 {vr(vP + 2 * g, 2)}, {vr(vE + 4 * g, 2)}, {vr(vE + 4 * g + 2, 2)}")
        for g in range(2):
            a(f"v_pk_mul_f32 {vr(vQ + 2 * g, 2)}, {vr(vP + 4 * g, 2)}, {vr(vP + 4 * g + 2, 2)}")
        for g in range(4):
            a(f"v_pk_mul_f32 {vr(vE + 4 * g + 2, 2)}, {vr(d + 4 * g, 2)}, {vr(vE + 4 * g + 2, 2)}")
            a(f"v_pk_mul_f32 {vr(vE + 4 * g, 2)}, {vr(vE + 4 * g, 2)}, {vr(d + 4 * g + 2, 2)}")
        a(ms[1])
        for r in range(4):
            a(f"v_rcp_f32 v{vQ + r}, v{vQ + r}")
        for x in extra:
            a(x)
        for g in range(4):
            a(f"v_pk_mul_f32 {vr(vP + 2 * g, 2)}, {vr(vP + 2 * g, 2)}, {vr(vQ + 2 * (g // 2), 2)}")
        for g in range(4):
            o = vP + 2 * (g ^ 1)
            a(f"v_pk_mul_f32 {vr(vM + 2 * g, 2)}, {vr(vE + 4 * g + 2, 2)}, {vr(o, 2)}")
            a(f"v_pk_mul_f32 {vr(vM + 8 + 2 * g, 2)}, {vr(vE + 4 * g, 2)}, {vr(o, 2)}")

    TOFF = TARR - CREC

    def step(par):
        g, x = vG + 16 * par, vX + 4 * par
        gn, xn = vG + 16 * (1 - par), vX + 4 * (1 - par)
        ex = [f"v_and_or_b32 v{vT + i}, v{vT + i}, v{vK}, v{vAT}" for i in range(2)]
        tile(vD, pre(vD + 16, g, x, 1), seg(1), [], ex)
        for u in range(0 if "g" in ab else 4):
            a(f"buffer_load_dwordx4 {vr(g + 4 * u, 4)}, {vr(vSRC, 2)}, s[16:19], 0 idxen offen offset:{64 * u}")
        a(f"""ds_read_b64_tr_b16 {vr(vSEL, 2)}, v{vT} offset:{TOFF + 128 * par}
ds_read_b64_tr_b16 {vr(vSEL + 2, 2)}, v{vT + 1} offset:{TOFF + 128 * par + 16}
ds_read_u8 v{x}, v{vAX} offset:{256 + 128 * par + 2}
ds_read2_b32 {vr(vT, 2)}, v{vAT} offset0:{32 * par + 32} offset1:{32 * par + 36}
ds_read_u16 v{vSRC}, v{vAS} offset:{384 + 128 * par}
s_cmp_eq_u32 s{sCUR}, s{sEVT}
s_cbranch_scc1 K2_EVT{par}
K2_RET{par}:
s_add_u32 s{sCUR}, s{sCUR}, 1
s_waitcnt vmcnt(4) lgkmcnt(5)
""")
        mid = [f"ds_read_b128 {vr(x, 4)}, v{x} offset:{ROWB}", f"ds_read_b32 v{x}, v{vAX} offset:{256 + 128 * par + 4}"]
        if "tl" in opt:
            a(f"s_memtime s[66:67]\ns_sub_u32 m0, s{sEND}, s{sCUR}\ns_nop 0")
            mid.append(f"v_writelane_b32 v{vC + 27}, s66, m0")
        ex = []
        if par == 1:
            ex = [f"v_add_u32 v{vAX}, s{sC}, v{vAX}", f"v_add_u32 v{vAS}, s{sC}, v{vAS}", f"v_add_u32_e64 v{vAT}, s{sC}, v{vAT}"]
        tile(vD + 16, pre(vD, gn, xn, 0), seg(0), mid, ex)
        a(f"s_cmp_lt_u32 s{sCUR}, s{sEND}")
        a("s_cbranch_scc0 K2_DONE" if par == 0 else "s_cbranch_scc1 K2_LOOP")

    stamp(10)
    if "tl" in opt:
        a(f"v_mov_b32 v{vC + 27}, 0")
    a(f"""s_nop 11
.p2align 3
K2_LOOP:
""")
    step(0)
    step(1)
    a("K2_DONE:")
    stamp(11)
    if "tl" in opt:
        a(f"""s_add_u32 s88, s12, {DBG_OFF + (2 << 20)}
s_addc_u32 s89, s13, 0
s_mov_b32 s90, {1 << 20}
s_mov_b32 s91, {FMT}
s_lshl_b32 s66, s2, 3
s_add_u32 s66, s66, s3
s_lshl_b32 s66, s66, 8
buffer_store_dword v{vC + 27}, v{vL4}, s[88:91], s66 offen
""")
    for m in seg(1):
        a(m)
    a(f"""s_lshl_b32 s{sT + 8}, s{sW}, 13
s_add_u32 s{sT + 8}, s{sT + 8}, {WF_OFF + 32768}
s_add_u32 s{sT + 9}, s{sT + 8}, 4096
v_lshlrev_b32 v5, 4, v{vL}
s_mov_b32 s{sMODE}, 2
s_lshr_b32 s{sLF}, s{sNL}, 1
s_cmp_lt_u32 s{sW}, 4
s_cbranch_scc1 K2_FLUSH
""")
    for ks in range(8):
        a(f"buffer_load_dwordx4 {vr(vG + 4 * ks, 4)}, v5, s[12:15], s{sT + 8 + ks // 4} offen offset:{1024 * (ks % 4)}")
    a(f"""K2_FLUSH:
s_cmp_eq_u32 s{sRES}, 1
s_cbranch_scc1 K2_FL1
s_cmp_eq_u32 s{sRES}, 2
s_cbranch_scc1 K2_FL2
""")
    for i in range(3):
        r = lambda cb, c=0: vACC + 16 * cb + 4 * i + c
        a(f"""K2_FL{i}:
s_lshl_b32 s{sT}, s{sPF}, 1
s_cmp_eq_u32 s{sT}, s{sNL}
s_cselect_b32 exec_hi, 0, -1
s_add_u32 s{sPF}, s{sPF}, 1
s_mul_i32 s{sT}, s{sPF}, {2 * RST}
s_mov_b32 s{sRES}, {(i + 1) % 3}
v_pk_mul_f32 v[2:3], {vr(r(0), 2)}, {vr(vWX, 2)} op_sel:[0,0] op_sel_hi:[1,0]
v_pk_mul_f32 v[4:5], {vr(r(0, 2), 2)}, {vr(vWX, 2)} op_sel:[0,0] op_sel_hi:[1,0]
v_cvt_pk_bf16_f32 v0, v{r(0)}, v{r(1)}
""")
        for cb in range(1, 4):
            o = cb & 1
            for h in range(2):
                a(f"v_pk_fma_f32 v[{2 + 2 * h}:{3 + 2 * h}], {vr(r(cb, 2 * h), 2)}, {vr(vWX + (cb & 2), 2)}, v[{2 + 2 * h}:{3 + 2 * h}] "
                  f"op_sel:[0,{o},0] op_sel_hi:[1,{o},1]")
        a(f"""v_cvt_pk_bf16_f32 v1, v{r(2)}, v{r(3)}
ds_write2_b64 v{vFA}, v[2:3], v[4:5] offset0:32 offset1:64
ds_write_b64 v{vFA}, v[0:1]
v_add_u32 v{vFA}, s{sT}, v{vLR}
s_cmp_eq_u32 s{sMODE}, 2
s_cbranch_scc1 K2_FLZ{i}
""")
        for cb in range(4):
            for h in range(2):
                a(f"v_mov_b64 {vr(r(cb, 2 * h), 2)}, 0")
        a(f"""K2_FLZ{i}:
s_cmp_le_i32 s{sPF}, s{sLF}
""")
        a("s_cbranch_scc0 K2_FLEND" if i < 2 else "s_cbranch_scc1 K2_FL0")
    a(f"""K2_FLEND:
s_cmp_lg_u32 s{sMODE}, 2
s_cbranch_scc1 K2_EVA
s_mov_b32 exec_hi, -1
s_cmp_lt_u32 s{sW}, 4
s_cbranch_scc1 K2_POS
""")
    S2, TB = vE, vE + 8
    NP = 13
    hx = {0: vAX, 2: vAT, 8: vK, 10: vOFF}
    rows = []
    for p in range(NP):
        rho, r = (2 * p) // 16, (2 * p) % 16
        rows.append(32 * rho + 8 * (r >> 2) + (r & 3))
    a(f"""v_and_b32 v1, 31, v{vL}
v_lshrrev_b32 v2, 5, v{vL}
v_lshlrev_b32 v3, 4, v1
v_lshl_or_b32 v3, v2, 3, v3
ds_read_b64 {vr(S2, 2)}, v3 offset:{SEL2}
ds_read_b64 {vr(S2 + 4, 2)}, v3 offset:{SEL2 + 512}
v_mul_u32_u24 v1, {RST}, v1
v_lshl_add_u32 v1, v2, 4, v1
v_add_u32 v1, {ROWS}, v1
v_mov_b64 {vr(S2 + 2, 2)}, 0
v_mov_b64 {vr(S2 + 6, 2)}, 0
v_mov_b64 {vr(TB + 2, 2)}, 0
""")
    stamp(12)
    a(f"""s_waitcnt lgkmcnt(0)
s_barrier
""")
    stamp(13)
    jobs = [(rho, ks) for rho in (1, 0) for ks in range(8)]
    for j, (rho, ks) in enumerate(jobs[:15]):
        a(f"ds_read_b128 {vr(vACC + 4 * j, 4)}, v1 offset:{rho * 32 * RST + ks * 32}")
    a("s_waitcnt vmcnt(0)")

    def mm(j):
        rho, ks = jobs[j]
        if j == 0:
            a("s_waitcnt lgkmcnt(14)")
            a(f"ds_read_b128 {vr(vACC + 60, 4)}, v1 offset:{7 * 32}")
        else:
            a(f"s_waitcnt lgkmcnt({15 - j})")
        a(f"v_mfma_f32_32x32x16_bf16 {vr(vC + 16 * rho, 16)}, {vr(vACC + 4 * j, 4)}, {vr(vG + 4 * ks, 4)}, {vr(vC + 16 * rho, 16)}")
    for j in range(10):
        mm(j)
    a(f"""v_cvt_pk_bf16_f32 v{TB}, v{vC + 28}, v{vC + 29}
v_cvt_pk_bf16_f32 v{TB + 1}, v{vC + 30}, v{vC + 31}
""")
    mm(10)
    a(f"v_mfma_f32_32x32x16_bf16 {vr(vC + 16, 16)}, {vr(S2 + 4, 4)}, {vr(TB, 4)}, {vr(vC + 16, 16)}")
    for j in range(11, 16):
        mm(j)
    a(f"v_mfma_f32_32x32x16_bf16 {vr(vC, 16)}, {vr(S2, 4)}, {vr(TB, 4)}, {vr(vC, 16)}")
    a(f"""s_cmp_lg_u32 s{sMORE}, 0
s_cbranch_scc1 K2_MORE
s_mul_i32 s{sT}, s2, {BN * 256}
s_add_u32 s20, s20, s{sT}
s_addc_u32 s21, s21, 0
s_mov_b32 s22, s6
s_mov_b32 s23, {FMT}
s_sub_u32 s{sT + 1}, s{sW}, 4
s_lshl_b32 s{sT + 2}, s{sT + 1}, 6
s_lshl_b32 s{sT + 3}, s{sT + 1}, 2
v_bfe_u32 v3, v{vL}, 4, 1
v_lshl_or_b32 v3, v2, 2, v3
v_and_b32 v4, 15, v{vL}
v_lshlrev_b32 v5, 8, v3
v_lshl_or_b32 v{vAS}, v4, 2, v5
v_add_u32 v{vAS}, s{sT + 2}, v{vAS}
v_lshrrev_b32 v4, 2, v4
v_or_b32 v4, s{sT + 3}, v4
v_xor_b32 v4, v4, v3
v_lshl_or_b32 v5, v4, 4, v5
v_and_b32 v4, 3, v{vL}
v_lshl_or_b32 v{vAX}, v4, 2, v5
v_xor_b32 v{vAT}, 32, v{vAX}
v_xor_b32 v{vK}, 128, v{vAX}
v_xor_b32 v{vOFF}, 160, v{vAX}
""")
    stamp(14)
    for p in range(NP):
        a(f"ds_read_b32 v{vX + p}, v{hx[rows[p] & 15]} offset:{HST + rows[p] * 256}")
    a(f"""s_mov_b32 s{sT}, {f32(-LN2)}
s_mov_b32 s{sT + 1}, {f32(-LN2)}
s_mov_b32 s{sT + 2}, 0xffff0000
s_mov_b32 s{sT + 4}, 0
s_mov_b32 s{sT + 5}, 4096
s_mov_b32 s{sT + 6}, 8192
s_mov_b32 s{sT + 7}, 12288
""")
    first = True
    for ps in ([8, 9, 10, 11, 12], [0, 1, 2, 3], [4, 5, 6, 7]):
        for p in ps:
            a(f"v_permlane16_swap_b32 v{vC + 2 * p}, v{vC + 2 * p + 1}")
        for p in ps:
            for i in range(2):
                a(f"v_exp_f32 v{vD + 2 * p + i}, v{vC + 2 * p + i}")
        if first:
            a("s_waitcnt lgkmcnt(0)")
            first = False
        for p in ps:
            a(f"v_pk_add_f32 {vr(vD + 2 * p, 2)}, {vr(vD + 2 * p, 2)}, 1.0 op_sel_hi:[1,0]")
        for p in ps:
            for i in range(2):
                a(f"v_rcp_f32 v{vD + 2 * p + i}, v{vD + 2 * p + i}")
        for p in ps:
            a(f"v_lshlrev_b32 v{vG + 2 * p}, 16, v{vX + p}")
            a(f"v_and_b32 v{vG + 2 * p + 1}, s{sT + 2}, v{vX + p}")
        for p in ps:
            a(f"v_pk_mul_f32 {vr(vD + 2 * p, 2)}, {vr(vD + 2 * p, 2)}, {vr(vC + 2 * p, 2)}")
        for p in ps:
            a(f"v_pk_fma_f32 {vr(vD + 2 * p, 2)}, {vr(vD + 2 * p, 2)}, s[{sT}:{sT + 1}], {vr(vG + 2 * p, 2)}")
        for p in ps:
            a(f"v_cvt_pk_bf16_f32 v{vX + p}, v{vD + 2 * p}, v{vD + 2 * p + 1}")
        for p in ps:
            o = rows[p] * 256
            a(f"buffer_store_dword v{vX + p}, v{vAS}, s[20:23], s{sT + 4 + o // 4096} offen offset:{o % 4096}{SO}")
    dump()
    a("""K2_EXIT:
s_endpgm
""")
    a(f"""K2_POS:
s_lshl_b32 s{sT}, s{sW}, 8
s_add_u32 s{sT}, s{sT}, {ROWS + 256}
v_mul_u32_u24 v1, {RST}, v{vL}
v_add_u32 v1, s{sT}, v1
s_lshl_b32 s{sT + 1}, s{sW}, 9
v_lshl_add_u32 v2, v{vL}, 3, s{sT + 1}
ds_read_b32 v3, v{vL4} offset:{HEAD - 224}
""")
    stamp(12)
    a(f"""s_waitcnt lgkmcnt(0)
s_barrier
""")
    stamp(13)
    a(f"""s_cmp_ge_u32 s{sW}, 2
s_cbranch_scc1 K2_POSEND
""")
    for i in range(16):
        if i == 15:
            a("s_waitcnt lgkmcnt(14)")
        a(f"ds_read_b128 {vr(vACC + 4 * i, 4)}, v1 offset:{16 * i}")
    a(f"v_add_u32 v3, s{sT + 1}, v3")
    for i in range(8):
        a(f"s_waitcnt lgkmcnt({14 - 2 * i})")
        for h in range(2):
            a(f"v_pk_add_f32 {vr(vACC + 8 * i + 2 * h, 2)}, {vr(vACC + 8 * i + 2 * h, 2)}, {vr(vACC + 8 * i + 4 + 2 * h, 2)}")
    w = 32
    while w >= 8:
        for i in range(0, w, 8):
            for h in range(2):
                a(f"v_pk_add_f32 {vr(vACC + i + 2 * h, 2)}, {vr(vACC + i + 2 * h, 2)}, {vr(vACC + w + i + 2 * h, 2)}")
        w //= 2
    a(f"""v_pk_add_f32 {vr(vACC, 2)}, {vr(vACC, 2)}, {vr(vACC + 2, 2)}
v_pk_add_f32 {vr(vC + 28, 2)}, {vr(vC + 28, 2)}, {vr(vACC, 2)}
ds_write_b64 v2, {vr(vC + 28, 2)} offset:{PS}
s_mov_b32 exec_lo, 0
s_mov_b32 exec_hi, 0xff000000
ds_add_f32 v3, v{vACC} offset:{PS}
ds_add_f32 v3, v{vACC + 1} offset:{PS + 4}
s_mov_b64 exec, -1
ds_read_b64 {vr(vC + 28, 2)}, v2 offset:{PS}
v_lshlrev_b32 v4, 2, v{vL4}
s_lshl_b32 s{sT + 1}, s{sW}, 3
v_add_u32 v4, s{sT + 1}, v4
ds_read_b32 v0, v4 offset:{ROWA - 4}
ds_read_b32 v1, v4 offset:{ROWA}
s_cmp_lg_u32 s{sMORE}, 0
s_cbranch_scc1 K2_MORE
s_mul_i32 s{sT}, s2, {BN * 6}
s_sub_u32 s22, {N * 6}, s{sT}
s_min_u32 s22, s22, {BN * 6}
s_add_u32 s{sT}, s{sT}, {N * 256}
s_add_u32 s20, s20, s{sT}
s_addc_u32 s21, s21, 0
s_mov_b32 s23, {FMT}
v_mul_u32_u24 v5, 6, v{vL}
v_cmp_gt_u32 vcc, s22, v5
s_add_u32 s22, s22, 2
s_lshl_b32 s{sT + 1}, s{sW}, 2
s_waitcnt lgkmcnt(0)
v_pk_add_f32 v[0:1], v[0:1], {vr(vC + 28, 2)}
v_cvt_pk_bf16_f32 v4, v0, v1
s_mov_b64 exec, vcc
buffer_store_short_d16_hi v4, v5, s[20:23], s{sT + 1} offen
s_cmp_eq_u32 s{sW}, 0
s_cbranch_scc1 K2_EXIT2
buffer_store_short v4, v5, s[20:23], 0 offen offset:2
s_branch K2_EXIT2
K2_POSEND:
s_cmp_lg_u32 s{sMORE}, 0
s_cbranch_scc1 K2_MORE
K2_EXIT2:
""")
    dump()
    a("s_endpgm")
    a(f"""K2_JOB67:
s_cmp_eq_u32 s{sW}, 7
s_cbranch_scc1 K2_JOB7
s_mov_b32 m0, {CONL}
s_mov_b32 s{sT + 8}, {CON_OFF}
buffer_load_dwordx4 v5, s[12:15], s{sT + 8} offen lds
s_branch K2_JOBRET
K2_JOB7:
s_mul_i32 s{sT + 8}, s2, {BN * 6}
v_mul_u32_u24 v1, 6, v{vL}
v_mov_b64 {vr(vPD, 2)}, 0
s_mov_b32 exec_hi, {(1 << (BN - 32)) - 1}
buffer_load_dwordx2 {vr(vPD, 2)}, v1, s[8:11], s{sT + 8} offen
s_mov_b32 exec_hi, -1
s_branch K2_JOBRET
K2_HIY:
s_cmp_eq_u32 s{sW}, 7
s_cbranch_scc0 K2_NOY
v_lshlrev_b32 v2, 16, v{vPD}
v_and_b32 v3, 0xffff0000, v{vPD}
v_lshlrev_b32 v4, 16, v{vPD + 1}
ds_write_b96 v5, v[2:4] offset:{ROWA}
s_branch K2_NOY
K2_SKIPGEMM:
s_waitcnt vmcnt(0) lgkmcnt(0)
s_barrier
s_branch K2_RANK
""")
    a(f"""K2_MORE:
s_waitcnt vmcnt(0) lgkmcnt(0)
s_barrier
s_setprio 0
s_add_u32 s{sBASE}, s{sBASE}, {RB}
v_and_b32 v{vAS}, 0x7f, v{vAS}
v_and_b32 v{vAX}, 0x0100007f, v{vAX}
v_and_b32 v{vAT}, 0x7f, v{vAT}
v_mov_b64 {vr(vSEL, 2)}, 0
v_mov_b64 {vr(vSEL + 2, 2)}, 0
v_lshlrev_b32 v5, 4, v{vL}
s_cmp_lt_u32 s{sW}, 4
s_cbranch_scc1 K2_KEEP
v_mov_b64 {vr(vC + 28, 2)}, 0
v_mov_b64 {vr(vC + 30, 2)}, 0
K2_KEEP:
""")
    hop1_addr()
    hop1()
    a(f"s_mul_i32 s{sT + 12}, s{sW}, {9 * 1024}")
    for j in range(9):
        a(pos_dma(j))
    pos_extra("B")
    a(f"""s_lshl_b32 s{sT}, s{sW}, 10
v_add_u32 v1, s{sT}, v5
ds_write_b128 v1, {vr(vSEL, 4)} offset:{TARR}
ds_write_b128 v5, {vr(vSEL, 4)} offset:{SEL2}
ds_write_b32 v{vL4}, v{vSEL} offset:{CNT}
""")
    zero_acc(vSEL)
    a(f"""s_waitcnt vmcnt(0)
s_branch K2_BATCH
""")
    a(f"""K2_EVT0:
s_mov_b32 s{sMODE}, 0
s_branch K2_EVT
K2_EVT1:
s_mov_b32 s{sMODE}, 1
K2_EVT:
s_cmp_lg_u32 s{sPR}, s{sCUR}
s_cbranch_scc1 K2_EVP
s_setprio 0
s_mov_b32 s{sPR}, -1
K2_EVP:
s_cmp_lg_u32 s{sFL}, s{sCUR}
s_cbranch_scc1 K2_EVA
s_mov_b32 s{sFL}, -1
s_sub_u32 s{sLF}, s{sP0}, 1
s_branch K2_FLUSH
K2_EVA:
s_sub_u32 s{sEVT}, s{sSW}, 1
s_cmp_lg_u32 s{sEVT}, s{sCUR}
s_cbranch_scc1 K2_EVB
s_mov_b32 s{sFL}, s{sSW}
s_mov_b32 s{sEVT}, s{sSW}
""")
    window(sFL)
    load_y()
    a(f"""s_waitcnt lgkmcnt(0)
K2_EVB:
s_min_u32 s{sEVT}, s{sEVT}, s{sPR}
s_cmp_eq_u32 s{sMODE}, 0
s_cbranch_scc1 K2_RET0
s_branch K2_RET1
""")


def kd(name, vgpr, sgpr=96):
    return f""".amdhsa_kernel {name}
  .amdhsa_next_free_vgpr {vgpr}
  .amdhsa_next_free_sgpr {sgpr}
  .amdhsa_accum_offset {(vgpr + 3) // 4 * 4}
  .amdhsa_group_segment_fixed_size 0
  .amdhsa_kernarg_size 88
  .amdhsa_user_sgpr_count 2
  .amdhsa_user_sgpr_kernarg_segment_ptr 1
  .amdhsa_system_sgpr_workgroup_id_x 1
.end_amdhsa_kernel
"""


def build(opt=None, verbose=False):
    opt = opt or {}
    ref = open(f"cdna_kernels/{NAME}.s.ref").read().split("\n")
    head = [l for l in ref if l.startswith(";") and "@launch" not in l and "Override" not in l and "grid=ceil" not in l]
    e = ref.index('.amdgcn_target "amdgcn-amd-amdhsa--gfx950"')
    head = [l for l in ref[:e] if "@launch" not in l and "Override" not in l and "grid=ceil" not in l]
    head.append(f"; @launch kernel=k1_kernel grid=({NB + NCH},1,1) block=(512,1,1) lds={K1_LDS}")
    head.append(f"; @launch kernel={NAME}_kernel grid=({NB},1,1) block=(512,1,1) lds={K2_LDS}")
    if "empty" in opt:
        head.insert(len(head) - 2 + int(opt["empty"]), "; @launch kernel=e_kernel grid=(256,1,1) block=(64,1,1) lds=0")
    a1, a2 = Asm(), Asm()
    gen_k1(a1, opt)
    gen_k2(a2, opt)
    n1 = a1.fix_hazards(verbose)
    n2 = a2.fix_hazards(verbose)
    s = "\n".join(head) + '\n.amdgcn_target "amdgcn-amd-amdhsa--gfx950"\n.text\n'
    s += a1.text() + a2.text()
    if "empty" in opt:
        s += ".globl e_kernel\n.p2align 8\n.type e_kernel,@function\ne_kernel:\n    s_endpgm\n"
    s += '.section .rodata,"a"\n.p2align 6\n' + kd("k1_kernel", 104) + ".p2align 6\n" + kd(NAME + "_kernel", 256)
    if "empty" in opt:
        s += ".p2align 6\n" + kd("e_kernel", 8)
    return s


if __name__ == "__main__":
    out = sys.argv[1] if len(sys.argv) > 1 else f"cdna_kernels/{NAME}.s"
    opt = dict(kv.split("=") for kv in sys.argv[2:])
    open(out, "w").write(build(opt, verbose="v" in opt))
    print("written", out)
```
